```python
import torch

def _softmax(x, axis=-1):
    return torch.softmax(x, dim=axis)
def _gelu(x):
    return torch.nn.functional.gelu(x, approximate="tanh")
def _silu(x):
    return torch.nn.functional.silu(x)
def _sigmoid(x):
    return torch.sigmoid(x)
def _layernorm(x, axis=-1, eps=1e-5):
    m = x.mean(dim=axis, keepdim=True)
    v = x.var(dim=axis, keepdim=True, unbiased=False)
    return (x - m) / torch.sqrt(v + eps)
def _scatter_add(tgt, idx, src, axis=0):
    return tgt.clone().index_add_(axis, idx, src)
def _segment_sum(src, seg, n):
    out = torch.zeros((n,) + src.shape[1:], dtype=src.dtype)
    return out.index_add_(0, seg, src)
def _pad(x, pw):
    flat = tuple(v for pair in reversed(pw) for v in pair)
    return torch.nn.functional.pad(x, flat)

kernel_name = 'recurrent_scan__grouped_kv_mqa__dense_activation_relu__prompt'

def setup_inputs():

    _w = (lambda a: (lambda t: t.to(torch.bfloat16) if t.is_floating_point() else t)(torch.as_tensor(a)))
    def _A_setup():
        B, S, D, H = 1, 2048, 512, 32
        Dh = D // H
        return {
            "x": _w((lambda *s: torch.randn(*s, dtype=torch.bfloat16) * 0.05)(B, S, D)),
            "wq": _w((lambda *s: torch.randn(*s, dtype=torch.bfloat16) * 0.05)(D, H * Dh)),
            "wk": _w((lambda *s: torch.randn(*s, dtype=torch.bfloat16) * 0.05)(D, Dh)),
            "wv": _w((lambda *s: torch.randn(*s, dtype=torch.bfloat16) * 0.05)(D, Dh)),
            "wo": _w((lambda *s: torch.randn(*s, dtype=torch.bfloat16) * 0.05)(H * Dh, D)),
        }
    _A_in = _A_setup()

    def _B_setup():
        B, S, D, Dff = 1, 2048, 512, 1792
        return {
            "x": _w((lambda *s: torch.randn(*s, dtype=torch.bfloat16) * 0.05)(B, S, D)),
            "w1": _w((lambda *s: torch.randn(*s, dtype=torch.bfloat16) * 0.05)(D, Dff)),
            "w2": _w((lambda *s: torch.randn(*s, dtype=torch.bfloat16) * 0.05)(Dff, D)),
        }
    _B_in = _B_setup()

    return {
        "A_x": _A_in["x"],
        "A_wq": _A_in["wq"],
        "A_wk": _A_in["wk"],
        "A_wv": _A_in["wv"],
        "A_wo": _A_in["wo"],
        "B_x": _B_in["x"],
        "B_w1": _B_in["w1"],
        "B_w2": _B_in["w2"],
    }

def reference(A_x, A_wq, A_wk, A_wv, A_wo, B_x, B_w1, B_w2):
    def _A_ref(x, wq, wk, wv, wo):
        B, S, D = x.shape
        H = 32
        Dh = D // H
        q = (lambda x, *d: x.permute(*d))((x @ wq).reshape(B, S, H, Dh), 0, 2, 1, 3)
        k = x @ wk
        v = x @ wv
        scores = torch.einsum("bhqd,bkd->bhqk", q, k) * (Dh ** -0.5)
        p = _softmax(scores, axis=-1)
        o = torch.einsum("bhqk,bkd->bhqd", p, v)
        return (lambda x, *d: x.permute(*d))(o, 0, 2, 1, 3).reshape(B, S, H * Dh) @ wo

    def _B_ref(x, w1, w2):
        h = torch.einsum("bsd,df->bsf", x, w1)
        zero = torch.zeros_like(h)
        h = torch.maximum(h, zero)
        return torch.einsum("bsf,fd->bsd", h, w2)

    x = A_x
    xn = _layernorm(x, axis=-1)
    s = _A_ref(xn, A_wq, A_wk, A_wv, A_wo)
    g = _silu(_B_ref(xn, B_w1, B_w2))
    return x + s * g
```

```python
from mblib import kernel
U=8
def rep(fn, n=U):
    return lambda: "".join(fn(t) for t in range(n))
def tile(mode, ds=True):
    def f(t):
        a = 32 + 16*(t&1); b = 32 + 16*((t+1)&1)
        ex = [f"    v_exp_f32 v{a+i}, v{a+i}\n" for i in range(16)]
        pk = [f"    v_cvt_pk_bf16_f32 v{a+i}, v{a+2*i}, v{a+2*i+1}\n" for i in range(8)]
        O = "v[80:95]"; Kf="v[4:7]"; Qf="v[8:11]"; V0="v[12:15]"; V1="v[16:19]"; C="v[96:111]"
        if "oa" in mode: O = "a[0:15]"
        if "kva" in mode: Kf="a[16:19]"; Qf="a[20:23]"; V0="a[24:27]"; V1="a[28:31]"
        if "c0" in mode: C="0"
        qk = f"    v_mfma_f32_32x32x16_bf16 v[{b}:{b+15}], {Kf}, {Qf}, {C}\n"
        pv0 = f"    v_mfma_f32_32x32x16_bf16 {O}, {V0}, v[{b}:{b+3}], {O}\n"
        pv1 = f"    v_mfma_f32_32x32x16_bf16 {O}, {V1}, v[{b+4}:{b+7}], {O}\n"
        if "m16" in mode:
            pv0 = f"    v_mfma_f32_16x16x32_bf16 v[80:83], {V0}, v[{b}:{b+3}], v[80:83]\n"
            pv1 = f"    v_mfma_f32_16x16x32_bf16 v[84:87], {V1}, v[{b+4}:{b+7}], v[84:87]\n"
        d = ["","",""]
        if ds:
            d = [f"    ds_read_b128 v[{112+4*i}:{115+4*i}], v3 offset:{1024*(3*t+i)}\n" for i in range(3)]
            d[1] = "    s_mov_b64 exec, s[26:27]\n" + d[1] + d[2] + "    s_mov_b64 exec, -1\n"; d[2] = ""
        seq = []
        seq += [pv0, d[0]] + ex[0:4] + [pk[0]] + ex[4:5]
        seq += [pv1, d[1]] + ex[5:6] + [pk[1]] + ex[6:8] + [pk[2]] + ex[8:9]
        seq += [qk] + ex[9:10] + [pk[3]] + ex[10:12] + [pk[4]] + ex[12:14] + [pk[5]] + ex[14:16] + [pk[6], "    s_nop 0\n", pk[7]]
        return "".join(seq)
    return f
def ffn(nst=3):
    def f():
        s=""
        for st in range(nst):
            r = 4 + 16*st
            s += f"    s_waitcnt vmcnt({4*(nst-1)})\n"
            s += f"    v_mfma_f32_32x32x16_bf16 v[64:79], v[{r}:{r+3}], v[{r+8}:{r+11}], v[64:79]\n"
            s += f"    v_mfma_f32_32x32x16_bf16 v[80:95], v[{r}:{r+3}], v[{r+12}:{r+15}], v[80:95]\n"
            s += f"    v_mfma_f32_32x32x16_bf16 v[96:111], v[{r+4}:{r+7}], v[{r+8}:{r+11}], v[96:111]\n"
            s += f"    v_mfma_f32_32x32x16_bf16 v[112:127], v[{r+4}:{r+7}], v[{r+12}:{r+15}], v[112:127]\n"
            for j in range(4):
                s += f"    buffer_load_dwordx4 v[{r+4*j}:{r+4*j+3}], v3, s[28:31], s{32+j} offen offset:{1024*st}\n"
        for j in range(4):
            s += f"    s_add_u32 s{32+j}, s{32+j}, {1024*nst}\n"
        return s
    return f
def pre2(prio, nst=3):
    s = f"    s_setprio {prio}\n"
    s += "    s_lshr_b32 s36, s2, 3\n    s_and_b32 s36, s36, 7\n    s_lshl_b32 s36, s36, 2\n    s_add_u32 s36, s36, s20\n    s_sub_u32 s36, s36, 8\n"
    s += "    s_mul_i32 s32, s36, 131072\n    s_add_u32 s33, s32, 65536\n"
    s += "    s_lshr_b32 s37, s2, 6\n    s_and_b32 s38, s2, 7\n    s_lshl_b32 s38, s38, 2\n    s_add_u32 s37, s37, s38\n"
    s += "    s_mul_i32 s34, s37, 262144\n    s_add_u32 s34, s34, 0x400000\n    s_add_u32 s35, s34, 131072\n"
    for st in range(nst):
        r = 4+16*st
        for j in range(4):
            s += f"    buffer_load_dwordx4 v[{r+4*j}:{r+4*j+3}], v3, s[28:31], s{32+j} offen offset:{1024*st}\n"
    return s
```

```python
def kernel(body_fn, name, block, iters=200, grid=256, lds=0, nv=128, pre="", na=0, role2=None, norm=None):
    s = f"""; iters={norm if norm else iters}
; @launch grid=({grid},1,1) block=({block},1,1) lds={lds}
.amdgcn_target "amdgcn-amd-amdhsa--gfx950"
.text
.globl mb_kernel
.p2align 8
.type mb_kernel,@function
mb_kernel:
    s_load_dwordx2 s[4:5], s[0:1], 0
    s_load_dwordx2 s[6:7], s[0:1], 8
    s_waitcnt lgkmcnt(0)
    s_mov_b32 s12, s6
    s_mov_b32 s13, s7
    s_mov_b32 s14, 0x400000
    s_mov_b32 s15, 0x00020000
    s_mov_b32 s28, s4
    s_mov_b32 s29, s5
    s_mov_b32 s30, 0x1000000
    s_mov_b32 s31, 0x00020000
    v_lshrrev_b32 v1, 6, v0
    s_nop 1
    v_readfirstlane_b32 s20, v1
    v_and_b32 v2, 63, v0
    v_lshlrev_b32 v3, 4, v2          ; lane*16
"""
    for i in range(4, nv):
        s += f"    v_mov_b32 v{i}, 0\n"
    for i in range(na):
        s += f"    v_accvgpr_write_b32 a{i}, 0\n"
    s += pre
    s += f"""    s_barrier
    s_memtime s[8:9]
    s_waitcnt lgkmcnt(0)
"""
    if role2:
        s += f"    s_cmp_ge_u32 s20, {role2[0]}\n    s_cbranch_scc1 L_role2\n"
    s += f"""    s_mov_b32 s16, {iters}
.p2align 6
L_loop:
"""
    s += body_fn()
    s += f"""    s_sub_u32 s16, s16, 1
    s_cmp_lg_u32 s16, 0
    s_cbranch_scc1 L_loop
"""
    if role2:
        s += f"""    s_branch L_end
L_role2:
{role2[3]}
    s_mov_b32 s16, {role2[2]}
.p2align 6
L_loop2:
"""
        s += role2[1]()
        s += f"""    s_sub_u32 s16, s16, 1
    s_cmp_lg_u32 s16, 0
    s_cbranch_scc1 L_loop2
L_end:
"""
    s += f"""    s_waitcnt vmcnt(0) lgkmcnt(0)
    s_memtime s[10:11]
    s_waitcnt lgkmcnt(0)
    s_sub_u32 s10, s10, s8
    v_mov_b32 v4, s10
    s_mul_i32 s21, s2, {block//64}
    s_add_u32 s21, s21, s20
    s_lshl_b32 s21, s21, 2
    v_mov_b32 v5, s21
    s_mov_b64 exec, -1
    v_cmp_eq_u32 vcc, 0, v2
    s_and_saveexec_b64 s[22:23], vcc
    buffer_store_dword v4, v5, s[12:15], 0 offen
    s_waitcnt vmcnt(0)
    s_endpgm
.section .rodata,"a"
.p2align 6
.amdhsa_kernel mb_kernel
  .amdhsa_next_free_vgpr {nv+na}
  .amdhsa_next_free_sgpr 48
  .amdhsa_accum_offset {nv}
  .amdhsa_group_segment_fixed_size 0
  .amdhsa_kernarg_size 16
  .amdhsa_user_sgpr_count 2
  .amdhsa_user_sgpr_kernarg_segment_ptr 1
  .amdhsa_system_sgpr_workgroup_id_x 1
.end_amdhsa_kernel
"""
    open(name, "w").write(s)
```

```python
from mblib import kernel
from gen_mb4_lib import *
def staged(stages, U=8):
    def f():
        s=""
        for k,(rem,p) in enumerate(stages):
            s += f"    s_cmp_lg_u32 s16, {rem}\n    s_cbranch_scc1 L_sk{k}\n    s_setprio {p}\nL_sk{k}:\n"
        s += "".join(tile("v")(t) for t in range(U))
        return s
    return f
names=[]
pre = "    s_mov_b32 s26, 0x0000ffff\n    s_mov_b32 s27, 0x0000ffff\n"
cfgs = {"none":[], "a":[(16,3),(8,2),(2,1)], "b":[(16,3),(6,2),(1,1)], "c":[(16,3),(10,2),(4,1),(1,0)], "d":[(16,1)]}
for nm,st in cfgs.items():
    f = f"mb5_{nm}_ffn.s"
    kernel(staged(st,4), f, 768, iters=16, lds=32768, pre=pre, na=0, norm=1, role2=(8, ffn(), 20, pre2(0)))
    names.append(f)
    f = f"mb5_{nm}_noffn.s"
    kernel(staged(st,4), f, 512, iters=16, lds=32768, pre=pre, na=0, norm=1)
    names.append(f)
print(" ".join(names))
```

```python
NAME = "recurrent_scan__grouped_kv_mqa__dense_activation_relu__prompt"

XN   = 0x000000
QF   = 0x200000
KF   = 0x400000
VF   = 0x410000
KMAX = 0x420000
FLAGS= 0x421000
W1F  = 0x500000
W2F  = 0x700000
WOF  = 0x900000
HF   = 0xA00000
OF   = 0x1100000
GF   = 0x1300000
WS_BYTES = 0x1800000

class Asm:
    def __init__(self):
        self.lines = []
        self.uid = 0
    def __call__(self, s):
        for l in s.strip("\n").split("\n"):
            l = l.strip()
            if not l: continue
            if l.endswith(":") or l.startswith("."):
                self.lines.append(l)
            else:
                self.lines.append("    " + l)
    def label(self, base):
        self.uid += 1
        return f"L_{base}_{self.uid}"
    def text(self):
        return "\n".join(self.lines) + "\n"

def vr(a, n):
    return f"v[{a}:{a+n-1}]" if n > 1 else f"v{a}"
def sr(a, n):
    return f"s[{a}:{a+n-1}]" if n > 1 else f"s{a}"

def srd(e, d, base, nbytes):
    e(f"s_mov_b32 s{d}, s{base}")
    e(f"s_mov_b32 s{d+1}, s{base+1}")
    e(f"s_mov_b32 s{d+2}, {nbytes:#x}")
    e(f"s_mov_b32 s{d+3}, 0x20000")

def kernel_begin(e, name):
    e(f".globl {name}")
    e(".p2align 8")
    e(f".type {name},@function")
    e(f"{name}:")

def descriptor(name, nv, ns=96):
    acc = (nv + 3) // 4 * 4
    return f""".p2align 6
.amdhsa_kernel {name}
  .amdhsa_next_free_vgpr {nv}
  .amdhsa_next_free_sgpr {ns}
  .amdhsa_accum_offset {acc}
  .amdhsa_group_segment_fixed_size 0
  .amdhsa_kernarg_size 88
  .amdhsa_user_sgpr_count 2
  .amdhsa_user_sgpr_kernarg_segment_ptr 1
  .amdhsa_system_sgpr_workgroup_id_x 1
  .amdhsa_float_denorm_mode_32 3
  .amdhsa_float_denorm_mode_16_64 3
.end_amdhsa_kernel
"""
MFMA = "v_mfma_f32_32x32x16_bf16"
```

```python
import sys
from common import *
import k1, k2
HDR = open("cdna_kernels/" + NAME + ".s.ref").read().split("; Override")[0]
def build(launches, out):
    e = Asm()
    e('.amdgcn_target "amdgcn-amd-amdhsa--gfx950"')
    e(".text")
    descs = ""
    hdr = HDR
    done = set()
    for (name, fn, grid, block, lds) in launches:
        hdr += f"; @launch kernel={name} grid=({grid},1,1) block=({block},1,1) lds={lds}\n"
        if name in done: continue
        done.add(name)
        nv = fn(e, name)
        descs += descriptor(name, nv)
    open(out, "w").write(hdr + e.text() + '.section .rodata,"a"\n' + descs)
if __name__ == "__main__":
    out = sys.argv[1] if len(sys.argv) > 1 else "cdna_kernels/" + NAME + ".s"
    build([("prep_kernel", k1.gen_k1, 256, 512, k1.K1_LDS),
           ("ffn1_kernel", k2.gen_k2a, 256, 256, 0),
           ("ffn2_kernel", k2.gen_k2b, 256, 256, 65536),
           ("attn_kernel", k2.gen_k2, 256, 512, k2.K2_LDS),
           ("final_kernel", k2.gen_k3, 256, 256, 0)], out)
```

```python
from common import *
import struct
def f32bits(x): return struct.unpack("<I", struct.pack("<f", x))[0]
QSCALE = 0.25 * 1.4426950408889634

K1_LDS = 163840
L_WQ, L_WKV, L_SWZ, L_RED = 0, 65536, 81920, 98304

def decode_ids(e, s_rp, s_cg):
    e(f"s_and_b32 s{s_rp}, s2, 7")
    e(f"s_lshl_b32 s{s_rp}, s{s_rp}, 2")
    e(f"s_lshr_b32 s{s_cg}, s2, 6")
    e(f"s_add_u32 s{s_rp}, s{s_rp}, s{s_cg}")
    e(f"s_lshr_b32 s{s_cg}, s2, 3")
    e(f"s_and_b32 s{s_cg}, s{s_cg}, 7")

def gen_k1(e, name):
    kernel_begin(e, name)
    Lend = "L_k1_end"
    sX, sWQ, sWKV, sSW, sWS = 28, 32, 36, 40, 44
    sW, sRP, sCG, sKQ, sRT, sT0, sT1, sT2, sDOKV, sONES = 48, 49, 50, 51, 52, 53, 54, 55, 56, 57
    sSTR, sSRC, sDST, sDSTEP, sPA, sPB, sJ = 58, 59, 60, 61, 62, 63, 64
    sEX = 66
    vL, vROW, vHH, vXO, vDMA, vT0, vT1, vTR0, vTR1, vL16, vT2, vT3 = 1, 2, 3, 4, 5, 6, 7, 8, 9, 10, 11, 12
    vS1, vS2 = 14, 16
    vR, vC = 18, 19
    vTRK = 13
    X = 20
    ACC = 52
    AKV = 84
    WF = 100
    ST = 100
    NV = 124
    e(f"s_cmp_ge_u32 s2, 256")
    e(f"s_cbranch_scc1 {Lend}")
    e("s_load_dwordx16 s[4:19], s[0:1], 0")
    e("s_load_dwordx2 s[24:25], s[0:1], 80")
    e(f"v_lshrrev_b32 v{vT0}, 6, v0")
    e(f"v_and_b32 v{vL}, 63, v0")
    e(f"v_readfirstlane_b32 s{sW}, v{vT0}")
    decode_ids(e, sRP, sCG)
    e(f"v_and_b32 v{vROW}, 31, v{vL}")
    e(f"v_lshrrev_b32 v{vHH}, 5, v{vL}")
    e(f"v_lshlrev_b32 v{vL16}, 4, v{vL}")
    e(f"s_and_b32 s{sKQ}, s{sW}, 3")
    e(f"s_lshr_b32 s{sRT}, s{sW}, 2")
    e(f"v_lshlrev_b32 v{vXO}, 10, v{vROW}")
    e(f"v_lshl_add_u32 v{vXO}, v{vHH}, 4, v{vXO}")
    e(f"v_lshrrev_b32 v{vT0}, 2, v{vL}")
    e(f"v_and_b32 v{vT0}, 4, v{vT0}")
    e(f"v_and_b32 v{vT1}, 7, v{vL}")
    e(f"v_xor_b32 v{vT1}, v{vT1}, v{vT0}")
    e(f"v_lshlrev_b32 v{vT1}, 4, v{vT1}")
    e(f"v_lshrrev_b32 v{vT0}, 3, v{vL}")
    e(f"v_lshl_add_u32 v{vDMA}, v{vT0}, 10, v{vT1}")
    e(f"s_lshl_b32 s{sJ}, s2, 3")
    e(f"s_add_u32 s{sJ}, s{sJ}, s{sW}")
    e(f"s_and_b32 s{sT0}, s{sCG}, 5")
    e(f"s_cmp_eq_u32 s{sT0}, s{sRT}")
    e(f"s_cselect_b32 s{sDOKV}, 1, 0")
    e(f"s_mov_b32 s{sONES}, 0x3f803f80")
    e("s_waitcnt lgkmcnt(0)")
    srd(e, sX, 4, 2048*512*2)
    srd(e, sWQ, 6, 512*512*2)
    srd(e, sWS, 24, WS_BYTES)
    e(f"s_bitcmp1_b32 s{sCG}, 1")
    e(f"s_cselect_b32 s{sWKV}, s10, s8")
    e(f"s_cselect_b32 s{sWKV+1}, s11, s9")
    e(f"s_mov_b32 s{sWKV+2}, {512*16*2}")
    e(f"s_mov_b32 s{sWKV+3}, 0x20000")
    Lnokv = e.label("nokvdma")
    e(f"s_cmp_eq_u32 s{sDOKV}, 0")
    e(f"s_cbranch_scc1 {Lnokv}")
    e(f"s_lshl_b32 s{sT0}, s{sKQ}, 12")
    e(f"s_add_u32 m0, s{sT0}, {L_WKV}")
    e("s_nop 0")
    for i in range(4):
        e(f"buffer_load_dwordx4 v{vL16}, {sr(sWKV,4)}, s{sT0} offen offset:{1024*i} lds")
    e(f"{Lnokv}:")
    e(f"s_lshl_b32 s{sT0}, s{sRP}, 16")
    e(f"s_lshl_b32 s{sT1}, s{sRT}, 15")
    e(f"s_add_u32 s{sT0}, s{sT0}, s{sT1}")
    e(f"s_lshl_b32 s{sT1}, s{sKQ}, 8")
    e(f"s_add_u32 s{sT0}, s{sT0}, s{sT1}")
    for j in range(8):
        e(f"buffer_load_dwordx4 {vr(X+4*j,4)}, v{vXO}, {sr(sX,4)}, s{sT0} offen offset:{32*j}")
    e(f"s_lshl_b32 s{sT0}, s{sW}, 16")
    e(f"s_lshl_b32 s{sT1}, s{sCG}, 7")
    e(f"s_add_u32 s{sT0}, s{sT0}, s{sT1}")
    e(f"s_lshl_b32 s{sT1}, s{sW}, 13")
    e(f"s_add_u32 m0, s{sT1}, {L_WQ}")
    for i in range(8):
        e("s_nop 0")
        e(f"buffer_load_dwordx4 v{vDMA}, {sr(sWQ,4)}, s{sT0} offen lds")
        if i < 7:
            e(f"s_add_u32 s{sT0}, s{sT0}, 8192")
            e(f"s_add_u32 m0, m0, 1024")
    Lw2, Lwo, Lj = e.label("w2"), e.label("wo"), e.label("jd")
    e(f"s_mov_b32 s{sSW+3}, 0x20000")
    e(f"s_cmp_ge_u32 s{sJ}, 896")
    e(f"s_cbranch_scc1 {Lw2}")
    e(f"s_mov_b32 s{sSW}, s16")
    e(f"s_mov_b32 s{sSW+1}, s17")
    e(f"s_mov_b32 s{sSW+2}, {512*1792*2}")
    e(f"s_mov_b32 s{sSTR}, 3584")
    e(f"s_lshr_b32 s{sT0}, s{sJ}, 5")
    e(f"s_and_b32 s{sT1}, s{sJ}, 31")
    e(f"s_mov_b32 s{sDSTEP}, {32*1024}")
    e(f"s_mov_b32 s{sDST}, {W1F}")
    e(f"s_mov_b32 s{sPA}, 1024")
    e(f"s_mov_b32 s{sPB}, 512")
    e(f"s_branch {Lj}")
    e(f"{Lw2}:")
    e(f"s_mov_b32 s{sSTR}, 1024")
    e(f"s_mov_b32 s{sPA}, 512")
    e(f"s_mov_b32 s{sPB}, 1024")
    e(f"s_and_b32 s{sT0}, s{sJ}, 7")
    e(f"s_cmp_ge_u32 s{sJ}, 1792")
    e(f"s_cbranch_scc1 {Lwo}")
    e(f"s_mov_b32 s{sSW}, s18")
    e(f"s_mov_b32 s{sSW+1}, s19")
    e(f"s_mov_b32 s{sSW+2}, {512*1792*2}")
    e(f"s_sub_u32 s{sT1}, s{sJ}, 896")
    e(f"s_lshr_b32 s{sT1}, s{sT1}, 3")
    e(f"s_mov_b32 s{sDSTEP}, {112*1024}")
    e(f"s_mov_b32 s{sDST}, {W2F}")
    e(f"s_branch {Lj}")
    e(f"{Lwo}:")
    e(f"s_mov_b32 s{sSW}, s12")
    e(f"s_mov_b32 s{sSW+1}, s13")
    e(f"s_mov_b32 s{sSW+2}, {512*512*2}")
    e(f"s_sub_u32 s{sT1}, s{sJ}, 1792")
    e(f"s_lshr_b32 s{sT1}, s{sT1}, 3")
    e(f"s_mov_b32 s{sDSTEP}, {32*1024}")
    e(f"s_mov_b32 s{sDST}, {WOF}")
    e(f"{Lj}:")
    e(f"s_mul_i32 s{sSRC}, s{sT1}, s{sSTR}")
    e(f"s_lshl_b32 s{sSRC}, s{sSRC}, 4")
    e(f"s_lshl_b32 s{sT2}, s{sT0}, 7")
    e(f"s_add_u32 s{sSRC}, s{sSRC}, s{sT2}")
    e(f"s_mul_i32 s{sT2}, s{sT0}, s{sDSTEP}")
    e(f"s_lshl_b32 s{sT2}, s{sT2}, 1")
    e(f"s_add_u32 s{sDST}, s{sDST}, s{sT2}")
    e(f"s_lshl_b32 s{sT2}, s{sT1}, 10")
    e(f"s_add_u32 s{sDST}, s{sDST}, s{sT2}")
    e(f"v_mul_lo_u32 v{vT2}, v{vT0}, s{sSTR}")
    e(f"v_add_u32 v{vT2}, v{vT2}, v{vT1}")
    e(f"s_lshl_b32 s{sT0}, s{sW}, 11")
    e(f"s_add_u32 m0, s{sT0}, {L_SWZ}")
    e(f"s_lshl_b32 s{sT1}, s{sSTR}, 3")
    e(f"buffer_load_dwordx4 v{vT2}, {sr(sSW,4)}, s{sSRC} offen lds")
    e(f"s_add_u32 s{sSRC}, s{sSRC}, s{sT1}")
    e(f"s_add_u32 m0, m0, 1024")
    e("s_nop 0")
    e(f"buffer_load_dwordx4 v{vT2}, {sr(sSW,4)}, s{sSRC} offen lds")
    e(f"v_and_b32 v{vT0}, 12, v{vL}")
    e(f"v_lshlrev_b32 v{vTR0}, 5, v{vT0}")
    e(f"v_lshrrev_b32 v{vT0}, 3, v{vL}")
    e(f"v_and_b32 v{vT0}, 2, v{vT0}")
    e(f"v_bfe_u32 v{vT1}, v{vL}, 1, 1")
    e(f"v_or_b32 v{vT0}, v{vT0}, v{vT1}")
    e(f"v_lshrrev_b32 v{vT1}, 1, v{vL}")
    e(f"v_and_b32 v{vT1}, 4, v{vT1}")
    e(f"v_xor_b32 v{vT0}, v{vT0}, v{vT1}")
    e(f"v_lshl_add_u32 v{vTR0}, v{vT0}, 4, v{vTR0}")
    e(f"v_and_b32 v{vT0}, 1, v{vL}")
    e(f"v_lshl_add_u32 v{vT3}, v{vT0}, 3, v{vTR0}")
    e(f"s_lshl_b32 s{sT0}, s{sKQ}, 14")
    e(f"v_lshl_add_u32 v{vTR0}, v{vHH}, 10, v{vT3}")
    e(f"v_add_u32 v{vTR0}, s{sT0}, v{vTR0}")
    e(f"v_xor_b32 v{vTR1}, 64, v{vTR0}")
    e(f"v_and_b32 v{vT0}, 15, v{vL}")
    e(f"v_lshlrev_b32 v{vT0}, 3, v{vT0}")
    e(f"v_lshl_add_u32 v{vTRK}, v{vHH}, 8, v{vT0}")
    e(f"s_lshl_b32 s{sT0}, s{sKQ}, 12")
    e(f"s_add_u32 s{sT0}, s{sT0}, {L_WKV}")
    e(f"v_add_u32 v{vTRK}, s{sT0}, v{vTRK}")
    for r in (vS1, vS1+1, vS2, vS2+1):
        e(f"v_mov_b32 v{r}, 0")
    for j in range(8):
        e(f"s_waitcnt vmcnt({17-j})")
        for i in range(4):
            x = X + 4*j + i
            e(f"v_dot2_f32_bf16 v{vS1+(i&1)}, v{x}, s{sONES}, v{vS1+(i&1)}")
            e(f"v_dot2_f32_bf16 v{vS2+(i&1)}, v{x}, v{x}, v{vS2+(i&1)}")
    e(f"s_lshl_b32 s{sT0}, s{sRT}, 11")
    e(f"s_add_u32 s{sT0}, s{sT0}, {L_RED}")
    e(f"v_lshlrev_b32 v{vT0}, 6, v{vROW}")
    e(f"v_add_u32 v{vT0}, s{sT0}, v{vT0}")
    e(f"s_lshl_b32 s{sT1}, s{sKQ}, 4")
    e(f"v_lshl_add_u32 v{vT1}, v{vHH}, 3, v{vT0}")
    e(f"v_add_u32 v{vT1}, s{sT1}, v{vT1}")
    e(f"v_add_f32 v{vS1}, v{vS1}, v{vS1+1}")
    e(f"v_add_f32 v{vS1+1}, v{vS2}, v{vS2+1}")
    e(f"ds_write_b64 v{vT1}, {vr(vS1,2)}")
    e("s_waitcnt lgkmcnt(0)")
    e("s_barrier")
    for i in range(4):
        e(f"ds_read_b128 {vr(ST+4*i,4)}, v{vT0} offset:{16*i}")
    e("s_waitcnt lgkmcnt(0)")
    for step in (8, 4, 2):
        for i in range(step):
            e(f"v_add_f32 v{ST+i}, v{ST+i}, v{ST+i+step}")
    e(f"v_mul_f32 v{ST}, {f32bits(1/512):#x}, v{ST}")
    e(f"v_mul_f32 v{ST+1}, {f32bits(1/512):#x}, v{ST+1}")
    e(f"v_fma_f32 v{ST+1}, -v{ST}, v{ST}, v{ST+1}")
    e(f"v_max_f32 v{ST+1}, 0, v{ST+1}")
    e(f"v_cvt_pk_bf16_f32 v{ST+2}, v{ST}, v{ST+1}")
    e(f"v_lshlrev_b32 v{ST}, 16, v{ST+2}")
    e(f"v_and_b32 v{ST+1}, 0xffff0000, v{ST+2}")
    e(f"v_add_f32 v{ST+1}, {f32bits(1e-5):#x}, v{ST+1}")
    e(f"v_cvt_pk_bf16_f32 v{ST+1}, v{ST+1}, v{ST+1}")
    e(f"v_lshlrev_b32 v{ST+1}, 16, v{ST+1}")
    e(f"v_sqrt_f32 v{ST+1}, v{ST+1}")
    e("s_nop 0")
    e(f"v_cvt_pk_bf16_f32 v{ST+1}, v{ST+1}, v{ST+1}")
    e(f"v_lshlrev_b32 v{ST+1}, 16, v{ST+1}")
    e(f"v_rcp_f32 v{vR}, v{ST+1}")
    e("s_nop 0")
    e(f"v_mul_f32 v{vC}, v{ST}, v{vR}")
    for i in range(32):
        x = X + i
        t0, t1 = (vS1, vS1+1) if (i & 1) == 0 else (vS2, vS2+1)
        e(f"v_lshlrev_b32 v{t0}, 16, v{x}")
        e(f"v_and_b32 v{t1}, 0xffff0000, v{x}")
        e(f"v_fma_f32 v{t0}, v{t0}, v{vR}, -v{vC}")
        e(f"v_fma_f32 v{t1}, v{t1}, v{vR}, -v{vC}")
        e(f"v_cvt_pk_bf16_f32 v{x}, v{t0}, v{t1}")
    e(f"s_lshl_b32 s{sT0}, s{sRP}, 1")
    e(f"s_add_u32 s{sT0}, s{sT0}, s{sRT}")
    e(f"s_lshl_b32 s{sT1}, s{sT0}, 5")
    e(f"s_lshl_b32 s{sT2}, s{sKQ}, 3")
    e(f"s_add_u32 s{sT1}, s{sT1}, s{sT2}")
    e(f"s_add_u32 s{sT1}, s{sT1}, s{sCG}")
    e(f"s_lshl_b32 s{sT1}, s{sT1}, 10")
    Lxd = e.label("xnd")
    for j in range(8):
        Ln = e.label("xn")
        if j < 7:
            e(f"s_cmp_lg_u32 s{sCG}, {j}")
            e(f"s_cbranch_scc1 {Ln}")
        e(f"buffer_store_dwordx4 {vr(X+4*j,4)}, v{vL16}, {sr(sWS,4)}, s{sT1} offen")
        if j < 7:
            e(f"s_branch {Lxd}")
            e(f"{Ln}:")
    e(f"{Lxd}:")
    e("s_waitcnt vmcnt(3)")
    e("s_barrier")
    def trreads(ks, st, kv):
        b = WF + 12*st
        e(f"ds_read_b64_tr_b16 {vr(b,2)}, v{vTR0} offset:{ks*2048}")
        e(f"ds_read_b64_tr_b16 {vr(b+2,2)}, v{vTR0} offset:{ks*2048+512}")
        e(f"ds_read_b64_tr_b16 {vr(b+4,2)}, v{vTR1} offset:{ks*2048}")
        e(f"ds_read_b64_tr_b16 {vr(b+6,2)}, v{vTR1} offset:{ks*2048+512}")
        if kv:
            e(f"ds_read_b64_tr_b16 {vr(b+8,2)}, v{vTRK} offset:{ks*512}")
            e(f"ds_read_b64_tr_b16 {vr(b+10,2)}, v{vTRK} offset:{ks*512+128}")
    def mm(kv):
        n = 6 if kv else 4
        trreads(0, 0, kv)
        for ks in range(8):
            st = ks & 1
            if ks < 7:
                trreads(ks+1, st ^ 1, kv)
                e(f"s_waitcnt lgkmcnt({n})")
            else:
                e("s_waitcnt lgkmcnt(0)")
            b = WF + 12*st
            c0 = "0" if ks == 0 else vr(ACC,16)
            c1 = "0" if ks == 0 else vr(ACC+16,16)
            ck = "0" if ks == 0 else vr(AKV,16)
            e(f"{MFMA} {vr(ACC,16)}, {vr(b,4)}, {vr(X+4*ks,4)}, {c0}")
            e(f"{MFMA} {vr(ACC+16,16)}, {vr(b+4,4)}, {vr(X+4*ks,4)}, {c1}")
            if kv == 1:
                e(f"{MFMA} {vr(AKV,16)}, {vr(b+8,4)}, {vr(X+4*ks,4)}, {ck}")
            if kv == 2:
                e(f"{MFMA} {vr(AKV,16)}, {vr(X+4*ks,4)}, {vr(b+8,4)}, {ck}")
    Lmk, Lmv, Lmd, Lkvw = e.label("mk"), e.label("mv"), e.label("md"), e.label("kvw")
    e(f"s_cmp_lg_u32 s{sDOKV}, 0")
    e(f"s_cbranch_scc1 {Lmk}")
    mm(0)
    e(f"s_branch {Lmd}")
    e(f"{Lmk}:")
    e(f"s_bitcmp1_b32 s{sCG}, 1")
    e(f"s_cbranch_scc1 {Lmv}")
    mm(1)
    e(f"s_branch {Lkvw}")
    e(f"{Lmv}:")
    mm(2)
    e(f"{Lkvw}:")
    e(f"s_lshl_b32 s{sT1}, s{sKQ}, 12")
    e(f"s_add_u32 s{sT1}, s{sT1}, {L_WKV}")
    e(f"v_add_u32 v{vT0}, s{sT1}, v{vL16}")
    e("s_nop 15")
    for i in range(4):
        e(f"ds_write_b128 v{vT0}, {vr(AKV+4*i,4)} offset:{1024*i}")
    e(f"{Lmd}:")
    e(f"s_lshl_b32 s{sT1}, s{sRT}, 15")
    e(f"s_add_u32 s{sT1}, s{sT1}, {L_RED}")
    e(f"s_lshl_b32 s{sT2}, s{sKQ}, 11")
    e(f"s_add_u32 s{sT2}, s{sT2}, s{sT1}")
    e(f"v_add_u32 v{vT0}, s{sT2}, v{vL16}")
    e(f"s_lshl_b32 s{sT2}, s{sKQ}, 13")
    e(f"s_add_u32 s{sT2}, s{sT2}, s{sT1}")
    e(f"v_add_u32 v{vT1}, s{sT2}, v{vL16}")
    e("s_nop 12")
    for p in range(4):
        for i in range(2):
            e(f"ds_write_b128 v{vT0}, {vr(ACC+8*p+4*i,4)} offset:{8192*p+1024*i}")
    e(f"s_lshl_b32 s{sT1}, s{sW}, 11")
    e(f"s_add_u32 s{sT1}, s{sT1}, {L_SWZ}")
    e(f"v_mul_lo_u32 v{vT2}, v{vHH}, s{sPA}")
    e(f"v_add3_u32 v{vT2}, v{vT2}, v{vT3}, s{sT1}")
    e(f"v_add_u32 v{vT3}, s{sPB}, v{vT2}")
    e(f"v_xor_b32 v{vTR0}, 64, v{vT2}")
    e(f"v_xor_b32 v{vTR1}, 64, v{vT3}")
    e("s_waitcnt vmcnt(1)")
    e(f"ds_read_b64_tr_b16 {vr(WF,2)}, v{vT2}")
    e(f"ds_read_b64_tr_b16 {vr(WF+2,2)}, v{vT3}")
    e(f"ds_read_b64_tr_b16 {vr(WF+4,2)}, v{vTR0}")
    e(f"ds_read_b64_tr_b16 {vr(WF+6,2)}, v{vTR1}")
    e("s_waitcnt lgkmcnt(0)")
    e("s_barrier")
    for k in range(4):
        for i in range(2):
            e(f"ds_read_b128 {vr(X+8*k+4*i,4)}, v{vT1} offset:{2048*k+1024*i}")
    e(f"buffer_store_dwordx4 {vr(WF,4)}, v{vL16}, {sr(sWS,4)}, s{sDST} offen")
    e(f"s_add_u32 s{sDST}, s{sDST}, s{sDSTEP}")
    e(f"buffer_store_dwordx4 {vr(WF+4,4)}, v{vL16}, {sr(sWS,4)}, s{sDST} offen")
    e(f"s_lshl_b32 s{sT1}, s{sCG}, 2")
    e(f"s_add_u32 s{sT1}, s{sT1}, s{sKQ}")
    e(f"s_lshl_b32 s{sT1}, s{sT1}, 6")
    e(f"s_add_u32 s{sT1}, s{sT1}, s{sT0}")
    e(f"s_lshl_b32 s{sT1}, s{sT1}, 10")
    e(f"s_add_u32 s{sT1}, s{sT1}, {QF}")
    e(f"s_mov_b32 s{sT2}, {f32bits(QSCALE):#x}")
    e("s_waitcnt lgkmcnt(0)")
    for i in range(8):
        e(f"v_add_f32 v{X+i}, v{X+i}, v{X+8+i}")
        e(f"v_add_f32 v{X+16+i}, v{X+16+i}, v{X+24+i}")
    for i in range(8):
        e(f"v_add_f32 v{X+i}, v{X+i}, v{X+16+i}")
    for i in range(8):
        e(f"v_mul_f32 v{X+i}, s{sT2}, v{X+i}")
    for i in range(4):
        e(f"v_cvt_pk_bf16_f32 v{X+8+i}, v{X+2*i}, v{X+2*i+1}")
    e(f"buffer_store_dwordx4 {vr(X+8,4)}, v{vL16}, {sr(sWS,4)}, s{sT1} offen")
    Lnf = e.label("nf")
    e(f"s_cmp_lg_u32 s{sW}, 7")
    e(f"s_cbranch_scc1 {Lnf}")
    e(f"v_mov_b32 v{vT0}, 0")
    e(f"v_lshlrev_b32 v{vT2}, 2, v{vL}")
    e(f"s_lshl_b32 s{sT1}, s2, 8")
    e(f"s_add_u32 s{sT1}, s{sT1}, {FLAGS}")
    e(f"buffer_store_dword v{vT0}, v{vT2}, {sr(sWS,4)}, s{sT1} offen")
    e(f"{Lnf}:")
    e(f"s_cmp_eq_u32 s{sDOKV}, 0")
    e(f"s_cbranch_scc1 {Lend}")
    e(f"s_cmp_lg_u32 s{sKQ}, 0")
    e(f"s_cbranch_scc1 {Lend}")
    e(f"v_add_u32 v{vT0}, {L_WKV}, v{vL16}")
    P = 52
    P = 36
    for k in range(4):
        for i in range(4):
            e(f"ds_read_b128 {vr(P+16*k+4*i,4)}, v{vT0} offset:{4096*k+1024*i}")
    e("s_waitcnt lgkmcnt(0)")
    for i in range(16):
        e(f"v_add_f32 v{P+i}, v{P+i}, v{P+16+i}")
        e(f"v_add_f32 v{P+32+i}, v{P+32+i}, v{P+48+i}")
    for i in range(16):
        e(f"v_add_f32 v{P+i}, v{P+i}, v{P+32+i}")
    for i in range(8):
        e(f"v_cvt_pk_bf16_f32 v{P+16+i}, v{P+2*i}, v{P+2*i+1}")
    Lv = e.label("vfin")
    e(f"s_lshl_b32 s{sT1}, s{sT0}, 10")
    e(f"s_bitcmp1_b32 s{sCG}, 1")
    e(f"s_cbranch_scc1 {Lv}")
    e(f"s_add_u32 s{sT1}, s{sT1}, {KF}")
    e(f"buffer_store_dwordx4 {vr(P+16,4)}, v{vL16}, {sr(sWS,4)}, s{sT1} offen")
    e(f"v_mov_b32 v{vT1}, 0")
    for i in range(4):
        e(f"v_dot2_f32_bf16 v{vT1}, v{P+16+i}, v{P+16+i}, v{vT1}")
    e("s_nop 2")
    e(f"v_mov_b32 v{vT2}, v{vT1}")
    e("s_nop 1")
    e(f"v_permlane32_swap_b32 v{vT1}, v{vT2}")
    e("s_nop 1")
    e(f"v_add_f32 v{vT1}, v{vT1}, v{vT2}")
    wave_max(e, vT1, vT2)
    e(f"s_lshl_b32 s{sT1}, s{sT0}, 2")
    e(f"s_add_u32 s{sT1}, s{sT1}, {KMAX}")
    e(f"v_mov_b32 v{vT0}, 0")
    e(f"s_mov_b64 exec, 1")
    e(f"buffer_store_dword v{vT1}, v{vT0}, {sr(sWS,4)}, s{sT1} offen")
    e("s_endpgm")
    e(f"{Lv}:")
    e(f"s_add_u32 s{sT1}, s{sT1}, {VF}")
    e(f"v_and_b32 v{vT0}, 15, v{vL}")
    e(f"v_lshlrev_b32 v{vT0}, 4, v{vT0}")
    e(f"v_lshl_add_u32 v{vT0}, v{vHH}, 8, v{vT0}")
    e(f"s_mov_b32 exec_lo, 0xffff")
    e(f"s_mov_b32 exec_hi, 0xffff")
    e(f"buffer_store_dwordx4 {vr(P+16,4)}, v{vT0}, {sr(sWS,4)}, s{sT1} offen")
    e(f"buffer_store_dwordx4 {vr(P+20,4)}, v{vT0}, {sr(sWS,4)}, s{sT1} offen offset:512")
    e(f"{Lend}:")
    e("s_endpgm")
    return NV

def wave_max(e, v, t):
    for ctl in ("quad_perm:[1,0,3,2]", "quad_perm:[2,3,0,1]", "row_half_mirror", "row_mirror"):
        e("s_nop 1")
        e(f"v_max_f32_dpp v{v}, v{v}, v{v} {ctl} row_mask:0xf bank_mask:0xf")
    e(f"v_mov_b32 v{t}, v{v}")
    e("s_nop 1")
    e(f"v_permlane16_swap_b32 v{v}, v{t}")
    e("s_nop 1")
    e(f"v_max_f32 v{v}, v{v}, v{t}")
    e(f"v_mov_b32 v{t}, v{v}")
    e("s_nop 1")
    e(f"v_permlane32_swap_b32 v{v}, v{t}")
    e("s_nop 1")
    e(f"v_max_f32 v{v}, v{v}, v{t}")
```

```python
from common import *
from k1 import decode_ids, wave_max, f32bits
LOG2E = 1.4426950408889634

def gemm64(e, ACC, FR, nst, nk, sA0, sA1, sB0, sB1, vOFF, sSRD, flagsB="", first_c_zero=True):
    sregs = [sA0, sA1, sB0, sB1]
    def loads(k):
        st = k % nst
        if k % 4 == 0 and k > 0:
            for s in sregs:
                e(f"s_add_u32 s{s}, s{s}, 4096")
        for j in range(4):
            fl = flagsB if j >= 2 else ""
            e(f"buffer_load_dwordx4 {vr(FR+16*st+4*j,4)}, v{vOFF}, {sr(sSRD,4)}, s{sregs[j]} offen offset:{(k%4)*1024} {fl}")
    for k in range(min(nst, nk)):
        loads(k)
    for k in range(nk):
        st = k % nst
        inflight_after = min(nk - 1 - k, nst - 1)
        e(f"s_waitcnt vmcnt({4*inflight_after})")
        b = FR + 16*st
        for a in range(2):
            for bb in range(2):
                d = ACC + 16*(2*a+bb)
                c = "0" if (k == 0 and first_c_zero) else vr(d,16)
                e(f"{MFMA} {vr(d,16)}, {vr(b+4*a,4)}, {vr(b+8+4*bb,4)}, {c}")
        if k + nst < nk:
            loads(k + nst)

def std_prologue(e, Lend, sW, sRP, sCG, sWS, vL, vL16, vT, extra_loads=""):
    e(f"s_cmp_ge_u32 s2, 256")
    e(f"s_cbranch_scc1 {Lend}")
    e("s_load_dwordx2 s[24:25], s[0:1], 80")
    if extra_loads: e(extra_loads)
    e(f"v_lshrrev_b32 v{vT}, 6, v0")
    e(f"v_and_b32 v{vL}, 63, v0")
    e(f"v_readfirstlane_b32 s{sW}, v{vT}")
    decode_ids(e, sRP, sCG)
    e(f"v_lshlrev_b32 v{vL16}, 4, v{vL}")
    e("s_waitcnt lgkmcnt(0)")
    srd(e, sWS, 24, WS_BYTES)

def ffn1_body(e, sFW, sRP, sCG, sWS, vL16, ACC, FR, nst, S, store_flags=""):
    sA0, sA1, sB0, sB1, sJ, sT = S[:6]
    Lskip = e.label("f1skip")
    e(f"s_lshl_b32 s{sJ}, s{sCG}, 2")
    e(f"s_add_u32 s{sJ}, s{sJ}, s{sFW}")
    e(f"s_cmp_ge_u32 s{sJ}, 28")
    e(f"s_cbranch_scc1 {Lskip}")
    e(f"s_lshl_b32 s{sA0}, s{sJ}, 16")
    e(f"s_add_u32 s{sA0}, s{sA0}, {W1F}")
    e(f"s_add_u32 s{sA1}, s{sA0}, {32*1024}")
    e(f"s_lshl_b32 s{sB0}, s{sRP}, 16")
    e(f"s_add_u32 s{sB0}, s{sB0}, {XN}")
    e(f"s_add_u32 s{sB1}, s{sB0}, {32*1024}")
    gemm64(e, ACC, FR, nst, 32, sA0, sA1, sB0, sB1, vL16, sWS)
    e(f"s_mul_i32 s{sA0}, s{sRP}, {2*112*1024}")
    e(f"s_lshl_b32 s{sT}, s{sJ}, 12")
    e(f"s_add_u32 s{sA0}, s{sA0}, s{sT}")
    e(f"s_add_u32 s{sA0}, s{sA0}, {HF}")
    e(f"s_add_u32 s{sA1}, s{sA0}, {112*1024}")
    e("s_nop 7")
    for a in range(2):
        for bb in range(2):
            d = ACC + 16*(2*a+bb)
            for i in range(8):
                e(f"v_cvt_pk_bf16_f32 v{d+i}, v{d+2*i}, v{d+2*i+1}")
            for i in range(8):
                e(f"v_pk_max_i16 v{d+i}, v{d+i}, 0")
            for half in range(2):
                e(f"buffer_store_dwordx4 {vr(d+4*half,4)}, v{vL16}, {sr(sWS,4)}, s{sA1 if bb else sA0} offen offset:{(2*a+half)*1024} {store_flags}")
    e(f"{Lskip}:")

def gen_k2a(e, name):
    kernel_begin(e, name)
    Lend = "L_k2a_end"
    sWS, sW, sRP, sCG = 44, 48, 49, 50
    std_prologue(e, Lend, sW, sRP, sCG, sWS, 1, 2, 3)
    ffn1_body(e, sW, sRP, sCG, sWS, 2, 4, 68, 4, [52,53,54,55,56,57])
    e(f"{Lend}:")
    e("s_endpgm")
    return 132

def silu_pack(e, d, t0):
    for i in range(0, 16, 4):
        e(f"v_cvt_pk_bf16_f32 v{t0}, v{d+i}, v{d+i+1}")
        e(f"v_cvt_pk_bf16_f32 v{t0+1}, v{d+i+2}, v{d+i+3}")
        e(f"v_lshlrev_b32 v{d+i}, 16, v{t0}")
        e(f"v_and_b32 v{d+i+1}, 0xffff0000, v{t0}")
        e(f"v_lshlrev_b32 v{d+i+2}, 16, v{t0+1}")
        e(f"v_and_b32 v{d+i+3}, 0xffff0000, v{t0+1}")
        for k in range(4):
            e(f"v_mul_f32 v{t0+k}, {f32bits(-LOG2E):#x}, v{d+i+k}")
        for k in range(4):
            e(f"v_exp_f32 v{t0+k}, v{t0+k}")
        for k in range(4):
            e(f"v_add_f32 v{t0+k}, 1.0, v{t0+k}")
        for k in range(4):
            e(f"v_rcp_f32 v{t0+k}, v{t0+k}")
        for k in range(4):
            e(f"v_mul_f32 v{d+i+k}, v{d+i+k}, v{t0+k}")
        e(f"v_cvt_pk_bf16_f32 v{d+i//2}, v{d+i}, v{d+i+1}")
        e(f"v_cvt_pk_bf16_f32 v{d+i//2+1}, v{d+i+2}, v{d+i+3}")

def gen_k2b(e, name):
    kernel_begin(e, name)
    Lend = "L_k2b_end"
    sWS, sW, sRP, sCG = 44, 48, 49, 50
    sA0, sA1, sB0, sB1, sT = 52, 53, 54, 55, 56
    vL16, vT0, vT1 = 2, 3, 1
    ACC, FR = 4, 68
    std_prologue(e, Lend, sW, sRP, sCG, sWS, 1, 2, 3)
    e(f"s_mul_i32 s{sT}, s{sW}, {28*1024}")
    e(f"s_mul_i32 s{sA0}, s{sCG}, {2*112*1024}")
    e(f"s_add_u32 s{sA0}, s{sA0}, s{sT}")
    e(f"s_add_u32 s{sA0}, s{sA0}, {W2F}")
    e(f"s_add_u32 s{sA1}, s{sA0}, {112*1024}")
    e(f"s_mul_i32 s{sB0}, s{sRP}, {2*112*1024}")
    e(f"s_add_u32 s{sB0}, s{sB0}, s{sT}")
    e(f"s_add_u32 s{sB0}, s{sB0}, {HF}")
    e(f"s_add_u32 s{sB1}, s{sB0}, {112*1024}")
    gemm64(e, ACC, FR, 4, 28, sA0, sA1, sB0, sB1, vL16, sWS)
    e(f"s_lshl_b32 s{sT}, s{sW}, 12")
    e(f"v_add_u32 v{vT0}, s{sT}, v{vL16}")
    e(f"s_lshl_b32 s{sT}, s{sW}, 14")
    e(f"v_add_u32 v{vT1}, s{sT}, v{vL16}")
    e("s_nop 10")
    for q in range(4):
        for i in range(4):
            e(f"ds_write_b128 v{vT0}, {vr(ACC+16*q+4*i,4)} offset:{16384*q+1024*i}")
    e("s_waitcnt lgkmcnt(0)")
    e("s_barrier")
    for k in range(4):
        for i in range(4):
            e(f"ds_read_b128 {vr(ACC+16*k+4*i,4)}, v{vT1} offset:{4096*k+1024*i}")
    e("s_waitcnt lgkmcnt(0)")
    for i in range(16):
        e(f"v_add_f32 v{ACC+i}, v{ACC+i}, v{ACC+16+i}")
        e(f"v_add_f32 v{ACC+32+i}, v{ACC+32+i}, v{ACC+48+i}")
    for i in range(16):
        e(f"v_add_f32 v{ACC+i}, v{ACC+i}, v{ACC+32+i}")
    silu_pack(e, ACC, FR)
    e(f"s_lshl_b32 s{sT}, s{sRP}, 3")
    e(f"s_add_u32 s{sT}, s{sT}, s{sCG}")
    e(f"s_lshl_b32 s{sT}, s{sT}, 2")
    e(f"s_add_u32 s{sT}, s{sT}, s{sW}")
    e(f"s_lshl_b32 s{sT}, s{sT}, 11")
    e(f"s_add_u32 s{sT}, s{sT}, {GF}")
    e(f"buffer_store_dwordx4 {vr(ACC,4)}, v{vL16}, {sr(sWS,4)}, s{sT} offen")
    e(f"buffer_store_dwordx4 {vr(ACC+4,4)}, v{vL16}, {sr(sWS,4)}, s{sT} offen offset:1024")
    e(f"{Lend}:")
    e("s_endpgm")
    return 132

def final_epilogue(e, ACC, G, XR, T, vXO, sOUT, sOFF):
    for q in range(4):
        a = ACC + 4*q
        e(f"v_cvt_pk_bf16_f32 v{T}, v{a}, v{a+1}")
        e(f"v_cvt_pk_bf16_f32 v{T+1}, v{a+2}, v{a+3}")
        e(f"v_lshlrev_b32 v{a}, 16, v{T}")
        e(f"v_and_b32 v{a+1}, 0xffff0000, v{T}")
        e(f"v_lshlrev_b32 v{a+2}, 16, v{T+1}")
        e(f"v_and_b32 v{a+3}, 0xffff0000, v{T+1}")
        e(f"v_lshlrev_b32 v{T}, 16, v{G+2*q}")
        e(f"v_and_b32 v{T+1}, 0xffff0000, v{G+2*q}")
        e(f"v_lshlrev_b32 v{T+2}, 16, v{G+2*q+1}")
        e(f"v_and_b32 v{T+3}, 0xffff0000, v{G+2*q+1}")
        for k in range(4):
            e(f"v_mul_f32 v{a+k}, v{a+k}, v{T+k}")
        e(f"v_cvt_pk_bf16_f32 v{T}, v{a}, v{a+1}")
        e(f"v_cvt_pk_bf16_f32 v{T+1}, v{a+2}, v{a+3}")
        e(f"v_lshlrev_b32 v{a}, 16, v{T}")
        e(f"v_and_b32 v{a+1}, 0xffff0000, v{T}")
        e(f"v_lshlrev_b32 v{a+2}, 16, v{T+1}")
        e(f"v_and_b32 v{a+3}, 0xffff0000, v{T+1}")
        e(f"v_lshlrev_b32 v{T}, 16, v{XR+2*q}")
        e(f"v_and_b32 v{T+1}, 0xffff0000, v{XR+2*q}")
        e(f"v_lshlrev_b32 v{T+2}, 16, v{XR+2*q+1}")
        e(f"v_and_b32 v{T+3}, 0xffff0000, v{XR+2*q+1}")
        for k in range(4):
            e(f"v_add_f32 v{a+k}, v{a+k}, v{T+k}")
        e(f"v_cvt_pk_bf16_f32 v{a}, v{a}, v{a+1}")
        e(f"v_cvt_pk_bf16_f32 v{a+1}, v{a+2}, v{a+3}")
        e(f"buffer_store_dwordx2 {vr(a,2)}, v{vXO}, {sr(sOUT,4)}, s{sOFF} offen offset:{16*q}")

def gen_k3(e, name):
    kernel_begin(e, name)
    Lend = "L_k3_end"
    sWS, sW, sRP, sCG, sX, sOUT = 44, 48, 49, 50, 28, 32
    sA, sB, sT, sOFF = 52, 53, 54, 55
    vL, vL16, vT0, vXO = 1, 2, 3, 4
    ACC, G, XR, T, FR = 8, 24, 32, 40, 44
    NST = 16
    std_prologue(e, Lend, sW, sRP, sCG, sWS, vL, vL16, vT0,
                 extra_loads="s_load_dwordx2 s[4:5], s[0:1], 0\ns_load_dwordx2 s[20:21], s[0:1], 64")
    srd(e, sX, 4, 2048*1024)
    srd(e, sOUT, 20, 2048*1024)
    e(f"s_lshr_b32 s{sT}, s{sW}, 1")
    e(f"s_lshl_b32 s{sA}, s{sCG}, 1")
    e(f"s_add_u32 s{sA}, s{sA}, s{sT}")
    e(f"s_lshl_b32 s{sOFF}, s{sA}, 6")
    e(f"s_lshl_b32 s{sA}, s{sA}, 15")
    e(f"s_add_u32 s{sA}, s{sA}, {WOF}")
    e(f"s_and_b32 s{sT}, s{sW}, 1")
    e(f"s_lshl_b32 s{sB}, s{sRP}, 1")
    e(f"s_add_u32 s{sB}, s{sB}, s{sT}")
    e(f"s_lshl_b32 s{sB}, s{sB}, 15")
    e(f"s_add_u32 s{sOFF}, s{sOFF}, s{sB}")
    e(f"s_add_u32 s{sB}, s{sB}, {OF}")
    def loads(k):
        st = k % NST
        if k % 4 == 0 and k > 0:
            e(f"s_add_u32 s{sA}, s{sA}, 4096")
            e(f"s_add_u32 s{sB}, s{sB}, 4096")
        e(f"buffer_load_dwordx4 {vr(FR+8*st,4)}, v{vL16}, {sr(sWS,4)}, s{sA} offen offset:{(k%4)*1024}")
        e(f"buffer_load_dwordx4 {vr(FR+8*st+4,4)}, v{vL16}, {sr(sWS,4)}, s{sB} offen offset:{(k%4)*1024}")
    e(f"s_lshl_b32 s{sT}, s{sRP}, 3")
    e(f"s_add_u32 s{sT}, s{sT}, s{sCG}")
    e(f"s_lshl_b32 s{sT}, s{sT}, 2")
    e(f"s_add_u32 s{sT}, s{sT}, s{sW}")
    e(f"s_lshl_b32 s{sT}, s{sT}, 11")
    e(f"s_add_u32 s{sT}, s{sT}, {GF}")
    e(f"v_and_b32 v{vXO}, 31, v{vL}")
    e(f"v_lshlrev_b32 v{vXO}, 10, v{vXO}")
    e(f"v_lshrrev_b32 v{vT0}, 5, v{vL}")
    e(f"v_lshl_add_u32 v{vXO}, v{vT0}, 3, v{vXO}")
    e(f"buffer_load_dwordx4 {vr(G,4)}, v{vL16}, {sr(sWS,4)}, s{sT} offen")
    e(f"buffer_load_dwordx4 {vr(G+4,4)}, v{vL16}, {sr(sWS,4)}, s{sT} offen offset:1024")
    for q in range(4):
        e(f"buffer_load_dwordx2 {vr(XR+2*q,2)}, v{vXO}, {sr(sX,4)}, s{sOFF} offen offset:{16*q}")
    for k in range(NST):
        loads(k)
    for k in range(32):
        st = k % NST
        e(f"s_waitcnt vmcnt({2*min(31-k, NST-1)})")
        c = "0" if k == 0 else vr(ACC,16)
        e(f"{MFMA} {vr(ACC,16)}, {vr(FR+8*st,4)}, {vr(FR+8*st+4,4)}, {c}")
        if k + NST < 32:
            loads(k + NST)
    e("s_nop 15")
    final_epilogue(e, ACC, G, XR, T, vXO, sOUT, sOFF)
    e(f"{Lend}:")
    e("s_endpgm")
    return FR + 8*NST

K2_LDS = 131072
BOUND_MAX = 48.0
def attn_body(e, sW, sRP, sCG, sWS, vL, vL16, S, Lend):
    sT0, sT1, sCNT, sRT, sHEAD = S[:5]
    sMASK = 58
    vT0, vT1, vKA, vVA, vM = 3, 4, 5, 6, 7
    Q, KR, VR = 8, 12, 16
    S0, S1, O, C = 24, 40, 56, 72
    NV = 88
    e(f"s_lshr_b32 s{sRT}, s{sW}, 2")
    e(f"s_lshl_b32 s{sT0}, s{sRP}, 1")
    e(f"s_add_u32 s{sRT}, s{sRT}, s{sT0}")
    e(f"s_and_b32 s{sHEAD}, s{sW}, 3")
    e(f"s_lshl_b32 s{sT0}, s{sCG}, 2")
    e(f"s_add_u32 s{sHEAD}, s{sHEAD}, s{sT0}")
    e(f"s_lshl_b32 s{sT0}, s{sHEAD}, 6")
    e(f"s_add_u32 s{sT0}, s{sT0}, s{sRT}")
    e(f"s_lshl_b32 s{sT0}, s{sT0}, 10")
    e(f"s_add_u32 s{sT0}, s{sT0}, {QF}")
    e(f"buffer_load_dwordx4 {vr(Q,4)}, v{vL16}, {sr(sWS,4)}, s{sT0} offen")
    e(f"v_lshlrev_b32 v{vT0}, 2, v{vL}")
    e(f"s_mov_b32 s{sT1}, {KMAX}")
    e(f"buffer_load_dword v{vM}, v{vT0}, {sr(sWS,4)}, s{sT1} offen")
    e(f"s_lshl_b32 s{sT0}, s{sW}, 10")
    e(f"s_mov_b32 m0, s{sT0}")
    e(f"s_add_u32 s{sT0}, s{sT0}, {KF}")
    for c in range(8):
        e(f"buffer_load_dwordx4 v{vL16}, {sr(sWS,4)}, s{sT0} offen lds")
        e(f"s_add_u32 m0, m0, 65536")
        e(f"s_add_u32 s{sT1}, s{sT0}, 65536")
        e(f"buffer_load_dwordx4 v{vL16}, {sr(sWS,4)}, s{sT1} offen lds")
        if c < 7:
            e(f"s_sub_u32 m0, m0, {65536-8192}")
            e(f"s_add_u32 s{sT0}, s{sT0}, 8192")
    e(f"v_and_b32 v{vT0}, 27, v{vL}")
    e(f"v_cmp_eq_u32 vcc, 16, v{vT0}")
    e(f"v_mov_b32 v{vT1}, 0x3f803f80")
    e(f"v_mov_b32 v{vKA}, v{vL16}")
    e(f"v_cndmask_b32 v{VR}, 0, v{vT1}, vcc")
    for i in range(1, 8):
        e(f"v_mov_b32 v{VR+i}, v{VR}")
    for i in range(16):
        e(f"v_mov_b32 v{O+i}, 0")
    for i in range(8):
        e(f"v_mov_b32 v{S1+i}, 0")
    e(f"v_and_b32 v{vVA}, 15, v{vL}")
    e(f"v_lshlrev_b32 v{vVA}, 4, v{vVA}")
    e(f"v_lshrrev_b32 v{vT0}, 5, v{vL}")
    e(f"v_lshl_add_u32 v{vVA}, v{vT0}, 8, v{vVA}")
    e(f"v_add_u32 v{vVA}, 0x10000, v{vVA}")
    e(f"s_mov_b32 s{sMASK}, 0xffff")
    e(f"s_mov_b32 s{sMASK+1}, 0xffff")
    e("s_waitcnt vmcnt(16)")
    wave_max(e, vM, vT0)
    e(f"v_mov_b32 v{vT0}, 0")
    for i in range(4):
        e(f"v_dot2_f32_bf16 v{vT0}, v{Q+i}, v{Q+i}, v{vT0}")
    e("s_nop 2")
    e(f"v_mov_b32 v{vT1}, v{vT0}")
    e("s_nop 1")
    e(f"v_permlane32_swap_b32 v{vT0}, v{vT1}")
    e("s_nop 1")
    e(f"v_add_f32 v{vT0}, v{vT0}, v{vT1}")
    e(f"v_mul_f32 v{vT0}, v{vT0}, v{vM}")
    e(f"v_sqrt_f32 v{vT0}, v{vT0}")
    e("s_nop 0")
    e(f"v_mul_f32 v{vT0}, {f32bits(-1.015625):#x}, v{vT0}")
    for i in range(16):
        e(f"v_mov_b32 v{C+i}, v{vT0}")
    e(f"v_cmp_nle_f32 vcc, {f32bits(-BOUND_MAX):#x}, v{vT0}")
    e("s_waitcnt vmcnt(0)")
    e("s_barrier")
    Lslow, Lfin = e.label("slow"), e.label("fin")
    e(f"s_cbranch_vccnz {Lslow}")
    e(f"ds_read_b128 {vr(KR,4)}, v{vKA}")
    e("s_waitcnt lgkmcnt(0)")
    e(f"{MFMA} {vr(S0,16)}, {vr(KR,4)}, {vr(Q,4)}, {vr(C,16)}")
    e(f"ds_read_b128 {vr(KR,4)}, v{vKA} offset:1024")
    e(f"s_mov_b32 s{sCNT}, 8")
    e("s_nop 11")
    Lloop = e.label("aloop")
    e(".p2align 6")
    e(f"{Lloop}:")
    U = 8
    for t in range(U):
        a = S0 if (t & 1) == 0 else S1
        b = S1 if (t & 1) == 0 else S0
        ex = [f"v_exp_f32 v{a+i}, v{a+i}" for i in range(16)]
        pk = [f"v_cvt_pk_bf16_f32 v{a+i}, v{a+2*i}, v{a+2*i+1}" for i in range(8)]
        pv0 = f"{MFMA} {vr(O,16)}, {vr(VR,4)}, {vr(b,4)}, {vr(O,16)}"
        pv1 = f"{MFMA} {vr(O,16)}, {vr(VR+4,4)}, {vr(b+4,4)}, {vr(O,16)}"
        qk = f"{MFMA} {vr(b,16)}, {vr(KR,4)}, {vr(Q,4)}, {vr(C,16)}"
        rd = [f"ds_read_b128 {vr(KR,4)}, v{vKA} offset:{(t+2)*1024}",
              f"s_mov_b64 exec, {sr(sMASK,2)}",
              f"ds_read_b128 {vr(VR,4)}, v{vVA} offset:{t*1024}",
              f"ds_read_b128 {vr(VR+4,4)}, v{vVA} offset:{t*1024+512}",
              "s_mov_b64 exec, -1"]
        seq = ["s_waitcnt lgkmcnt(0)", pv0] + ex[0:4] + [pk[0]] + ex[4:5]
        seq += [pv1] + ex[5:6] + [pk[1]] + ex[6:8] + [pk[2]] + ex[8:9]
        seq += [qk] + rd + ex[9:10] + [pk[3]] + ex[10:12] + [pk[4]] + ex[12:14] + [pk[5]] + ex[14:16] + [pk[6]]
        if t == U - 1:
            seq += [f"v_add_u32 v{vKA}, {U*1024}, v{vKA}", pk[7], f"v_add_u32 v{vVA}, {U*1024}, v{vVA}"]
        else:
            seq += ["s_nop 0", pk[7]]
        for s in seq: e(s)
    e(f"s_sub_u32 s{sCNT}, s{sCNT}, 1")
    e(f"s_cmp_lg_u32 s{sCNT}, 0")
    e(f"s_cbranch_scc1 {Lloop}")
    e("s_waitcnt lgkmcnt(0)")
    e(f"{MFMA} {vr(O,16)}, {vr(VR,4)}, {vr(S1,4)}, {vr(O,16)}")
    e(f"{MFMA} {vr(O,16)}, {vr(VR+4,4)}, {vr(S1+4,4)}, {vr(O,16)}")
    e(f"s_branch {Lfin}")
    e(f"{Lslow}:")
    e(f"v_mov_b32 v{vM}, 0xff800000")
    e(f"s_mov_b32 s{sCNT}, 64")
    Ls = e.label("sloop")
    e(f"{Ls}:")
    e(f"ds_read_b128 {vr(KR,4)}, v{vKA}")
    e(f"s_mov_b64 exec, {sr(sMASK,2)}")
    e(f"ds_read_b128 {vr(VR,4)}, v{vVA}")
    e(f"ds_read_b128 {vr(VR+4,4)}, v{vVA} offset:512")
    e("s_mov_b64 exec, -1")
    e("s_waitcnt lgkmcnt(0)")
    e(f"{MFMA} {vr(S0,16)}, {vr(KR,4)}, {vr(Q,4)}, 0")
    e(f"v_add_u32 v{vKA}, 1024, v{vKA}")
    e(f"v_add_u32 v{vVA}, 1024, v{vVA}")
    e("s_nop 15")
    e(f"v_max3_f32 v{vT0}, v{S0}, v{S0+1}, v{vM}")
    for i in range(2, 16, 2):
        e(f"v_max3_f32 v{vT0}, v{S0+i}, v{S0+i+1}, v{vT0}")
    e(f"v_mov_b32 v{vT1}, v{vT0}")
    e("s_nop 1")
    e(f"v_permlane32_swap_b32 v{vT0}, v{vT1}")
    e("s_nop 1")
    e(f"v_max_f32 v{vT0}, v{vT0}, v{vT1}")
    e(f"v_sub_f32 v{vT1}, v{vM}, v{vT0}")
    e(f"v_exp_f32 v{vT1}, v{vT1}")
    e(f"v_mov_b32 v{vM}, v{vT0}")
    for i in range(9):
        e(f"v_mul_f32 v{O+i}, v{O+i}, v{vT1}")
    for i in range(16):
        e(f"v_sub_f32 v{S0+i}, v{S0+i}, v{vM}")
    for i in range(16):
        e(f"v_exp_f32 v{S0+i}, v{S0+i}")
    e("s_nop 0")
    for i in range(8):
        e(f"v_cvt_pk_bf16_f32 v{S0+i}, v{S0+2*i}, v{S0+2*i+1}")
    e("s_nop 1")
    e(f"{MFMA} {vr(O,16)}, {vr(VR,4)}, {vr(S0,4)}, {vr(O,16)}")
    e(f"{MFMA} {vr(O,16)}, {vr(VR+4,4)}, {vr(S0+4,4)}, {vr(O,16)}")
    e(f"s_sub_u32 s{sCNT}, s{sCNT}, 1")
    e(f"s_cmp_lg_u32 s{sCNT}, 0")
    e(f"s_cbranch_scc1 {Ls}")
    e(f"{Lfin}:")
    e(f"s_lshl_b32 s{sT0}, s{sRT}, 5")
    e(f"s_add_u32 s{sT0}, s{sT0}, s{sHEAD}")
    e(f"s_lshl_b32 s{sT0}, s{sT0}, 10")
    e(f"s_add_u32 s{sT0}, s{sT0}, {OF}")
    e("s_nop 15")
    e(f"v_rcp_f32 v{vT0}, v{O+8}")
    e("s_nop 0")
    for i in range(8):
        e(f"v_mul_f32 v{O+i}, v{O+i}, v{vT0}")
    for i in range(4):
        e(f"v_cvt_pk_bf16_f32 v{O+i}, v{O+2*i}, v{O+2*i+1}")
    e(f"buffer_store_dwordx4 {vr(O,4)}, v{vL16}, {sr(sWS,4)}, s{sT0} offen")
    return NV

def gen_k2(e, name):
    kernel_begin(e, name)
    Lend = "L_k2_end"
    sWS, sW, sRP, sCG = 44, 48, 49, 50
    std_prologue(e, Lend, sW, sRP, sCG, sWS, 1, 2, 3)
    nv = attn_body(e, sW, sRP, sCG, sWS, 1, 2, [52,53,54,55,56], Lend)
    e(f"{Lend}:")
    e("s_endpgm")
    return nv
```

```python
import sys
from common import *
import k1, k2
from gen_v1 import build
def gen_empty(e, name):
    kernel_begin(e, name)
    e("s_endpgm")
    return 8
n = int(sys.argv[1])
L = [("prep_kernel", k1.gen_k1, 256, 512, k1.K1_LDS),
           ("ffn1_kernel", k2.gen_k2a, 256, 256, 0),
           ("ffn2_kernel", k2.gen_k2b, 256, 256, 65536),
           ("attn_kernel", k2.gen_k2, 256, 512, k2.K2_LDS),
           ("final_kernel", k2.gen_k3, 256, 256, 0)]
L += [("empty_kernel", gen_empty, 256, 256, 0)] * n
build(L, sys.argv[2])
```

```python
NAME = "recurrent_scan__grouped_kv_mqa__dense_activation_relu__prompt"

XN   = 0x000000
QF   = 0x200000
KF   = 0x400000
VF   = 0x410000
KMAX = 0x420000
FLAGS= 0x421000
W1F  = 0x500000
W2F  = 0x700000
WOF  = 0x900000
HF   = 0xA00000
OF   = 0x1100000
GF   = 0x1300000
WS_BYTES = 0x2000000

class Asm:
    def __init__(self):
        self.lines = []
        self.uid = 0
    def __call__(self, s):
        for l in s.strip("\n").split("\n"):
            l = l.strip()
            if not l: continue
            if l.endswith(":") or l.startswith("."):
                self.lines.append(l)
            else:
                self.lines.append("    " + l)
    def label(self, base):
        self.uid += 1
        return f"L_{base}_{self.uid}"
    def text(self):
        return "\n".join(self.lines) + "\n"

def vr(a, n):
    return f"v[{a}:{a+n-1}]" if n > 1 else f"v{a}"
def sr(a, n):
    return f"s[{a}:{a+n-1}]" if n > 1 else f"s{a}"

def srd(e, d, base, nbytes):
    e(f"s_mov_b32 s{d}, s{base}")
    e(f"s_mov_b32 s{d+1}, s{base+1}")
    e(f"s_mov_b32 s{d+2}, {nbytes:#x}")
    e(f"s_mov_b32 s{d+3}, 0x20000")

def kernel_begin(e, name):
    e(f".globl {name}")
    e(".p2align 8")
    e(f".type {name},@function")
    e(f"{name}:")

def descriptor(name, nv, ns=100):
    acc = (nv + 3) // 4 * 4
    return f""".p2align 6
.amdhsa_kernel {name}
  .amdhsa_next_free_vgpr {nv}
  .amdhsa_next_free_sgpr {ns}
  .amdhsa_accum_offset {acc}
  .amdhsa_group_segment_fixed_size 0
  .amdhsa_kernarg_size 88
  .amdhsa_user_sgpr_count 2
  .amdhsa_user_sgpr_kernarg_segment_ptr 1
  .amdhsa_system_sgpr_workgroup_id_x 1
  .amdhsa_float_denorm_mode_32 3
  .amdhsa_float_denorm_mode_16_64 3
.end_amdhsa_kernel
"""
MFMA = "v_mfma_f32_32x32x16_bf16"

STAMP = False
STAMP_OFF = 0x1700000
S_ST = 67
class Stamps:
    def __init__(self, e, kid):
        self.e = e; self.n = 0; self.kid = kid
    def mark(self, real=False):
        if not STAMP: return
        e = self.e
        e(f"s_mem{'real' if real else ''}time s[96:97]")
        e("s_waitcnt lgkmcnt(0)")
        e(f"s_mov_b32 s{S_ST+self.n}, s96")
        self.n += 1
    def flush(self, sW, sWS, vt0, vt1, nw, n=None):
        if not STAMP: return
        e = self.e
        n = n or self.n
        e("s_mov_b64 exec, 1")
        e(f"s_lshl_b32 s96, s2, 4")
        e(f"s_add_u32 s96, s96, s{sW}")
        e(f"s_lshl_b32 s96, s96, 6")
        e(f"s_add_u32 s96, s96, {STAMP_OFF + self.kid*0x40000}")
        e(f"v_mov_b32 v{vt1}, 0")
        for i in range(n):
            e(f"v_mov_b32 v{vt0}, s{S_ST+i}")
            e(f"buffer_store_dword v{vt0}, v{vt1}, {sr(sWS,4)}, s96 offen offset:{4*i}")
        e("s_mov_b64 exec, -1")

def STAMPON(): return STAMP
```

```python
import sys
from common import *
import common
import struct
def f32bits(x): return struct.unpack("<I", struct.pack("<f", x))[0]
LOG2E = 1.4426950408889634
QSCALE = 0.25 * LOG2E
BOUND2 = 40.0 * 40.0
M16 = "v_mfma_f32_16x16x32_bf16"

KF   = 0x000000
VF   = 0x010000
KMAX = 0x020000
EPOCH = 0x021000
KVFL = 0x028000
HFL  = 0x040000
OFL  = 0x080000
HF   = 0x100000
OF   = 0x800000
XS2, XS1, XRT = 528, 1056, 33792
L_XN  = 0
L_WQ  = 67584
L_R   = L_WQ + 65536
OSL   = 4608
L_OA  = L_WQ + 49152
RINGB = 12288
L_Q   = L_R + 20480
L_C   = L_Q + 8192
C_KVX, C_QRDY, C_QMAX, C_REDO, C_ADONE, C_G1, C_RED, C_WO, C_S1, C_S2, C_Z, C_KVD, C_KVL, C_TICK, C_S0 = [4*i for i in range(15)]
C_NON = 64
assert L_OA + 8*OSL == L_Q
L_RM  = L_C + 256
LDS_BYTES = L_RM + 1024
assert LDS_BYTES <= 163840
SPIN_MAX = 1 << 18
import os
OPT = dict(kv.split("=") for kv in os.environ.get("FOPT", "").split(",") if kv)
FPRIO = int(OPT.get("fprio", 1))
BOOST = int(OPT.get("boost", 1))
KVD_ACK = int(OPT.get("kvdack", 1))
PF1 = int(OPT.get("pf1", 0))
ABL = OPT.get("abl", "")
GROUP = int(OPT.get("group", 0))

sX, sWS, sWA, sOUT, sDBG = 28, 32, 36, 40, 44
sW, sRP, sCG, sT0, sT1, sT2, sT3, sCNT, sF = 48, 49, 50, 51, 52, 53, 54, 55, 56
sONES = 57
sNON = 58
sMASK = 60
sLN = 62
sSP = 3
vL, vL16, vT0, vT1, vT2, vCT = 1, 2, 3, 4, 5, 6
vDA, vDB = 7, 8

def decode_ids(e):
    e(f"s_and_b32 s{sRP}, s2, 7")
    e(f"s_lshl_b32 s{sRP}, s{sRP}, 2")
    e(f"s_lshr_b32 s{sCG}, s2, 6")
    e(f"s_add_u32 s{sRP}, s{sRP}, s{sCG}")
    e(f"s_lshr_b32 s{sCG}, s2, 3")
    e(f"s_and_b32 s{sCG}, s{sCG}, 7")

def lds_signal(e, off, vtmp):
    e("s_waitcnt lgkmcnt(0)")
    e(f"v_mov_b32 v{vtmp}, 1")
    e("s_mov_b64 exec, 1")
    e(f"ds_add_u32 v{vCT}, v{vtmp} offset:{off}")
    e("s_mov_b64 exec, -1")

def lds_wait(e, off, n, vtmp, sleep=1, vaddr=None):
    L, D = e.label("lw"), e.label("lwd")
    vaddr = vCT if vaddr is None else vaddr
    e(f"s_mov_b32 s{sSP}, {SPIN_MAX*8}")
    e(f"{L}:")
    e(f"ds_read_b32 v{vtmp}, v{vaddr} offset:{off}")
    e(f"s_sub_u32 s{sSP}, s{sSP}, 1")
    e("s_waitcnt lgkmcnt(0)")
    e(f"v_cmp_gt_u32 vcc, {n}, v{vtmp}")
    e(f"s_cbranch_vccz {D}")
    e(f"s_sleep {sleep}")
    e(f"s_cbranch_scc0 {L}")
    e(f"{D}:")

def fetch_nonce(e, vt):
    e(f"ds_read_b64 {vr(vt,2)}, v{vCT} offset:{C_NON}")
    e("s_waitcnt lgkmcnt(0)")
    e(f"v_readfirstlane_b32 s{sNON}, v{vt}")
    e(f"v_readfirstlane_b32 s{sNON+1}, v{vt+1}")

def flag_poll(e, vt, voff, soff, sleep=1):
    L, D = e.label("fp"), e.label("fpd")
    e(f"s_mov_b32 s{sSP}, {SPIN_MAX}")
    e(f"{L}:")
    e(f"buffer_load_dwordx2 {vr(vt,2)}, v{voff}, {sr(sWS,4)}, s{soff} offen sc1")
    e(f"s_sub_u32 s{sSP}, s{sSP}, 1")
    e("s_waitcnt vmcnt(0)")
    e(f"v_cmp_ne_u64 vcc, {sr(sNON,2)}, {vr(vt,2)}")
    e(f"s_cbranch_vccz {D}")
    e(f"s_sleep {sleep}")
    e(f"s_cbranch_scc0 {L}")
    e(f"{D}:")

def flag_set(e, vt, soff):
    e(f"v_mov_b32 v{vt}, s{sNON}")
    e(f"v_mov_b32 v{vt+1}, s{sNON+1}")
    e(f"v_mov_b32 v{vt+2}, 0")
    e("s_waitcnt vmcnt(0)")
    e("s_mov_b64 exec, 1")
    e(f"buffer_store_dwordx2 {vr(vt,2)}, v{vt+2}, {sr(sWS,4)}, s{soff} offen sc1")
    e("s_mov_b64 exec, -1")

def set_srd(e, d, base, nbytes):
    srd(e, d, base, nbytes)

def layernorm_rows(e, n, X, T, srow, vm_after):
    S1, S2 = T, T + n
    for j in range(n):
        e(f"s_waitcnt vmcnt({vm_after + n - 1 - j})")
        x = X + 4*j
        e(f"v_dot2_f32_bf16 v{S1+j}, v{x}, s{sONES}, 0")
        e(f"v_dot2_f32_bf16 v{S2+j}, v{x}, v{x}, 0")
        for i in range(1, 4):
            e(f"v_dot2_f32_bf16 v{S1+j}, v{x+i}, s{sONES}, v{S1+j}")
            e(f"v_dot2_f32_bf16 v{S2+j}, v{x+i}, v{x+i}, v{S2+j}")
    e("s_nop 2")
    A = T + 2*n
    p32 = [(0, 2), (1, 3)] + ([(4, 5)] if n == 6 else [])
    for base in (S1, S2):
        for (a, b) in p32:
            e(f"v_permlane32_swap_b32 v{base+a}, v{base+b}")
    for base in (S1, S2):
        for (a, b) in p32:
            e(f"v_add_f32 v{base+a}, v{base+a}, v{base+b}")
    if n == 6:
        e(f"v_mov_b32 v{S1+5}, v{S1+4}")
        e(f"v_mov_b32 v{S2+5}, v{S2+4}")
    e("s_nop 1")
    p16 = [(0, 1)] + ([(4, 5)] if n == 6 else [])
    for base in (S1, S2):
        for (a, b) in p16:
            e(f"v_permlane16_swap_b32 v{base+a}, v{base+b}")
    e("s_nop 0")
    for base in (S1, S2):
        for (a, b) in p16:
            e(f"v_add_f32 v{base+a}, v{base+a}, v{base+b}")
    G = [0] + ([4] if n == 6 else [])
    for rot in (8, 4, 2, 1):
        e("s_nop 1" if len(G) == 1 else "s_nop 0")
        for g in G:
            for base in (S1, S2):
                e(f"v_add_f32_dpp v{base+g}, v{base+g}, v{base+g} row_ror:{rot} row_mask:0xf bank_mask:0xf")
    def each(fmt):
        for gi, g in enumerate(G):
            e(fmt.format(m=S1+g, v=S2+g, t=A+gi))
    each(f"v_mul_f32 v{{m}}, {f32bits(1/512):#x}, v{{m}}")
    each(f"v_mul_f32 v{{v}}, {f32bits(1/512):#x}, v{{v}}")
    each("v_fma_f32 v{v}, -v{m}, v{m}, v{v}")
    each("v_max_f32 v{v}, 0, v{v}")
    each("v_cvt_pk_bf16_f32 v{t}, v{m}, v{v}")
    each("v_lshlrev_b32 v{m}, 16, v{t}")
    each("v_and_b32 v{v}, 0xffff0000, v{t}")
    each(f"v_add_f32 v{{v}}, {f32bits(1e-5):#x}, v{{v}}")
    each("v_cvt_pk_bf16_f32 v{v}, v{v}, v{v}")
    each("v_lshlrev_b32 v{v}, 16, v{v}")
    each("v_sqrt_f32 v{v}, v{v}")
    e("s_nop 0")
    each("v_cvt_pk_bf16_f32 v{v}, v{v}, v{v}")
    each("v_lshlrev_b32 v{v}, 16, v{v}")
    each("v_rcp_f32 v{v}, v{v}")
    e("s_nop 0")
    each("v_mul_f32 v{m}, -v{m}, v{v}")
    e("s_nop 0")
    lane_of = [0, 16, 32, 48, 0, 32]
    grp_of = [0, 0, 0, 0, 4, 4]
    vA = A + 2
    e(f"v_mul_u32_u24 v{vA}, {XS2}, v{vL}")
    P0, P1, CC, AD = A + 4, A + 6, A + 8, A + 3
    assert P0 % 2 == 0
    for j in range(n):
        sR = sLN + 2*(j & 1)
        e(f"v_readlane_b32 s{sR}, v{S2+grp_of[j]}, {lane_of[j]}")
        e(f"v_readlane_b32 s{sLN+4}, v{S1+grp_of[j]}, {lane_of[j]}")
        e(f"v_add_u32 v{AD}, s{srow[j]}, v{vA}")
        x = X + 4*j
        e(f"v_lshlrev_b32 v{P0}, 16, v{x}")
        e(f"v_mov_b32 v{CC}, s{sLN+4}")
        e(f"v_and_b32 v{P0+1}, 0xffff0000, v{x}")
        for i in range(4):
            P = P0 if (i & 1) == 0 else P1
            Pn = P1 if (i & 1) == 0 else P0
            if i < 3:
                e(f"v_lshlrev_b32 v{Pn}, 16, v{x+i+1}")
                e(f"v_and_b32 v{Pn+1}, 0xffff0000, v{x+i+1}")
            e(f"v_pk_fma_f32 {vr(P,2)}, {vr(P,2)}, {sr(sR,2)}, {vr(CC,2)} op_sel_hi:[1,0,0]")
            e(f"v_cvt_pk_bf16_f32 v{x+i}, v{P}, v{P+1}")
        e(f"ds_write_b128 v{AD}, {vr(x,4)}")

def tr_common(e, vd, t0, t1):
    e(f"v_and_b32 v{t0}, 12, v{vL}")
    e(f"v_lshlrev_b32 v{vd}, 5, v{t0}")
    e(f"v_lshrrev_b32 v{t0}, 3, v{vL}")
    e(f"v_and_b32 v{t0}, 2, v{t0}")
    e(f"v_bfe_u32 v{t1}, v{vL}, 1, 1")
    e(f"v_or_b32 v{t0}, v{t0}, v{t1}")
    e(f"v_lshrrev_b32 v{t1}, 1, v{vL}")
    e(f"v_and_b32 v{t1}, 4, v{t1}")
    e(f"v_xor_b32 v{t0}, v{t0}, v{t1}")
    e(f"v_lshl_add_u32 v{vd}, v{t0}, 4, v{vd}")
    e(f"v_and_b32 v{t0}, 1, v{vL}")
    e(f"v_lshl_add_u32 v{vd}, v{t0}, 3, v{vd}")

def dpp_max16(e, v):
    for ctl in ("row_ror:8", "row_ror:4", "row_ror:2", "row_ror:1"):
        e("s_nop 1")
        e(f"v_max_f32_dpp v{v}, v{v}, v{v} {ctl} row_mask:0xf bank_mask:0xf")

def swap_op(e, op, kind, v, t):
    e(f"v_mov_b32 v{t}, v{v}")
    e("s_nop 1")
    e(f"v_permlane{kind}_swap_b32 v{v}, v{t}")
    e("s_nop 0")
    e(f"{op} v{v}, v{v}, v{t}")


OCNT = 4096 + 256
def stage_w512(e, base_sreg, lbase, sIDX, nparts, sSO):
    rows = 512 // nparts
    set_srd(e, sWA, base_sreg, 512*512*2)
    e(f"s_mul_i32 s{sSO}, s{sIDX}, {rows*1024}")
    e(f"s_lshl_b32 s{sT0}, s{sCG}, 7")
    e(f"s_add_u32 s{sSO}, s{sSO}, s{sT0}")
    e(f"s_mul_i32 s{sT0}, s{sIDX}, {rows*128}")
    for i in range(rows // 16):
        e(f"s_add_u32 m0, s{sT0}, {lbase + 2048*i}")
        if i: e(f"s_add_u32 s{sSO}, s{sSO}, 16384")
        else: e("s_nop 0")
        e(f"buffer_load_dwordx4 v{vDA}, {sr(sWA,4)}, s{sSO} offen lds")
        e(f"buffer_load_dwordx4 v{vDB}, {sr(sWA,4)}, s{sSO} offen offset:1024 lds")

A_Q, A_KR, A_VR, A_S0, A_S1, A_O = 12, 16, 48, 112, 128, 144
vOA, vQA, vVO = 7, 8, 9
vONE = 9
def a_flush(e):
    O = A_O
    dst = {8: O+10, 7: O+12, 6: O+14, 5: O+8, 4: O+6, 3: O+4, 2: 10, 1: O+2, 0: O}
    prev = None
    for r in range(8, -1, -1):
        e(f"v_cvt_f64_f32 {vr(dst[r],2)}, v{O+r}")
        if prev is not None and prev != 8:
            e(f"ds_add_f64 v{vOA}, {vr(dst[prev],2)} offset:{512*prev}")
        prev = r
    e(f"ds_add_f64 v{vOA}, {vr(dst[0],2)}")
    e("s_mov_b32 exec_hi, 0")
    e(f"ds_add_f64 v{vOA}, {vr(dst[8],2)} offset:4096")
    e("s_mov_b32 exec_lo, 1")
    e(f"ds_add_u32 v{vOA}, v{vONE} offset:{OCNT}")
    e("s_mov_b64 exec, -1")

def attention_role(e, st):
    Q, KR, VR, S0, S1, O = A_Q, A_KR, A_VR, A_S0, A_S1, A_O
    X, T = 112, 136
    e("L_attn:")
    e(f"s_lshr_b32 s{sT3}, s{sCG}, 1")
    e(f"s_lshl_b32 s{sT3}, s{sT3}, 4")
    e(f"s_mul_i32 s{sT2}, s{sW}, 6")
    e(f"s_add_u32 s{sT2}, s{sT2}, s{sT3}")
    e(f"s_lshl_b32 s{sT1}, s{sRP}, 16")
    rows = [84, 85, 86, 87, 88, 89]
    for j in range(6):
        r = rows[j]
        e(f"s_add_u32 s{r}, s{sT2}, {16+j}")
        e(f"s_and_b32 s{r}, s{r}, 63")
        e(f"s_lshl_b32 s{sT0}, s{r}, 10")
        e(f"s_add_u32 s{sT0}, s{sT0}, s{sT1}")
        e(f"buffer_load_dwordx4 {vr(X+4*j,4)}, v{vL16}, {sr(sX,4)}, s{sT0} offen")
    stage_w512(e, 6, L_WQ, sW, 8, sT1)
    for j in range(6):
        r = rows[j]
        e(f"s_lshr_b32 s{sT0}, s{r}, 5")
        e(f"s_mul_i32 s{sT0}, s{sT0}, {XRT - 512}")
        e(f"s_lshl_b32 s{r}, s{r}, 4")
        e(f"s_add_u32 s{r}, s{r}, s{sT0}")
    st.mark()
    layernorm_rows(e, 6, X, T, rows, 8)
    e("s_waitcnt vmcnt(0) lgkmcnt(0)")
    st.mark()
    e("s_barrier")
    st.mark()
    fetch_nonce(e, S0)
    e(f"v_and_b32 v{vT0}, 31, v{vL}")
    e(f"v_cmp_eq_u32 vcc, 16, v{vT0}")
    e(f"v_mov_b32 v{vT1}, 0x3f803f80")
    e(f"v_and_b32 v{vVO}, 15, v{vL}")
    e(f"v_cndmask_b32 v{VR}, 0, v{vT1}, vcc")
    e(f"v_cndmask_b32 v{VR+1}, 0, v{vT1}, vcc")
    for i in range(2, 64, 2):
        e(f"v_mov_b64 {vr(VR+i,2)}, {vr(VR,2)}")
    e(f"v_lshlrev_b32 v{vT2}, 2, v{vVO}")
    e(f"v_lshlrev_b32 v{vVO}, 4, v{vVO}")
    e(f"v_lshrrev_b32 v{vT1}, 5, v{vL}")
    e(f"v_lshl_add_u32 v{vVO}, v{vT1}, 8, v{vVO}")
    e(f"v_lshlrev_b32 v{vOA}, 3, v{vL}")
    e(f"v_add_u32 v{vOA}, {L_OA + 8*OSL}, v{vOA}")
    e(f"v_add_u32 v{vQA}, {L_Q}, v{vL16}")
    e(f"v_lshlrev_b32 v{vT0}, 7, v{vT0}")
    e(f"s_lshl_b32 s{sT0}, s{sW}, 12")
    e(f"s_add_u32 s{sT0}, s{sT0}, {KVFL}")
    lds_wait(e, C_KVD, 1, vT1)
    flag_poll(e, S0, vT0, sT0)
    st.mark()
    e(f"s_lshl_b32 s{sT0}, s{sW}, 6")
    e(f"s_add_u32 s{sT0}, s{sT0}, {KMAX}")
    e(f"buffer_load_dword v{vT2}, v{vT2}, {sr(sWS,4)}, s{sT0} offen sc1")
    e(f"s_lshl_b32 s{sT0}, s{sW}, 13")
    e(f"s_add_u32 s{sT1}, s{sT0}, {KF + 4096}")
    e(f"s_add_u32 s{sT2}, s{sT0}, {VF}")
    e(f"s_add_u32 s{sT3}, s{sT0}, {VF + 4096}")
    assert KF == 0
    def ldk(t):
        e(f"buffer_load_dwordx4 {vr(KR+4*t,4)}, v{vL16}, {sr(sWS,4)}, s{sT0 if t < 4 else sT1} offen offset:{(t%4)*1024} sc1")
    def ldv(t):
        e(f"s_mov_b64 exec, {sr(sMASK,2)}")
        for h in range(2):
            e(f"buffer_load_dwordx4 {vr(VR+8*t+4*h,4)}, v{vVO}, {sr(sWS,4)}, s{sT2 if t < 4 else sT3} offen offset:{(t%4)*1024+512*h} sc1")
        e("s_mov_b64 exec, -1")
    ldk(0)
    for t in range(7):
        ldk(t+1); ldv(t)
    ldv(7)
    lds_signal(e, C_KVL, vONE)
    lds_wait(e, C_Z, 4, vT0)
    e(f"ds_read_b32 v{vT1}, v{vCT} offset:{C_QMAX}")
    e(f"ds_read_b128 {vr(Q,4)}, v{vQA}")
    e("s_waitcnt vmcnt(23)")
    dpp_max16(e, vT2)
    e("s_waitcnt lgkmcnt(0)")
    e(f"{MFMA} {vr(S0,16)}, {vr(KR,4)}, {vr(Q,4)}, 0")
    e(f"v_mul_f32 v{vT2}, v{vT2}, v{vT1}")
    e(f"v_cmp_nge_f32 vcc, {f32bits(BOUND2):#x}, v{vT2}")
    Lok = e.label("bok")
    e(f"s_cbranch_vccz {Lok}")
    lds_signal(e, C_REDO, vT0)
    e(f"{Lok}:")
    e(f"s_mov_b32 s{sCNT}, 0")
    e("s_nop 7")
    st.mark()
    Lloop, Lnf = e.label("aloop"), e.label("noflush")
    e(".p2align 6")
    e(f"{Lloop}:")
    for t in range(8):
        a = S0 if (t & 1) == 0 else S1
        b = S1 if (t & 1) == 0 else S0
        tp = (t - 1) % 8
        tn = (t + 1) % 8
        ex = [f"v_exp_f32 v{a+i}, v{a+i}" for i in range(16)]
        pk = [f"v_cvt_pk_bf16_f32 v{a+i}, v{a+2*i}, v{a+2*i+1}" for i in range(8)]
        c0 = "0" if t == 1 else vr(O,16)
        pv0 = f"{MFMA} {vr(O,16)}, {vr(VR+8*tp,4)}, {vr(b,4)}, {c0}"
        pv1 = f"{MFMA} {vr(O,16)}, {vr(VR+8*tp+4,4)}, {vr(b+4,4)}, {vr(O,16)}"
        qk = f"{MFMA} {vr(b,16)}, {vr(KR+4*tn,4)}, {vr(Q,4)}, 0"
        if GROUP:
            pv0 = "\n".join([pv0, pv1, qk]); pv1 = qk = ""
            if BOOST: pv0 = f"s_setprio 3\n{pv0}\ns_setprio 0"
        elif BOOST:
            pv0, pv1, qk = [f"s_setprio 3\n{m}\ns_setprio 0" for m in (pv0, pv1, qk)]
        wait = f"s_waitcnt vmcnt({22-3*t})" if t < 7 else "s_waitcnt vmcnt(0) lgkmcnt(0)"
        seq = [wait, pv0] + ex[0:4] + [pk[0]] + ex[4:5]
        seq += [pv1] + ex[5:6] + [pk[1]] + ex[6:8] + [pk[2]] + ex[8:9]
        seq += [qk]
        if t == 6:
            seq += [f"ds_read_b128 {vr(Q,4)}, v{vQA} offset:1024"]
        seq += ex[9:10] + [pk[3]] + ex[10:12] + [pk[4]] + ex[12:14] + [pk[5]] + ex[14:16] + [pk[6], pk[7]]
        for s in seq: e(s)
        if t == 0:
            e(f"s_cmp_eq_u32 s{sCNT}, 0")
            e(f"s_cbranch_scc1 {Lnf}")
            a_flush(e)
            e(f"{Lnf}:")
            e(f"v_subrev_u32 v{vOA}, {OSL}, v{vOA}")
    e(f"v_add_u32 v{vQA}, 1024, v{vQA}")
    e(f"s_add_u32 s{sCNT}, s{sCNT}, 1")
    e(f"s_cmp_lg_u32 s{sCNT}, 8")
    e(f"s_cbranch_scc1 {Lloop}")
    e(f"{MFMA} {vr(O,16)}, {vr(VR+56,4)}, {vr(S1,4)}, {vr(O,16)}")
    e(f"{MFMA} {vr(O,16)}, {vr(VR+60,4)}, {vr(S1+4,4)}, {vr(O,16)}")
    e(f"v_mov_b32 v{vT2}, {L_OA + 7*OSL}")
    e("s_nop 10")
    a_flush(e)
    lds_signal(e, C_ADONE, vT0)
    st.mark()
    lds_wait(e, OCNT, 8, vT0, vaddr=vT2)
    e(f"ds_read_b32 v{vT0}, v{vCT} offset:{C_REDO}")
    e("s_waitcnt lgkmcnt(0)")
    e(f"v_cmp_ne_u32 vcc, 0, v{vT0}")
    e(f"s_cbranch_vccnz L_slow")
    e("L_afin:")
    e("s_setprio 2")
    e("s_mov_b64 exec, 1")
    e(f"ds_add_rtn_u32 v{vT0}, v{vCT}, v{vONE} offset:{C_TICK}")
    e("s_mov_b64 exec, -1")
    e("s_waitcnt lgkmcnt(0)")
    e(f"v_readfirstlane_b32 s{sCNT}, v{vT0}")
    e(f"v_lshlrev_b32 v{vT1}, 3, v{vL}")
    e(f"v_and_b32 v{vQA}, 0xf8, v{vT1}")
    e(f"s_cmp_ge_u32 s{sCNT}, 8")
    e(f"s_cbranch_scc1 L_aend")
    e(f"s_mul_i32 s{sT0}, s{sCNT}, {OSL}")
    e(f"s_sub_u32 s{sT0}, {L_OA + 7*OSL}, s{sT0}")
    e(f"v_mov_b32 v{vT2}, s{sT0}")
    e(f"v_add_u32 v{vT1}, s{sT0}, v{vT1}")
    e(f"v_add_u32 v{vQA}, s{sT0}, v{vQA}")
    e(f"s_lshl_b32 s{sT0}, s{sRP}, 3")
    e(f"s_and_b32 s{sT1}, s{sCNT}, 1")
    e(f"s_lshl_b32 s{sT1}, s{sT1}, 2")
    e(f"s_add_u32 s{sT0}, s{sT0}, s{sT1}")
    e(f"s_lshr_b32 s{sT1}, s{sCNT}, 1")
    e(f"s_add_u32 s{sT0}, s{sT0}, s{sT1}")
    e(f"s_lshl_b32 s{sT0}, s{sT0}, 3")
    e(f"s_add_u32 s{sT0}, s{sT0}, s{sCG}")
    e(f"s_lshl_b32 s{sT1}, s{sT0}, 10")
    e(f"s_add_u32 s{sT1}, s{sT1}, {OF}")
    e(f"s_lshl_b32 s{sT0}, s{sT0}, 7")
    e(f"s_add_u32 s{sT0}, s{sT0}, {OFL}")
    lds_wait(e, OCNT, 8, vT0, vaddr=vT2, sleep=2)
    F = S1
    e(f"ds_read_b64 {vr(F+16,2)}, v{vQA} offset:4096")
    for r in range(8):
        e(f"ds_read_b64 {vr(F+2*r,2)}, v{vT1} offset:{512*r}")
    e("s_waitcnt lgkmcnt(8)")
    e(f"v_cvt_f32_f64 v{vT0}, {vr(F+16,2)}")
    e(f"v_rcp_f32 v{vT0}, v{vT0}")
    e("s_waitcnt lgkmcnt(0)")
    for i in range(8):
        e(f"v_cvt_f32_f64 v{F+i}, {vr(F+2*i,2)}")
    for i in range(8):
        e(f"v_mul_f32 v{F+i}, v{F+i}, v{vT0}")
    for i in range(4):
        e(f"v_cvt_pk_bf16_f32 v{F+i}, v{F+2*i}, v{F+2*i+1}")
    e(f"buffer_store_dwordx4 {vr(F,4)}, v{vL16}, {sr(sWS,4)}, s{sT1} offen sc1")
    flag_set(e, S0, sT0)
    e("s_branch L_afin")
    e("L_aend:")
    st.mark(); st.mark(True)
    st.flush(sW, sWS, vT0, vT1, 12)
    e("s_endpgm")

def attention_slow(e):
    Q, KR, VR, S0, S1, O = A_Q, A_KR, A_VR, A_S0, A_S1, A_O
    vRM = 0
    e("L_slow:")
    lds_wait(e, C_ADONE, 8, vT0)
    e(f"s_mul_i32 s{sT0}, s{sW}, {OSL}")
    e(f"v_lshlrev_b32 v{vOA}, 3, v{vL}")
    e(f"v_add_u32 v{vOA}, {L_OA + 7*OSL}, v{vOA}")
    e(f"v_subrev_u32 v{vT1}, s{sT0}, v{vOA}")
    e(f"v_mov_b32 v10, 0")
    e(f"v_mov_b32 v11, 0")
    lds_signal(e, C_S0, vT0)
    lds_wait(e, C_S0, 8, vT0)
    for r in range(9):
        e(f"ds_write_b64 v{vT1}, v[10:11] offset:{512*r}")
    e(f"v_and_b32 v{vRM}, 31, v{vL}")
    e(f"v_lshlrev_b32 v{vRM}, 2, v{vRM}")
    e(f"v_add_u32 v{vRM}, {L_RM}, v{vRM}")
    e(f"s_lshl_b32 s{sT0}, s{sW}, 7")
    e(f"v_add_u32 v{vT1}, s{sT0}, v{vRM}")
    e(f"v_mov_b32 v{vT0}, 0xff800000")
    e(f"ds_write_b32 v{vT1}, v{vT0}")
    lds_signal(e, C_S1, vT0)
    lds_wait(e, C_S1, 8, vT0)
    e(f"v_add_u32 v{vQA}, {L_Q}, v{vL16}")
    e(f"v_mov_b32 v{vT2}, v{vRM}")
    e(f"s_mov_b32 s{sCNT}, 8")
    L1 = e.label("sp1")
    e(f"{L1}:")
    e(f"ds_read_b128 {vr(Q,4)}, v{vQA}")
    e(f"v_mov_b32 v{vT0}, 0xff800000")
    e("s_waitcnt lgkmcnt(0)")
    for t in range(8):
        e(f"{MFMA} {vr(S0,16)}, {vr(KR+4*t,4)}, {vr(Q,4)}, 0")
        e("s_nop 11")
        for i in range(0, 16, 2):
            e(f"v_max3_f32 v{vT0}, v{S0+i}, v{S0+i+1}, v{vT0}")
    e(f"ds_max_f32 v{vT2}, v{vT0}")
    e(f"v_add_u32 v{vQA}, 1024, v{vQA}")
    e(f"v_add_u32 v{vT2}, 128, v{vT2}")
    e(f"s_sub_u32 s{sCNT}, s{sCNT}, 1")
    e(f"s_cmp_lg_u32 s{sCNT}, 0")
    e(f"s_cbranch_scc1 {L1}")
    lds_signal(e, C_S2, vT0)
    lds_wait(e, C_S2, 8, vT0)
    e(f"v_add_u32 v{vQA}, {L_Q}, v{vL16}")
    e(f"s_mov_b32 s{sCNT}, 8")
    L2 = e.label("sp2")
    e(f"{L2}:")
    e(f"ds_read_b128 {vr(Q,4)}, v{vQA}")
    e(f"ds_read_b32 v{vT0}, v{vRM}")
    e("s_waitcnt lgkmcnt(0)")
    for i in range(16):
        e(f"v_sub_f32 v{S1+i}, 0, v{vT0}")
    e("s_nop 1")
    for t in range(8):
        e(f"{MFMA} {vr(S0,16)}, {vr(KR+4*t,4)}, {vr(Q,4)}, {vr(S1,16)}")
        e("s_nop 11")
        for i in range(16):
            e(f"v_exp_f32 v{S0+i}, v{S0+i}")
        for i in range(8):
            e(f"v_cvt_pk_bf16_f32 v{S0+i}, v{S0+2*i}, v{S0+2*i+1}")
        e("s_nop 1")
        e(f"{MFMA} {vr(O,16)}, {vr(VR+8*t,4)}, {vr(S0,4)}, {'0' if t == 0 else vr(O,16)}")
        e(f"{MFMA} {vr(O,16)}, {vr(VR+8*t+4,4)}, {vr(S0+4,4)}, {vr(O,16)}")
    e("s_nop 11")
    a_flush(e)
    e(f"v_add_u32 v{vQA}, 1024, v{vQA}")
    e(f"v_add_u32 v{vRM}, 128, v{vRM}")
    e(f"v_subrev_u32 v{vOA}, {OSL}, v{vOA}")
    e(f"s_sub_u32 s{sCNT}, s{sCNT}, 1")
    e(f"s_cmp_lg_u32 s{sCNT}, 0")
    e(f"s_cbranch_scc1 {L2}")
    e("s_branch L_afin")

def silu_pack(e, d, t0):
    for i in range(0, 16, 4):
        e(f"v_cvt_pk_bf16_f32 v{t0}, v{d+i}, v{d+i+1}")
        e(f"v_cvt_pk_bf16_f32 v{t0+1}, v{d+i+2}, v{d+i+3}")
        e(f"v_lshlrev_b32 v{d+i}, 16, v{t0}")
        e(f"v_and_b32 v{d+i+1}, 0xffff0000, v{t0}")
        e(f"v_lshlrev_b32 v{d+i+2}, 16, v{t0+1}")
        e(f"v_and_b32 v{d+i+3}, 0xffff0000, v{t0+1}")
        for k in range(4):
            e(f"v_mul_f32 v{t0+k}, {f32bits(-LOG2E):#x}, v{d+i+k}")
        for k in range(4):
            e(f"v_exp_f32 v{t0+k}, v{t0+k}")
        for k in range(4):
            e(f"v_add_f32 v{t0+k}, 1.0, v{t0+k}")
        for k in range(4):
            e(f"v_rcp_f32 v{t0+k}, v{t0+k}")
        for k in range(4):
            e(f"v_mul_f32 v{d+i+k}, v{d+i+k}, v{t0+k}")
        e(f"v_cvt_pk_bf16_f32 v{t0}, v{d+i}, v{d+i+1}")
        e(f"v_cvt_pk_bf16_f32 v{t0+1}, v{d+i+2}, v{d+i+3}")
        e(f"v_lshlrev_b32 v{d+i}, 16, v{t0}")
        e(f"v_and_b32 v{d+i+1}, 0xffff0000, v{t0}")
        e(f"v_lshlrev_b32 v{d+i+2}, 16, v{t0+1}")
        e(f"v_and_b32 v{d+i+3}, 0xffff0000, v{t0+1}")


def ffn_role(e, st, emit_attention):
    vD1A, vD1B = 9, 10
    vTRC, vTA0, vTA1, vXB, vHH = 11, 12, 13, 14, 15
    ACC, AF, BF = 16, 80, 96
    sRING, sSO, sB0, sB1, sGRP = 90, 91, 92, 93, 84
    vPF = 159
    e(f"s_setprio 3")
    e(f"s_load_dwordx2 {sr(sNON,2)}, s[24:25], {EPOCH:#x}")
    e(f"s_sub_u32 s{sF}, s{sW}, 8")
    e(f"s_lshr_b32 s{sGRP}, s{sCG}, 1")
    e(f"s_lshl_b32 s{sT0}, s{sGRP}, 4")
    e(f"s_lshl_b32 s{sT1}, s{sF}, 2")
    e(f"s_add_u32 s{sT0}, s{sT0}, s{sT1}")
    e(f"s_lshl_b32 s{sT1}, s{sRP}, 6")
    e(f"s_add_u32 s{sT1}, s{sT1}, s{sT0}")
    e(f"s_lshl_b32 s{sT1}, s{sT1}, 10")
    X, T = 96, 112
    for j in range(4):
        e(f"buffer_load_dwordx4 {vr(X+4*j,4)}, v{vL16}, {sr(sX,4)}, s{sT1} offen offset:{1024*j}")
    e(f"s_bitcmp1_b32 s{sCG}, 0")
    e(f"s_cselect_b32 s{sWA}, s10, s8")
    e(f"s_cselect_b32 s{sWA+1}, s11, s9")
    e(f"s_mov_b32 s{sWA+2}, {512*16*2}")
    e(f"s_mov_b32 s{sWA+3}, 0x20000")
    e(f"s_lshl_b32 s{sT1}, s{sF}, 12")
    e(f"s_add_u32 m0, s{sT1}, {L_R}")
    rows = [85, 86, 87, 88]
    e(f"s_lshr_b32 s{sT2}, s{sT0}, 5")
    for i in range(4):
        e(f"buffer_load_dwordx4 v{vL16}, {sr(sWA,4)}, s{sT1} offen offset:{1024*i} lds")
    e("s_barrier")
    e(f"s_mul_i32 s{sT2}, s{sT2}, {XRT - 512}")
    e(f"s_lshl_b32 s{sT0}, s{sT0}, 4")
    e(f"s_add_u32 s{rows[0]}, s{sT0}, s{sT2}")
    for j in range(1, 4):
        e(f"s_add_u32 s{rows[j]}, s{rows[0]}, {16*j}")
    e(f"v_mul_u32_u24 v{vD1A}, 3584, v{vT0}")
    e(f"v_add_u32 v{vD1A}, v{vD1A}, v{vT1}")
    e(f"v_add_u32 v{vD1B}, {8*3584-1024}, v{vD1A}")
    e(f"s_mul_i32 s{sRING}, s{sF}, {RINGB}")
    e(f"s_add_u32 s{sRING}, s{sRING}, {L_WQ}")
    tr_common(e, vTRC, vT0, vT1)
    e(f"v_lshrrev_b32 v{vHH}, 5, v{vL}")
    vWA, vXA, vG, vI, vSA = ACC+8, ACC+9, ACC+10, ACC+11, ACC+7
    e(f"v_lshrrev_b32 v{vG}, 4, v{vL}")
    e(f"v_and_b32 v{vI}, 15, v{vL}")
    e(f"v_lshlrev_b32 v{vWA}, 3, v{vI}")
    e(f"v_lshl_add_u32 v{vWA}, v{vG}, 8, v{vWA}")
    e(f"v_add_u32 v{vWA}, {L_R}, v{vWA}")
    e(f"v_mul_u32_u24 v{vXA}, {XS2}, v{vG}")
    e(f"v_lshl_add_u32 v{vXA}, v{vI}, 4, v{vXA}")
    e(f"v_add_u32 v{vXA}, s{rows[0]}, v{vXA}")
    e(f"s_lshr_b32 s{sB0}, s{sGRP}, 1")
    e(f"s_lshl_b32 s{sT1}, s{sRP}, 1")
    e(f"s_add_u32 s{sB0}, s{sB0}, s{sT1}")
    e(f"s_and_b32 s{sB1}, s{sGRP}, 1")
    e(f"s_and_b32 s{sT3}, s{sCG}, 1")
    e(f"s_sub_u32 s{sT0}, 9, s{sT3}")
    e(f"v_and_b32 v{vT0}, 1, v{vG}")
    e(f"v_lshlrev_b32 v{vT0}, s{sT0}, v{vT0}")
    e(f"v_lshrrev_b32 v{vT1}, 1, v{vG}")
    e(f"v_lshl_add_u32 v{vT0}, v{vT1}, 3, v{vT0}")
    e(f"v_lshl_add_u32 v{vSA}, v{vI}, 4, v{vT0}")
    e(f"s_add_u32 s{sT0}, s{sT3}, 8")
    e(f"s_lshl_b32 s{sSO}, s{sB1}, s{sT0}")
    e(f"s_lshl_b32 s{sT0}, s{sB0}, 10")
    e(f"s_add_u32 s{sSO}, s{sSO}, s{sT0}")
    e(f"s_lshl_b32 s{sT0}, s{sT3}, 16")
    assert VF == 0x10000
    e(f"s_add_u32 s{sSO}, s{sSO}, s{sT0}")
    layernorm_rows(e, 4, X, T, rows, 4)
    e("s_waitcnt vmcnt(0)")
    lds_signal(e, C_KVX, vT0)
    e(f"s_add_u32 s{sNON}, s{sNON}, 1")
    e(f"s_addc_u32 s{sNON+1}, s{sNON+1}, 0")
    st.mark()
    Lnokv = e.label("nokv")
    e(f"s_cmp_lg_u32 s{sF}, 0")
    e(f"s_cbranch_scc1 {Lnokv}")
    lds_wait(e, C_KVX, 4, vT0, sleep=0)
    FRG = 96
    def kvreads(kk):
        b = FRG + 8*(kk % 4)
        e(f"ds_read_b64_tr_b16 {vr(b,2)}, v{vWA} offset:{kk*1024}")
        e(f"ds_read_b64_tr_b16 {vr(b+2,2)}, v{vWA} offset:{kk*1024+128}")
        e(f"ds_read_b128 {vr(b+4,4)}, v{vXA} offset:{kk*4*XS2}")
    def kvchain(isv):
        for kk in range(16):
            e(f"s_waitcnt lgkmcnt({3*min(3, 15-kk)})")
            b = FRG + 8*(kk % 4)
            c = "0" if kk == 0 else vr(ACC,4)
            if isv: e(f"{M16} {vr(ACC,4)}, {vr(b+4,4)}, {vr(b,4)}, {c}")
            else:   e(f"{M16} {vr(ACC,4)}, {vr(b,4)}, {vr(b+4,4)}, {c}")
            if kk + 4 < 16: kvreads(kk + 4)
    Lv, Lkvs, Lkvd = e.label("kvv"), e.label("kvs"), e.label("kvd")
    for kk in range(4): kvreads(kk)
    e(f"s_bitcmp1_b32 s{sCG}, 0")
    e(f"s_cbranch_scc1 {Lv}")
    kvchain(False)
    e(f"s_branch {Lkvs}")
    e(f"{Lv}:")
    kvchain(True)
    e(f"{Lkvs}:")
    e("s_nop 7")
    e(f"v_cvt_pk_bf16_f32 v{ACC}, v{ACC}, v{ACC+1}")
    e(f"v_cvt_pk_bf16_f32 v{ACC+1}, v{ACC+2}, v{ACC+3}")
    e(f"buffer_store_dwordx2 {vr(ACC,2)}, v{vSA}, {sr(sWS,4)}, s{sSO} offen sc1")
    e(f"s_cbranch_scc1 {Lkvd}")
    e(f"v_dot2_f32_bf16 v{ACC+2}, v{ACC}, v{ACC}, 0")
    e(f"v_dot2_f32_bf16 v{ACC+2}, v{ACC+1}, v{ACC+1}, v{ACC+2}")
    e(f"s_lshl_b32 s{sT2}, s{sB0}, 1")
    e(f"s_add_u32 s{sT2}, s{sT2}, s{sB1}")
    e(f"s_lshl_b32 s{sT2}, s{sT2}, 2")
    swap_op(e, "v_add_f32", 16, ACC+2, ACC+3)
    swap_op(e, "v_add_f32", 32, ACC+2, ACC+3)
    dpp_max16(e, ACC+2)
    e(f"s_add_u32 s{sT2}, s{sT2}, {KMAX}")
    e(f"v_mov_b32 v{vT0}, 0")
    e("s_mov_b64 exec, 1")
    e(f"buffer_store_dword v{ACC+2}, v{vT0}, {sr(sWS,4)}, s{sT2} offen sc1")
    e("s_mov_b64 exec, -1")
    e(f"{Lkvd}:")
    st.mark()
    e(f"s_lshl_b32 s{sT0}, s{sB0}, 2")
    e(f"s_lshl_b32 s{sT1}, s{sB1}, 1")
    e(f"s_add_u32 s{sT0}, s{sT0}, s{sT1}")
    e(f"s_add_u32 s{sT0}, s{sT0}, s{sT3}")
    e(f"s_lshl_b32 s{sT0}, s{sT0}, 7")
    e(f"s_add_u32 s{sT0}, s{sT0}, {KVFL}")
    flag_set(e, ACC+12, sT0)
    e(f"ds_write_b64 v{vCT}, {vr(ACC+12,2)} offset:{C_NON}")
    st.mark()
    for i in range(4):
        e(f"v_mov_b32 v{ACC+4+i}, 0")
    e(f"v_add_u32 v{vT0}, {L_R}, v{vL16}")
    for i in range(20):
        e(f"ds_write_b128 v{vT0}, {vr(ACC+4,4)} offset:{1024*i}")
    lds_signal(e, C_QRDY, vT0)
    if KVD_ACK: e("s_waitcnt vmcnt(0)")
    lds_signal(e, C_KVD, vT0)
    Lkvj = e.label("kvj")
    e(f"s_branch {Lkvj}")
    e(f"{Lnokv}:")
    st.n -= 2; st.mark(); st.mark()
    e(f"{Lkvj}:")
    st.mark()
    e("s_barrier")
    st.mark()
    e(f"s_and_b32 s{sT0}, s{sF}, 1")
    e(f"s_mul_i32 s{sT0}, s{sT0}, {XRT}")
    e(f"v_and_b32 v{vXB}, 31, v{vL}")
    e(f"v_lshlrev_b32 v{vXB}, 4, v{vXB}")
    e(f"v_mul_u32_u24 v{vT0}, {XS2}, v{vHH}")
    e(f"v_add_u32 v{vXB}, v{vXB}, v{vT0}")
    e(f"v_add_u32 v{vT2}, s{sT0}, v{vXB}")
    e(f"s_lshr_b32 s{sT1}, s{sF}, 1")
    e(f"s_lshl_b32 s{sT1}, s{sT1}, 6")
    e(f"v_lshl_add_u32 v{vTA0}, v{vHH}, 10, v{vTRC}")
    e(f"v_xor_b32 v{vTA0}, s{sT1}, v{vTA0}")
    e(f"v_add_u32 v{vTA0}, {L_WQ}, v{vTA0}")
    NS = 4
    def qreads(ks):
        b = BF + 8*(ks % NS)
        e(f"ds_read_b64_tr_b16 {vr(b,2)}, v{vTA0} offset:{ks*2048}")
        e(f"ds_read_b64_tr_b16 {vr(b+2,2)}, v{vTA0} offset:{ks*2048+512}")
        e(f"ds_read_b128 {vr(b+4,4)}, v{vT2} offset:{ks*XS1}")
    for ks in range(NS): qreads(ks)
    for ks in range(32):
        e(f"s_waitcnt lgkmcnt({3*min(NS-1, 31-ks)})")
        b = BF + 8*(ks % NS)
        e(f"{MFMA} {vr(ACC,16)}, {vr(b,4)}, {vr(b+4,4)}, {'0' if ks == 0 else vr(ACC,16)}")
        if ks + NS < 32: qreads(ks + NS)
    lds_signal(e, C_QRDY, vT0)
    e(f"s_and_b32 s{sT0}, s{sF}, 1")
    e(f"s_lshl_b32 s{sT0}, s{sT0}, 10")
    e(f"s_lshr_b32 s{sT1}, s{sF}, 1")
    e(f"s_lshl_b32 s{sT1}, s{sT1}, 12")
    e(f"s_add_u32 s{sT0}, s{sT0}, s{sT1}")
    e(f"s_add_u32 s{sT0}, s{sT0}, {L_Q}")
    e(f"v_add_u32 v{vT0}, s{sT0}, v{vL16}")
    e(f"s_mov_b32 s{sT2}, {f32bits(QSCALE):#x}")
    for i in range(16):
        e(f"v_mul_f32 v{ACC+i}, s{sT2}, v{ACC+i}")
    for i in range(8):
        e(f"v_cvt_pk_bf16_f32 v{ACC+i}, v{ACC+2*i}, v{ACC+2*i+1}")
    e(f"ds_write_b128 v{vT0}, {vr(ACC,4)}")
    e(f"ds_write_b128 v{vT0}, {vr(ACC+4,4)} offset:2048")
    for h in range(2):
        e(f"v_dot2_f32_bf16 v{ACC+8+h}, v{ACC+4*h}, v{ACC+4*h}, 0")
    for i in range(1, 4):
        for h in range(2):
            e(f"v_dot2_f32_bf16 v{ACC+8+h}, v{ACC+4*h+i}, v{ACC+4*h+i}, v{ACC+8+h}")
    for i in range(4):
        e(f"v_mov_b32 v{ACC+12+i}, 0")
    e(f"v_permlane32_swap_b32 v{ACC+8}, v{ACC+9}")
    e(f"s_lshl_b32 s{sT0}, s{sF}, 12")
    e(f"v_add_f32 v{ACC+8}, v{ACC+8}, v{ACC+9}")
    e(f"s_add_u32 s{sT0}, s{sT0}, {L_OA}")
    dpp_max16(e, ACC+8)
    e(f"v_add_u32 v{vT1}, s{sT0}, v{vL16}")
    e(f"s_mov_b32 exec_lo, 0x00010001")
    e(f"s_mov_b32 exec_hi, 0x00010001")
    e(f"ds_max_u32 v{vCT}, v{ACC+8} offset:{C_QMAX}")
    e("s_mov_b64 exec, -1")
    lds_wait(e, C_QRDY, 5, vT0, sleep=0)
    for i in range(4):
        e(f"ds_write_b128 v{vT1}, {vr(ACC+12,4)} offset:{1024*i}")
    lds_signal(e, C_Z, vT0)
    st.mark()
    e(f"s_setprio {FPRIO}")
    e("s_branch L_g1")
    emit_attention()
    e("L_g1:")
    abl_start = len(e.lines)
    fetch_nonce(e, AF)
    set_srd(e, sWA, 16, 512*1792*2)
    e(f"v_lshlrev_b32 v{vTA1}, 7, v{vL}")
    lds_wait(e, C_KVL, 8, vT0, sleep=2)
    st.mark()
    if PF1:
        e(f"s_lshr_b32 s{sT0}, s2, 3")
        e(f"s_mul_i32 s{sT0}, s{sT0}, {448*128}")
        e(f"s_lshl_b32 s{sT1}, s{sF}, 14")
        e(f"s_add_u32 s{sT0}, s{sT0}, s{sT1}")
        e(f"s_add_u32 s{sT1}, s{sT0}, 8192")
        e(f"buffer_load_dword v{vPF}, v{vTA1}, {sr(sWA,4)}, s{sT0} offen sc1")
        e(f"buffer_load_dword v{vPF}, v{vTA1}, {sr(sWA,4)}, s{sT1} offen sc1")
    D = 6
    Lskip1, Lg1d = e.label("g1skip"), e.label("g1done")
    sJ = sGRP
    e(f"s_lshl_b32 s{sJ}, s{sCG}, 2")
    e(f"s_add_u32 s{sJ}, s{sJ}, s{sF}")
    e(f"s_cmp_ge_u32 s{sJ}, 28")
    e(f"s_cbranch_scc1 {Lskip1}")
    e(f"s_lshl_b32 s{sSO}, s{sJ}, 7")
    def dma(k, va, vb, step):
        e(f"s_add_u32 m0, s{sRING}, {2048*(k % D)}")
        if k: e(f"s_add_u32 s{sSO}, s{sSO}, {step}")
        else: e("s_nop 0")
        e(f"buffer_load_dwordx4 v{va}, {sr(sWA,4)}, s{sSO} offen lds")
        e(f"buffer_load_dwordx4 v{vb}, {sr(sWA,4)}, s{sSO} offen offset:1024 lds")
    def areads(k, second):
        b = AF + 8*(k & 1)
        o = 2048*(k % D)
        e(f"ds_read_b64_tr_b16 {vr(b,2)}, v{vTA0} offset:{o}")
        e(f"ds_read_b64_tr_b16 {vr(b+2,2)}, v{vTA0} offset:{o+second}")
        e(f"ds_read_b64_tr_b16 {vr(b+4,2)}, v{vTA1} offset:{o}")
        e(f"ds_read_b64_tr_b16 {vr(b+6,2)}, v{vTA1} offset:{o+second}")
    def mfma4(k, bb0):
        a = AF + 8*(k & 1)
        for i in range(2):
            for j in range(2):
                d = ACC + 16*(2*i+j)
                e(f"{MFMA} {vr(d,16)}, {vr(a+4*i,4)}, {vr(bb0+4*j,4)}, {'0' if k == 0 else vr(d,16)}")
    NK = 32
    for k in range(D): dma(k, vD1A, vD1B, 16*3584)
    e(f"v_lshl_add_u32 v{vTA0}, v{vHH}, 10, v{vTRC}")
    e(f"v_add_u32 v{vTA0}, s{sRING}, v{vTA0}")
    e(f"v_xor_b32 v{vTA1}, 64, v{vTA0}")
    def g1reads(k):
        areads(k, 512)
        b = BF + 8*(k & 1)
        e(f"ds_read_b128 {vr(b,4)}, v{vXB} offset:{k*XS1}")
        e(f"ds_read_b128 {vr(b+4,4)}, v{vT2} offset:{k*XS1}")
    e(f"v_add_u32 v{vT2}, {XRT}, v{vXB}")
    e(f"s_waitcnt vmcnt({2*(D-1)})")
    g1reads(0)
    for k in range(NK):
        if k + 1 < NK:
            issued = min(NK, k + D)
            e(f"s_waitcnt vmcnt({2*(issued - (k+2))})")
            g1reads(k + 1)
            e("s_waitcnt lgkmcnt(6)")
        else:
            e("s_waitcnt lgkmcnt(0)")
        mfma4(k, BF + 8*(k & 1))
        if k + D < NK: dma(k + D, vD1A, vD1B, 16*3584)
    e(f"s_mul_i32 s{sT0}, s{sRP}, {2*112*1024}")
    e(f"s_lshl_b32 s{sT1}, s{sJ}, 12")
    e(f"s_add_u32 s{sT0}, s{sT0}, s{sT1}")
    e(f"s_add_u32 s{sT0}, s{sT0}, {HF}")
    e(f"s_add_u32 s{sT1}, s{sT0}, {112*1024}")
    e("s_nop 7")
    for a in range(2):
        for bb in range(2):
            d = ACC + 16*(2*a+bb)
            for i in range(8):
                e(f"v_cvt_pk_bf16_f32 v{d+i}, v{d+2*i}, v{d+2*i+1}")
            for i in range(8):
                e(f"v_pk_max_i16 v{d+i}, v{d+i}, 0")
            for half in range(2):
                e(f"buffer_store_dwordx4 {vr(d+4*half,4)}, v{vL16}, {sr(sWS,4)}, s{sT1 if bb else sT0} offen offset:{(2*a+half)*1024} sc1")
    e(f"s_lshl_b32 s{sT0}, s{sRP}, 5")
    e(f"s_add_u32 s{sT0}, s{sT0}, s{sJ}")
    e(f"s_lshl_b32 s{sT0}, s{sT0}, 7")
    e(f"s_add_u32 s{sT0}, s{sT0}, {HFL}")
    flag_set(e, AF, sT0)
    e(f"s_branch {Lg1d}")
    e(f"{Lskip1}:")
    e(f"s_lshr_b32 s{sT1}, s2, 6")
    e(f"s_lshl_b32 s{sT1}, s{sT1}, 2")
    e(f"s_add_u32 s{sT1}, s{sT1}, s{sF}")
    set_srd(e, sWA, 18, 512*1792*2)
    e(f"s_mul_i32 s{sT0}, s{sT1}, {896*128}")
    for i in range(14):
        e(f"buffer_load_dword v{vPF}, v{vTA1}, {sr(sWA,4)}, s{sT0} offen sc1")
        e(f"s_add_u32 s{sT0}, s{sT0}, 8192")
    set_srd(e, sWA, 12, 512*512*2)
    e(f"s_lshl_b32 s{sT0}, s{sT1}, 15")
    for i in range(4):
        e(f"buffer_load_dword v{vPF}, v{vTA1}, {sr(sWA,4)}, s{sT0} offen sc1")
        e(f"s_add_u32 s{sT0}, s{sT0}, 8192")
    e(f"{Lg1d}:")
    lds_signal(e, C_G1, vT0)
    st.mark()
    NK = 28
    e(f"v_lshl_add_u32 v{vTA0}, v{vHH}, 9, v{vTRC}")
    e(f"v_add_u32 v{vTA0}, s{sRING}, v{vTA0}")
    e(f"v_xor_b32 v{vTA1}, 64, v{vTA0}")
    set_srd(e, sWA, 18, 512*1792*2)
    e(f"s_mul_i32 s{sSO}, s{sF}, {448*1024}")
    e(f"s_lshl_b32 s{sT0}, s{sCG}, 7")
    e(f"s_add_u32 s{sSO}, s{sSO}, s{sT0}")
    for k in range(D): dma(k, vDA, vDB, 16384)
    lds_wait(e, C_G1, 4, vT0, sleep=2)
    stage_w512(e, 12, L_XN, sF, 4, sB0)
    set_srd(e, sWA, 18, 512*1792*2)
    e(f"v_min_u32 v{vT0}, 6, v{vL}")
    e(f"v_lshlrev_b32 v{vT0}, 7, v{vT0}")
    e(f"s_lshl_b32 s{sT0}, s{sRP}, 12")
    e(f"s_mul_i32 s{sT1}, s{sF}, {7*128}")
    e(f"s_add_u32 s{sT0}, s{sT0}, s{sT1}")
    e(f"s_add_u32 s{sT0}, s{sT0}, {HFL}")
    flag_poll(e, AF, vT0, sT0, sleep=8)
    st.mark()
    e(f"s_mul_i32 s{sB0}, s{sRP}, {2*112*1024}")
    e(f"s_mul_i32 s{sT1}, s{sF}, {28*1024}")
    e(f"s_add_u32 s{sB0}, s{sB0}, s{sT1}")
    e(f"s_add_u32 s{sB0}, s{sB0}, {HF}")
    e(f"s_add_u32 s{sB1}, s{sB0}, {112*1024}")
    DB = 8
    def bload(k):
        if k % 4 == 0 and k > 0:
            e(f"s_add_u32 s{sB0}, s{sB0}, 4096")
            e(f"s_add_u32 s{sB1}, s{sB1}, 4096")
        b = BF + 8*(k % DB)
        e(f"buffer_load_dwordx4 {vr(b,4)}, v{vL16}, {sr(sWS,4)}, s{sB0} offen offset:{(k%4)*1024} sc1")
        e(f"buffer_load_dwordx4 {vr(b+4,4)}, v{vL16}, {sr(sWS,4)}, s{sB1} offen offset:{(k%4)*1024} sc1")
    log = []
    for k in range(DB):
        bload(k); log += [("B", k)]*2
    def wait_for(items):
        last = max(i for i, it in enumerate(log) if it in items) if any(it in items for it in log) else -1
        e(f"s_waitcnt vmcnt({len(log) - 1 - last})")
    areads(0, 1024)
    for k in range(NK):
        if k + 1 < NK:
            wait_for([("A", k+1), ("B", k)])
            areads(k + 1, 1024)
            e("s_waitcnt lgkmcnt(4)")
        else:
            wait_for([("B", k)])
            e("s_waitcnt lgkmcnt(0)")
        mfma4(k, BF + 8*(k % DB))
        if k + D < NK:
            dma(k + D, vDA, vDB, 16384); log += [("A", k+D)]*2
        if k + DB < NK:
            bload(k + DB); log += [("B", k+DB)]*2
    st.mark()
    if ABL:
        keep = []
        for l in e.lines[abl_start:]:
            t = l.strip()
            if "m" in ABL and t.startswith("v_mfma"): continue
            if "g" in ABL and t.startswith("buffer_load_dwordx4"): continue
            if "l" in ABL and (t.startswith("ds_read_b64_tr") or t.startswith("ds_read_b128")): continue
            if "v" in ABL and (t.startswith("v_cvt_pk") or t.startswith("v_pk_max") or t.startswith("buffer_store_dwordx4")): continue
            keep.append(l)
        e.lines[abl_start:] = keep
    XR, G = AF, ACC
    vXO = vD1A
    e(f"s_lshr_b32 s{sT0}, s{sF}, 1")
    e(f"s_lshl_b32 s{sT1}, s{sCG}, 1")
    e(f"s_add_u32 s{sT0}, s{sT0}, s{sT1}")
    e(f"s_lshl_b32 s{sSO}, s{sT0}, 6")
    e(f"s_and_b32 s{sT0}, s{sF}, 1")
    e(f"s_lshl_b32 s{sT1}, s{sRP}, 1")
    e(f"s_add_u32 s{sB1}, s{sT0}, s{sT1}")
    e(f"s_lshl_b32 s{sB0}, s{sB1}, 15")
    e(f"s_add_u32 s{sSO}, s{sSO}, s{sB0}")
    e(f"s_add_u32 s{sB0}, s{sB0}, {OF}")
    e(f"s_lshl_b32 s{sB1}, s{sB1}, 12")
    e(f"s_add_u32 s{sB1}, s{sB1}, {OFL}")
    e(f"v_and_b32 v{vXO}, 31, v{vL}")
    e(f"v_lshlrev_b32 v{vXO}, 10, v{vXO}")
    e(f"v_lshl_add_u32 v{vXO}, v{vHH}, 3, v{vXO}")
    for q in range(4):
        e(f"buffer_load_dwordx2 {vr(XR+2*q,2)}, v{vXO}, {sr(sX,4)}, s{sSO} offen offset:{16*q}")
    e(f"v_add_u32 v{vT0}, s{sRING}, v{vL16}")
    Lr = [e.label("rq") for _ in range(4)]
    Lrd = e.label("rqd")
    for f in range(4):
        e(f"{Lr[f]}:")
        if f < 3:
            e(f"s_cmp_lg_u32 s{sF}, {f}")
            e(f"s_cbranch_scc1 {Lr[f+1]}")
        for q in range(4):
            if q == f: continue
            for i in range(4):
                e(f"ds_write_b128 v{vT0}, {vr(ACC+16*q+4*i,4)} offset:{4096*((q-f-1)&3)+1024*i}")
        if f:
            e("s_waitcnt lgkmcnt(0)")
            for i in range(0, 16, 2):
                e(f"v_mov_b64 {vr(ACC+i,2)}, {vr(ACC+16*f+i,2)}")
        if f < 3:
            e(f"s_branch {Lrd}")
    e(f"{Lrd}:")
    lds_signal(e, C_RED, vT2)
    for sl in range(3):
        e(f"s_add_u32 s{sT0}, s{sF}, {3 - sl}")
        e(f"s_and_b32 s{sT0}, s{sT0}, 3")
        e(f"s_mul_i32 s{sT0}, s{sT0}, {RINGB}")
        e(f"s_add_u32 s{sT0}, s{sT0}, {L_WQ + 4096*sl}")
        e(f"v_add_u32 v{BF+sl}, s{sT0}, v{vL16}")
    lds_wait(e, C_RED, 4, vT2, sleep=2)
    for sl in range(3):
        for i in range(4):
            e(f"ds_read_b128 {vr(ACC+16+16*sl+4*i,4)}, v{BF+sl} offset:{1024*i}")
    e("s_waitcnt vmcnt(0) lgkmcnt(0)")
    for i in range(0, 16, 2):
        e(f"v_pk_add_f32 {vr(ACC+i,2)}, {vr(ACC+i,2)}, {vr(ACC+16+i,2)}")
        e(f"v_pk_add_f32 {vr(ACC+32+i,2)}, {vr(ACC+32+i,2)}, {vr(ACC+48+i,2)}")
    for i in range(0, 16, 2):
        e(f"v_pk_add_f32 {vr(ACC+i,2)}, {vr(ACC+i,2)}, {vr(ACC+32+i,2)}")
    silu_pack(e, ACC, ACC+16)
    XP = ACC + 16
    for q in range(0, 8, 2):
        e(f"v_mov_b64 {vr(XP+q,2)}, {vr(XR+q,2)}")
    st.mark()
    SA = ACC + 24
    AW = 56
    OB = 72
    vFO, vCA = vD1B, vXB
    e(f"s_lshr_b32 s{sT1}, s{sF}, 1")
    e(f"s_lshl_b32 s{sT1}, s{sT1}, 6")
    e(f"v_lshl_add_u32 v{vTA0}, v{vHH}, 9, v{vTRC}")
    e(f"v_xor_b32 v{vTA0}, s{sT1}, v{vTA0}")
    assert L_XN == 0
    e(f"v_min_u32 v{vFO}, 23, v{vL}")
    e(f"v_lshlrev_b32 v{vFO}, 7, v{vFO}")
    e(f"s_and_b32 s{sT0}, s{sF}, 1")
    e(f"s_mul_i32 s{sT0}, s{sT0}, {OSL}")
    e(f"s_sub_u32 s{sT0}, {L_OA + OSL}, s{sT0}")
    e(f"v_mov_b32 v{vCA}, s{sT0}")
    def woread(dst, head):
        e(f"ds_read_b64_tr_b16 {vr(dst,2)}, v{vTA0} offset:{head*2048}")
        e(f"ds_read_b64_tr_b16 {vr(dst+2,2)}, v{vTA0} offset:{head*2048+1024}")
    seqA = [(i, c) for i in range(3) for c in range(8)]
    lds_wait(e, OCNT + 2*OSL, 8, vT1, sleep=4, vaddr=vCA)
    flag_poll(e, OB, vFO, sB1, sleep=2)
    for n in range(24):
        if n % 4 == 0 and n: e(f"s_add_u32 s{sB0}, s{sB0}, 4096")
        e(f"buffer_load_dwordx4 {vr(OB+4*n,4)}, v{vL16}, {sr(sWS,4)}, s{sB0} offen offset:{(n%4)*1024} sc1")
    for n in range(4): woread(AW + 4*n, 4*seqA[n][1] + seqA[n][0])
    for n in range(24):
        e(f"s_waitcnt vmcnt({23-n}) lgkmcnt({2*min(3, 23-n)})")
        e(f"{MFMA} {vr(SA,16)}, {vr(AW+4*(n%4),4)}, {vr(OB+4*n,4)}, {'0' if n == 0 else vr(SA,16)}")
        if n + 4 < 24: woread(AW + 4*(n%4), 4*seqA[n+4][1] + seqA[n+4][0])
    st.mark()
    e("s_setprio 3")
    AW2 = OB + 32
    for c in range(8):
        woread(AW2 + 4*c, 4*c + 3)
        if c == 5: e("s_waitcnt lgkmcnt(4)")
    XF = OB + 64
    for q in range(8):
        e(f"v_lshlrev_b32 v{XF+2*q}, 16, v{XP+q}")
        e(f"v_and_b32 v{XF+2*q+1}, 0xffff0000, v{XP+q}")
    e(f"v_min_u32 v{vFO}, {7*128}, v{vFO}")
    e(f"s_add_u32 s{sB1}, s{sB1}, 3072")
    e(f"s_add_u32 s{sB0}, s{sB0}, 4096")
    e(f"s_add_u32 s{sT0}, s{sB0}, 4096")
    lds_wait(e, OCNT, 8, vT1, sleep=2, vaddr=vCA)
    flag_poll(e, OB, vFO, sB1, sleep=1)
    for c in range(8):
        e(f"buffer_load_dwordx4 {vr(OB+4*c,4)}, v{vL16}, {sr(sWS,4)}, s{sB0 if c < 4 else sT0} offen offset:{(c%4)*1024} sc1")
    for c in range(8):
        e(f"s_waitcnt vmcnt({7-c})")
        e(f"{MFMA} {vr(SA,16)}, {vr(AW2+4*c,4)}, {vr(OB+4*c,4)}, {vr(SA,16)}")
    e("s_nop 11")
    T4 = AW
    for q in range(4):
        a = SA + 4*q
        e(f"v_cvt_pk_bf16_f32 v{T4}, v{a}, v{a+1}")
        e(f"v_cvt_pk_bf16_f32 v{T4+1}, v{a+2}, v{a+3}")
        e(f"v_lshlrev_b32 v{a}, 16, v{T4}")
        e(f"v_and_b32 v{a+1}, 0xffff0000, v{T4}")
        e(f"v_lshlrev_b32 v{a+2}, 16, v{T4+1}")
        e(f"v_and_b32 v{a+3}, 0xffff0000, v{T4+1}")
        e(f"v_pk_mul_f32 {vr(a,2)}, {vr(a,2)}, {vr(G+4*q,2)}")
        e(f"v_pk_mul_f32 {vr(a+2,2)}, {vr(a+2,2)}, {vr(G+4*q+2,2)}")
        e(f"v_cvt_pk_bf16_f32 v{T4}, v{a}, v{a+1}")
        e(f"v_cvt_pk_bf16_f32 v{T4+1}, v{a+2}, v{a+3}")
        e(f"v_lshlrev_b32 v{a}, 16, v{T4}")
        e(f"v_and_b32 v{a+1}, 0xffff0000, v{T4}")
        e(f"v_lshlrev_b32 v{a+2}, 16, v{T4+1}")
        e(f"v_and_b32 v{a+3}, 0xffff0000, v{T4+1}")
        e(f"v_pk_add_f32 {vr(a,2)}, {vr(a,2)}, {vr(XF+4*q,2)}")
        e(f"v_pk_add_f32 {vr(a+2,2)}, {vr(a+2,2)}, {vr(XF+4*q+2,2)}")
        e(f"v_cvt_pk_bf16_f32 v{a}, v{a}, v{a+1}")
        e(f"v_cvt_pk_bf16_f32 v{a+1}, v{a+2}, v{a+3}")
        e(f"buffer_store_dwordx2 {vr(a,2)}, v{vXO}, {sr(sOUT,4)}, s{sSO} offen offset:{16*q}")
    Lne = e.label("ne")
    e(f"s_xor_b32 s{sT0}, s{sF}, 3")
    e(f"s_or_b32 s{sT0}, s{sT0}, s2")
    e(f"s_cmp_lg_u32 s{sT0}, 0")
    e(f"s_cbranch_scc1 {Lne}")
    e(f"s_mov_b32 s{sT0}, {EPOCH}")
    flag_set(e, OB, sT0)
    e(f"{Lne}:")
    if common.STAMP: e("s_waitcnt vmcnt(0)")
    st.mark(); st.mark(True)
    st.flush(sW, sWS, vT0, vT1, 12)
    e("s_endpgm")
    attention_slow(e)

def gen(e, name):
    kernel_begin(e, name)
    stA, stF = Stamps(e, 0), Stamps(e, 0)
    e("s_load_dwordx16 s[4:19], s[0:1], 0")
    e("s_load_dwordx4 s[20:23], s[0:1], 64")
    e("s_load_dwordx2 s[24:25], s[0:1], 80")
    e(f"s_cmp_ge_u32 s2, 256")
    e(f"s_cbranch_scc1 L_end")
    if common.STAMP:
        e("s_memrealtime s[98:99]")
        e("s_memtime s[96:97]")
        stA.n = stF.n = 2
    e(f"v_lshrrev_b32 v{vT0}, 6, v0")
    e(f"v_and_b32 v{vL}, 63, v0")
    e(f"v_readfirstlane_b32 s{sW}, v{vT0}")
    e("s_getpc_b64 s[26:27]")
    e(f"v_mov_b32 v{vCT}, {L_C}")
    e(f"s_cmp_lg_u32 s{sW}, 0")
    e(f"s_cbranch_scc1 L_nopf")
    e(f"s_lshr_b32 s{sT0}, s2, 3")
    e(f"s_lshl_b32 s{sT0}, s{sT0}, 10")
    e(f"v_lshlrev_b32 v{vT1}, 7, v0")
    e(f"v_add_u32 v{vT1}, s{sT0}, v{vT1}")
    e(f"v_min_u32 v{vT1}, CODE_BYTES, v{vT1}")
    e(f"s_mov_b64 exec, 0xff")
    e(f"global_load_dword v{vT2}, v{vT1}, s[26:27]")
    e("s_mov_b64 exec, -1")
    e(f"v_lshl_add_u32 v{vT0}, v{vL}, 2, v{vCT}")
    e(f"v_mov_b32 v{vT1}, 0")
    e(f"ds_write_b32 v{vT0}, v{vT1}")
    e("L_nopf:")
    decode_ids(e)
    e(f"v_lshlrev_b32 v{vL16}, 4, v{vL}")
    e(f"s_mov_b32 s{sONES}, 0x3f803f80")
    e(f"s_mov_b32 s{sMASK}, 0xffff")
    e(f"s_mov_b32 s{sMASK+1}, 0xffff")
    e(f"v_lshrrev_b32 v{vT0}, 2, v{vL}")
    e(f"v_and_b32 v{vT0}, 4, v{vT0}")
    e(f"v_and_b32 v{vT1}, 7, v{vL}")
    e(f"v_xor_b32 v{vT1}, v{vT1}, v{vT0}")
    e(f"v_lshlrev_b32 v{vT1}, 4, v{vT1}")
    e(f"v_lshrrev_b32 v{vT0}, 3, v{vL}")
    e(f"v_lshl_add_u32 v{vDA}, v{vT0}, 10, v{vT1}")
    e(f"v_add_u32 v{vDB}, {8192-1024}, v{vDA}")
    for d, n in ((sX, 2048*512*2), (sWS, WS_BYTES), (sOUT, 2048*512*2)):
        e(f"s_mov_b32 s{d+2}, {n:#x}")
        e(f"s_mov_b32 s{d+3}, 0x20000")
    e("s_waitcnt lgkmcnt(0)")
    if common.STAMP:
        e(f"s_mov_b32 s{common.S_ST}, s98")
        e(f"s_mov_b32 s{common.S_ST+1}, s96")
    for d, b in ((sX, 4), (sWS, 24), (sOUT, 20)):
        e(f"s_mov_b64 s[{d}:{d+1}], s[{b}:{b+1}]")
    e(f"s_cmp_ge_u32 s{sW}, 8")
    e(f"s_cbranch_scc1 L_ffn")
    e("s_barrier")
    e("s_branch L_attn")
    e("L_ffn:")
    ffn_role(e, stF, lambda: attention_role(e, stA))
    e("L_end:")
    e("s_endpgm")
    e("L_code_end:")
    e(f".set CODE_BYTES, L_code_end - {name} - 128")
    return 168

if __name__ == "__main__":
    if "--stamp" in sys.argv:
        sys.argv.remove("--stamp"); common.STAMP = True
    out = sys.argv[1] if len(sys.argv) > 1 else "cdna_kernels/" + NAME + ".s"
    HDR = open("cdna_kernels/" + NAME + ".s.ref").read().split("; Override")[0]
    e = Asm()
    e('.amdgcn_target "amdgcn-amd-amdhsa--gfx950"')
    e(".text")
    name = NAME + "_kernel"
    nv = gen(e, name)
    hdr = HDR + f"; @launch grid=(256,1,1) block=(768,1,1) lds={LDS_BYTES}\n"
    open(out, "w").write(hdr + e.text() + '.section .rodata,"a"\n' + descriptor(name, nv))
```

```python
import sys
from common import *
import common
import struct
def f32bits(x): return struct.unpack("<I", struct.pack("<f", x))[0]
LOG2E = 1.4426950408889634
QSCALE = 0.25 * LOG2E
BOUND2 = 40.0 * 40.0
M16 = "v_mfma_f32_16x16x32_bf16"

KF   = 0x000000
VF   = 0x010000
KMAX = 0x020000
EPOCH = 0x021000
KVFL = 0x028000
HFL  = 0x040000
OFL  = 0x080000
HF   = 0x100000
OF   = 0x800000
XS2, XS1, XRT = 528, 1056, 33792
L_XN  = 0
L_WQ  = 67584
L_R   = L_WQ + 65536
OSL   = 4608
L_OA  = L_WQ + 49152
RINGB = 12288
L_Q   = L_R + 20480
L_C   = L_Q + 8192
C_KVX, C_QRDY, C_QMAX, C_REDO, C_ADONE, C_G1, C_RED, C_WO, C_S1, C_S2, C_Z, C_KVD, C_KVL, C_TICK, C_S0 = [4*i for i in range(15)]
C_NON = 64
assert L_OA + 8*OSL == L_Q
L_RM  = L_C + 256
LDS_BYTES = L_RM + 1024
assert LDS_BYTES <= 163840
SPIN_MAX = 1 << 18
import os
OPT = dict(kv.split("=") for kv in os.environ.get("FOPT", "").split(",") if kv)
FPRIO = int(OPT.get("fprio", 1))
BOOST = int(OPT.get("boost", 1))
KVD_ACK = int(OPT.get("kvdack", 1))
PF1 = int(OPT.get("pf1", 0))
ABL = OPT.get("abl", "")
DBGT = int(OPT.get("dbgt", 0))
def dbg_time(e, idx, inv, va, vb):
    if not DBGT: return
    e("s_memrealtime s[96:97]")
    e("s_waitcnt lgkmcnt(0)")
    if inv: e("s_not_b32 s96, s96")
    e(f"v_mov_b32 v{va}, s96")
    e(f"v_mov_b32 v{vb}, {4*idx}")
    e("s_mov_b64 exec, 1")
    e(f"global_atomic_umax v{vb}, v{va}, s[22:23]")
    e("s_mov_b64 exec, -1")
GROUP = int(OPT.get("group", 0))

sX, sWS, sWA, sOUT, sDBG = 28, 32, 36, 40, 44
sW, sRP, sCG, sT0, sT1, sT2, sT3, sCNT, sF = 48, 49, 50, 51, 52, 53, 54, 55, 56
sONES = 57
sNON = 58
sMASK = 60
sLN = 62
sSP = 3
vL, vL16, vT0, vT1, vT2, vCT = 1, 2, 3, 4, 5, 6
vDA, vDB = 7, 8

def decode_ids(e):
    e(f"s_and_b32 s{sRP}, s2, 7")
    e(f"s_lshl_b32 s{sRP}, s{sRP}, 2")
    e(f"s_lshr_b32 s{sCG}, s2, 6")
    e(f"s_add_u32 s{sRP}, s{sRP}, s{sCG}")
    e(f"s_lshr_b32 s{sCG}, s2, 3")
    e(f"s_and_b32 s{sCG}, s{sCG}, 7")

def lds_signal(e, off, vtmp):
    e("s_waitcnt lgkmcnt(0)")
    e(f"v_mov_b32 v{vtmp}, 1")
    e("s_mov_b64 exec, 1")
    e(f"ds_add_u32 v{vCT}, v{vtmp} offset:{off}")
    e("s_mov_b64 exec, -1")

def lds_wait(e, off, n, vtmp, sleep=1, vaddr=None):
    L, D = e.label("lw"), e.label("lwd")
    vaddr = vCT if vaddr is None else vaddr
    e(f"s_mov_b32 s{sSP}, {SPIN_MAX*8}")
    e(f"{L}:")
    e(f"ds_read_b32 v{vtmp}, v{vaddr} offset:{off}")
    e(f"s_sub_u32 s{sSP}, s{sSP}, 1")
    e("s_waitcnt lgkmcnt(0)")
    e(f"v_cmp_gt_u32 vcc, {n}, v{vtmp}")
    e(f"s_cbranch_vccz {D}")
    e(f"s_sleep {sleep}")
    e(f"s_cbranch_scc0 {L}")
    e(f"{D}:")

def fetch_nonce(e, vt):
    e(f"ds_read_b64 {vr(vt,2)}, v{vCT} offset:{C_NON}")
    e("s_waitcnt lgkmcnt(0)")
    e(f"v_readfirstlane_b32 s{sNON}, v{vt}")
    e(f"v_readfirstlane_b32 s{sNON+1}, v{vt+1}")

def flag_poll(e, vt, voff, soff, sleep=1):
    L, D = e.label("fp"), e.label("fpd")
    e(f"s_mov_b32 s{sSP}, {SPIN_MAX}")
    e(f"{L}:")
    e(f"buffer_load_dwordx2 {vr(vt,2)}, v{voff}, {sr(sWS,4)}, s{soff} offen sc1")
    e(f"s_sub_u32 s{sSP}, s{sSP}, 1")
    e("s_waitcnt vmcnt(0)")
    e(f"v_cmp_ne_u64 vcc, {sr(sNON,2)}, {vr(vt,2)}")
    e(f"s_cbranch_vccz {D}")
    e(f"s_sleep {sleep}")
    e(f"s_cbranch_scc0 {L}")
    e(f"{D}:")

def flag_set(e, vt, soff):
    e(f"v_mov_b32 v{vt}, s{sNON}")
    e(f"v_mov_b32 v{vt+1}, s{sNON+1}")
    e(f"v_mov_b32 v{vt+2}, 0")
    e("s_waitcnt vmcnt(0)")
    e("s_mov_b64 exec, 1")
    e(f"buffer_store_dwordx2 {vr(vt,2)}, v{vt+2}, {sr(sWS,4)}, s{soff} offen sc1")
    e("s_mov_b64 exec, -1")

def set_srd(e, d, base, nbytes):
    srd(e, d, base, nbytes)

def layernorm_rows(e, n, X, T, srow, vm_after):
    S1, S2 = T, T + n
    for j in range(n):
        e(f"s_waitcnt vmcnt({vm_after + n - 1 - j})")
        x = X + 4*j
        e(f"v_dot2_f32_bf16 v{S1+j}, v{x}, s{sONES}, 0")
        e(f"v_dot2_f32_bf16 v{S2+j}, v{x}, v{x}, 0")
        for i in range(1, 4):
            e(f"v_dot2_f32_bf16 v{S1+j}, v{x+i}, s{sONES}, v{S1+j}")
            e(f"v_dot2_f32_bf16 v{S2+j}, v{x+i}, v{x+i}, v{S2+j}")
    e("s_nop 2")
    A = T + 2*n
    p32 = [(0, 2), (1, 3)] + ([(4, 5)] if n == 6 else [])
    for base in (S1, S2):
        for (a, b) in p32:
            e(f"v_permlane32_swap_b32 v{base+a}, v{base+b}")
    for base in (S1, S2):
        for (a, b) in p32:
            e(f"v_add_f32 v{base+a}, v{base+a}, v{base+b}")
    if n == 6:
        e(f"v_mov_b32 v{S1+5}, v{S1+4}")
        e(f"v_mov_b32 v{S2+5}, v{S2+4}")
    e("s_nop 1")
    p16 = [(0, 1)] + ([(4, 5)] if n == 6 else [])
    for base in (S1, S2):
        for (a, b) in p16:
            e(f"v_permlane16_swap_b32 v{base+a}, v{base+b}")
    e("s_nop 0")
    for base in (S1, S2):
        for (a, b) in p16:
            e(f"v_add_f32 v{base+a}, v{base+a}, v{base+b}")
    G = [0] + ([4] if n == 6 else [])
    for rot in (8, 4, 2, 1):
        e("s_nop 1" if len(G) == 1 else "s_nop 0")
        for g in G:
            for base in (S1, S2):
                e(f"v_add_f32_dpp v{base+g}, v{base+g}, v{base+g} row_ror:{rot} row_mask:0xf bank_mask:0xf")
    def each(fmt):
        for gi, g in enumerate(G):
            e(fmt.format(m=S1+g, v=S2+g, t=A+gi))
    each(f"v_mul_f32 v{{m}}, {f32bits(1/512):#x}, v{{m}}")
    each(f"v_mul_f32 v{{v}}, {f32bits(1/512):#x}, v{{v}}")
    each("v_fma_f32 v{v}, -v{m}, v{m}, v{v}")
    each("v_max_f32 v{v}, 0, v{v}")
    each("v_cvt_pk_bf16_f32 v{t}, v{m}, v{v}")
    each("v_lshlrev_b32 v{m}, 16, v{t}")
    each("v_and_b32 v{v}, 0xffff0000, v{t}")
    each(f"v_add_f32 v{{v}}, {f32bits(1e-5):#x}, v{{v}}")
    each("v_cvt_pk_bf16_f32 v{v}, v{v}, v{v}")
    each("v_lshlrev_b32 v{v}, 16, v{v}")
    each("v_sqrt_f32 v{v}, v{v}")
    e("s_nop 0")
    each("v_cvt_pk_bf16_f32 v{v}, v{v}, v{v}")
    each("v_lshlrev_b32 v{v}, 16, v{v}")
    each("v_rcp_f32 v{v}, v{v}")
    e("s_nop 0")
    each("v_mul_f32 v{m}, -v{m}, v{v}")
    e("s_nop 0")
    lane_of = [0, 16, 32, 48, 0, 32]
    grp_of = [0, 0, 0, 0, 4, 4]
    vA = A + 2
    e(f"v_mul_u32_u24 v{vA}, {XS2}, v{vL}")
    P0, P1, CC, AD = A + 4, A + 6, A + 8, A + 3
    assert P0 % 2 == 0
    for j in range(n):
        sR = sLN + 2*(j & 1)
        e(f"v_readlane_b32 s{sR}, v{S2+grp_of[j]}, {lane_of[j]}")
        e(f"v_readlane_b32 s{sLN+4}, v{S1+grp_of[j]}, {lane_of[j]}")
        e(f"v_add_u32 v{AD}, s{srow[j]}, v{vA}")
        x = X + 4*j
        e(f"v_lshlrev_b32 v{P0}, 16, v{x}")
        e(f"v_mov_b32 v{CC}, s{sLN+4}")
        e(f"v_and_b32 v{P0+1}, 0xffff0000, v{x}")
        for i in range(4):
            P = P0 if (i & 1) == 0 else P1
            Pn = P1 if (i & 1) == 0 else P0
            if i < 3:
                e(f"v_lshlrev_b32 v{Pn}, 16, v{x+i+1}")
                e(f"v_and_b32 v{Pn+1}, 0xffff0000, v{x+i+1}")
            e(f"v_pk_fma_f32 {vr(P,2)}, {vr(P,2)}, {sr(sR,2)}, {vr(CC,2)} op_sel_hi:[1,0,0]")
            e(f"v_cvt_pk_bf16_f32 v{x+i}, v{P}, v{P+1}")
        e(f"ds_write_b128 v{AD}, {vr(x,4)}")

def tr_common(e, vd, t0, t1):
    e(f"v_and_b32 v{t0}, 12, v{vL}")
    e(f"v_lshlrev_b32 v{vd}, 5, v{t0}")
    e(f"v_lshrrev_b32 v{t0}, 3, v{vL}")
    e(f"v_and_b32 v{t0}, 2, v{t0}")
    e(f"v_bfe_u32 v{t1}, v{vL}, 1, 1")
    e(f"v_or_b32 v{t0}, v{t0}, v{t1}")
    e(f"v_lshrrev_b32 v{t1}, 1, v{vL}")
    e(f"v_and_b32 v{t1}, 4, v{t1}")
    e(f"v_xor_b32 v{t0}, v{t0}, v{t1}")
    e(f"v_lshl_add_u32 v{vd}, v{t0}, 4, v{vd}")
    e(f"v_and_b32 v{t0}, 1, v{vL}")
    e(f"v_lshl_add_u32 v{vd}, v{t0}, 3, v{vd}")

def dpp_max16(e, v):
    for ctl in ("row_ror:8", "row_ror:4", "row_ror:2", "row_ror:1"):
        e("s_nop 1")
        e(f"v_max_f32_dpp v{v}, v{v}, v{v} {ctl} row_mask:0xf bank_mask:0xf")

def swap_op(e, op, kind, v, t):
    e(f"v_mov_b32 v{t}, v{v}")
    e("s_nop 1")
    e(f"v_permlane{kind}_swap_b32 v{v}, v{t}")
    e("s_nop 0")
    e(f"{op} v{v}, v{v}, v{t}")


OCNT = 4096 + 256
def stage_w512(e, base_sreg, lbase, sIDX, nparts, sSO):
    rows = 512 // nparts
    set_srd(e, sWA, base_sreg, 512*512*2)
    e(f"s_mul_i32 s{sSO}, s{sIDX}, {rows*1024}")
    e(f"s_lshl_b32 s{sT0}, s{sCG}, 7")
    e(f"s_add_u32 s{sSO}, s{sSO}, s{sT0}")
    e(f"s_mul_i32 s{sT0}, s{sIDX}, {rows*128}")
    for i in range(rows // 16):
        e(f"s_add_u32 m0, s{sT0}, {lbase + 2048*i}")
        if i: e(f"s_add_u32 s{sSO}, s{sSO}, 16384")
        else: e("s_nop 0")
        e(f"buffer_load_dwordx4 v{vDA}, {sr(sWA,4)}, s{sSO} offen lds")
        e(f"buffer_load_dwordx4 v{vDB}, {sr(sWA,4)}, s{sSO} offen offset:1024 lds")

A_Q, A_KR, A_VR, A_S0, A_S1, A_O = 12, 16, 48, 112, 128, 144
vOA, vQA, vVO = 7, 8, 9
vONE = 9
def a_flush(e):
    O = A_O
    dst = {8: O+10, 7: O+12, 6: O+14, 5: O+8, 4: O+6, 3: O+4, 2: 10, 1: O+2, 0: O}
    prev = None
    for r in range(8, -1, -1):
        e(f"v_cvt_f64_f32 {vr(dst[r],2)}, v{O+r}")
        if prev is not None and prev != 8:
            e(f"ds_add_f64 v{vOA}, {vr(dst[prev],2)} offset:{512*prev}")
        prev = r
    e(f"ds_add_f64 v{vOA}, {vr(dst[0],2)}")
    e("s_mov_b32 exec_hi, 0")
    e(f"ds_add_f64 v{vOA}, {vr(dst[8],2)} offset:4096")
    e("s_mov_b32 exec_lo, 1")
    e(f"ds_add_u32 v{vOA}, v{vONE} offset:{OCNT}")
    e("s_mov_b64 exec, -1")

def attention_role(e, st):
    Q, KR, VR, S0, S1, O = A_Q, A_KR, A_VR, A_S0, A_S1, A_O
    X, T = 112, 136
    e("L_attn:")
    e(f"s_lshr_b32 s{sT3}, s{sCG}, 1")
    e(f"s_lshl_b32 s{sT3}, s{sT3}, 4")
    e(f"s_mul_i32 s{sT2}, s{sW}, 6")
    e(f"s_add_u32 s{sT2}, s{sT2}, s{sT3}")
    e(f"s_lshl_b32 s{sT1}, s{sRP}, 16")
    rows = [84, 85, 86, 87, 88, 89]
    for j in range(6):
        r = rows[j]
        e(f"s_add_u32 s{r}, s{sT2}, {16+j}")
        e(f"s_and_b32 s{r}, s{r}, 63")
        e(f"s_lshl_b32 s{sT0}, s{r}, 10")
        e(f"s_add_u32 s{sT0}, s{sT0}, s{sT1}")
        e(f"buffer_load_dwordx4 {vr(X+4*j,4)}, v{vL16}, {sr(sX,4)}, s{sT0} offen")
    stage_w512(e, 6, L_WQ, sW, 8, sT1)
    for j in range(6):
        r = rows[j]
        e(f"s_lshr_b32 s{sT0}, s{r}, 5")
        e(f"s_mul_i32 s{sT0}, s{sT0}, {XRT - 512}")
        e(f"s_lshl_b32 s{r}, s{r}, 4")
        e(f"s_add_u32 s{r}, s{r}, s{sT0}")
    st.mark()
    layernorm_rows(e, 6, X, T, rows, 8)
    e("s_waitcnt vmcnt(0) lgkmcnt(0)")
    st.mark()
    e("s_barrier")
    st.mark()
    fetch_nonce(e, S0)
    e(f"v_and_b32 v{vT0}, 31, v{vL}")
    e(f"v_cmp_eq_u32 vcc, 16, v{vT0}")
    e(f"v_mov_b32 v{vT1}, 0x3f803f80")
    e(f"v_and_b32 v{vVO}, 15, v{vL}")
    e(f"v_cndmask_b32 v{VR}, 0, v{vT1}, vcc")
    e(f"v_cndmask_b32 v{VR+1}, 0, v{vT1}, vcc")
    for i in range(2, 64, 2):
        e(f"v_mov_b64 {vr(VR+i,2)}, {vr(VR,2)}")
    e(f"v_lshlrev_b32 v{vT2}, 2, v{vVO}")
    e(f"v_lshlrev_b32 v{vVO}, 4, v{vVO}")
    e(f"v_lshrrev_b32 v{vT1}, 5, v{vL}")
    e(f"v_lshl_add_u32 v{vVO}, v{vT1}, 8, v{vVO}")
    e(f"v_lshlrev_b32 v{vOA}, 3, v{vL}")
    e(f"v_add_u32 v{vOA}, {L_OA + 8*OSL}, v{vOA}")
    e(f"v_add_u32 v{vQA}, {L_Q}, v{vL16}")
    e(f"v_lshlrev_b32 v{vT0}, 7, v{vT0}")
    e(f"s_lshl_b32 s{sT0}, s{sW}, 12")
    e(f"s_add_u32 s{sT0}, s{sT0}, {KVFL}")
    lds_wait(e, C_KVD, 1, vT1)
    flag_poll(e, S0, vT0, sT0)
    st.mark()
    e(f"s_lshl_b32 s{sT0}, s{sW}, 6")
    e(f"s_add_u32 s{sT0}, s{sT0}, {KMAX}")
    e(f"buffer_load_dword v{vT2}, v{vT2}, {sr(sWS,4)}, s{sT0} offen sc1")
    e(f"s_lshl_b32 s{sT0}, s{sW}, 13")
    e(f"s_add_u32 s{sT1}, s{sT0}, {KF + 4096}")
    e(f"s_add_u32 s{sT2}, s{sT0}, {VF}")
    e(f"s_add_u32 s{sT3}, s{sT0}, {VF + 4096}")
    assert KF == 0
    def ldk(t):
        e(f"buffer_load_dwordx4 {vr(KR+4*t,4)}, v{vL16}, {sr(sWS,4)}, s{sT0 if t < 4 else sT1} offen offset:{(t%4)*1024} sc1")
    def ldv(t):
        e(f"s_mov_b64 exec, {sr(sMASK,2)}")
        for h in range(2):
            e(f"buffer_load_dwordx4 {vr(VR+8*t+4*h,4)}, v{vVO}, {sr(sWS,4)}, s{sT2 if t < 4 else sT3} offen offset:{(t%4)*1024+512*h} sc1")
        e("s_mov_b64 exec, -1")
    ldk(0)
    for t in range(7):
        ldk(t+1); ldv(t)
    ldv(7)
    lds_signal(e, C_KVL, vONE)
    lds_wait(e, C_Z, 4, vT0)
    e(f"ds_read_b32 v{vT1}, v{vCT} offset:{C_QMAX}")
    e(f"ds_read_b128 {vr(Q,4)}, v{vQA}")
    e("s_waitcnt vmcnt(23)")
    dpp_max16(e, vT2)
    e("s_waitcnt lgkmcnt(0)")
    e(f"{MFMA} {vr(S0,16)}, {vr(KR,4)}, {vr(Q,4)}, 0")
    e(f"v_mul_f32 v{vT2}, v{vT2}, v{vT1}")
    e(f"v_cmp_nge_f32 vcc, {f32bits(BOUND2):#x}, v{vT2}")
    Lok = e.label("bok")
    e(f"s_cbranch_vccz {Lok}")
    lds_signal(e, C_REDO, vT0)
    e(f"{Lok}:")
    e(f"s_mov_b32 s{sCNT}, 0")
    e("s_nop 7")
    if DBGT:
        e("s_memrealtime s[98:99]")
        e("s_waitcnt lgkmcnt(0)")
    st.mark()
    Lloop, Lnf = e.label("aloop"), e.label("noflush")
    e(".p2align 6")
    e(f"{Lloop}:")
    for t in range(8):
        a = S0 if (t & 1) == 0 else S1
        b = S1 if (t & 1) == 0 else S0
        tp = (t - 1) % 8
        tn = (t + 1) % 8
        ex = [f"v_exp_f32 v{a+i}, v{a+i}" for i in range(16)]
        pk = [f"v_cvt_pk_bf16_f32 v{a+i}, v{a+2*i}, v{a+2*i+1}" for i in range(8)]
        c0 = "0" if t == 1 else vr(O,16)
        pv0 = f"{MFMA} {vr(O,16)}, {vr(VR+8*tp,4)}, {vr(b,4)}, {c0}"
        pv1 = f"{MFMA} {vr(O,16)}, {vr(VR+8*tp+4,4)}, {vr(b+4,4)}, {vr(O,16)}"
        qk = f"{MFMA} {vr(b,16)}, {vr(KR+4*tn,4)}, {vr(Q,4)}, 0"
        if GROUP:
            pv0 = "\n".join([pv0, pv1, qk]); pv1 = qk = ""
            if BOOST: pv0 = f"s_setprio 3\n{pv0}\ns_setprio 0"
        elif BOOST:
            pv0, pv1, qk = [f"s_setprio 3\n{m}\ns_setprio 0" for m in (pv0, pv1, qk)]
        wait = f"s_waitcnt vmcnt({22-3*t})" if t < 7 else "s_waitcnt vmcnt(0) lgkmcnt(0)"
        seq = [wait, pv0] + ex[0:4] + [pk[0]] + ex[4:5]
        seq += [pv1] + ex[5:6] + [pk[1]] + ex[6:8] + [pk[2]] + ex[8:9]
        seq += [qk]
        if t == 6:
            seq += [f"ds_read_b128 {vr(Q,4)}, v{vQA} offset:1024"]
        seq += ex[9:10] + [pk[3]] + ex[10:12] + [pk[4]] + ex[12:14] + [pk[5]] + ex[14:16] + [pk[6], pk[7]]
        for s in seq: e(s)
        if t == 0:
            e(f"s_cmp_eq_u32 s{sCNT}, 0")
            e(f"s_cbranch_scc1 {Lnf}")
            a_flush(e)
            e(f"{Lnf}:")
            e(f"v_subrev_u32 v{vOA}, {OSL}, v{vOA}")
    e(f"v_add_u32 v{vQA}, 1024, v{vQA}")
    e(f"s_add_u32 s{sCNT}, s{sCNT}, 1")
    e(f"s_cmp_lg_u32 s{sCNT}, 8")
    e(f"s_cbranch_scc1 {Lloop}")
    e(f"{MFMA} {vr(O,16)}, {vr(VR+56,4)}, {vr(S1,4)}, {vr(O,16)}")
    e(f"{MFMA} {vr(O,16)}, {vr(VR+60,4)}, {vr(S1+4,4)}, {vr(O,16)}")
    e(f"v_mov_b32 v{vT2}, {L_OA + 7*OSL}")
    e("s_nop 10")
    a_flush(e)
    lds_signal(e, C_ADONE, vT0)
    if DBGT:
        dbg_time(e, 5, False, vT0, vT1)
        e(f"v_mov_b32 v{vT0}, s98")
        e(f"v_not_b32 v10, s98")
        e(f"v_mov_b32 v{vT1}, 0")
        e("s_mov_b64 exec, 1")
        e(f"global_atomic_umax v{vT1}, v10, s[22:23] offset:12")
        e(f"global_atomic_umax v{vT1}, v{vT0}, s[22:23] offset:16")
        e("s_mov_b64 exec, -1")
    st.mark()
    lds_wait(e, OCNT, 8, vT0, vaddr=vT2)
    e(f"ds_read_b32 v{vT0}, v{vCT} offset:{C_REDO}")
    e("s_waitcnt lgkmcnt(0)")
    e(f"v_cmp_ne_u32 vcc, 0, v{vT0}")
    e(f"s_cbranch_vccnz L_slow")
    e("L_afin:")
    e("s_setprio 2")
    e("s_mov_b64 exec, 1")
    e(f"ds_add_rtn_u32 v{vT0}, v{vCT}, v{vONE} offset:{C_TICK}")
    e("s_mov_b64 exec, -1")
    e("s_waitcnt lgkmcnt(0)")
    e(f"v_readfirstlane_b32 s{sCNT}, v{vT0}")
    e(f"v_lshlrev_b32 v{vT1}, 3, v{vL}")
    e(f"v_and_b32 v{vQA}, 0xf8, v{vT1}")
    e(f"s_cmp_ge_u32 s{sCNT}, 8")
    e(f"s_cbranch_scc1 L_aend")
    e(f"s_mul_i32 s{sT0}, s{sCNT}, {OSL}")
    e(f"s_sub_u32 s{sT0}, {L_OA + 7*OSL}, s{sT0}")
    e(f"v_mov_b32 v{vT2}, s{sT0}")
    e(f"v_add_u32 v{vT1}, s{sT0}, v{vT1}")
    e(f"v_add_u32 v{vQA}, s{sT0}, v{vQA}")
    e(f"s_lshl_b32 s{sT0}, s{sRP}, 3")
    e(f"s_and_b32 s{sT1}, s{sCNT}, 1")
    e(f"s_lshl_b32 s{sT1}, s{sT1}, 2")
    e(f"s_add_u32 s{sT0}, s{sT0}, s{sT1}")
    e(f"s_lshr_b32 s{sT1}, s{sCNT}, 1")
    e(f"s_add_u32 s{sT0}, s{sT0}, s{sT1}")
    e(f"s_lshl_b32 s{sT0}, s{sT0}, 3")
    e(f"s_add_u32 s{sT0}, s{sT0}, s{sCG}")
    e(f"s_lshl_b32 s{sT1}, s{sT0}, 10")
    e(f"s_add_u32 s{sT1}, s{sT1}, {OF}")
    e(f"s_lshl_b32 s{sT0}, s{sT0}, 7")
    e(f"s_add_u32 s{sT0}, s{sT0}, {OFL}")
    lds_wait(e, OCNT, 8, vT0, vaddr=vT2, sleep=2)
    F = S1
    e(f"ds_read_b64 {vr(F+16,2)}, v{vQA} offset:4096")
    for r in range(8):
        e(f"ds_read_b64 {vr(F+2*r,2)}, v{vT1} offset:{512*r}")
    e("s_waitcnt lgkmcnt(8)")
    e(f"v_cvt_f32_f64 v{vT0}, {vr(F+16,2)}")
    e(f"v_rcp_f32 v{vT0}, v{vT0}")
    e("s_waitcnt lgkmcnt(0)")
    for i in range(8):
        e(f"v_cvt_f32_f64 v{F+i}, {vr(F+2*i,2)}")
    for i in range(8):
        e(f"v_mul_f32 v{F+i}, v{F+i}, v{vT0}")
    for i in range(4):
        e(f"v_cvt_pk_bf16_f32 v{F+i}, v{F+2*i}, v{F+2*i+1}")
    e(f"buffer_store_dwordx4 {vr(F,4)}, v{vL16}, {sr(sWS,4)}, s{sT1} offen sc1")
    flag_set(e, S0, sT0)
    e("s_branch L_afin")
    e("L_aend:")
    st.mark(); st.mark(True)
    st.flush(sW, sWS, vT0, vT1, 12)
    e("s_endpgm")

def attention_slow(e):
    Q, KR, VR, S0, S1, O = A_Q, A_KR, A_VR, A_S0, A_S1, A_O
    vRM = 0
    e("L_slow:")
    lds_wait(e, C_ADONE, 8, vT0)
    e(f"s_mul_i32 s{sT0}, s{sW}, {OSL}")
    e(f"v_lshlrev_b32 v{vOA}, 3, v{vL}")
    e(f"v_add_u32 v{vOA}, {L_OA + 7*OSL}, v{vOA}")
    e(f"v_subrev_u32 v{vT1}, s{sT0}, v{vOA}")
    e(f"v_mov_b32 v10, 0")
    e(f"v_mov_b32 v11, 0")
    lds_signal(e, C_S0, vT0)
    lds_wait(e, C_S0, 8, vT0)
    for r in range(9):
        e(f"ds_write_b64 v{vT1}, v[10:11] offset:{512*r}")
    e(f"v_and_b32 v{vRM}, 31, v{vL}")
    e(f"v_lshlrev_b32 v{vRM}, 2, v{vRM}")
    e(f"v_add_u32 v{vRM}, {L_RM}, v{vRM}")
    e(f"s_lshl_b32 s{sT0}, s{sW}, 7")
    e(f"v_add_u32 v{vT1}, s{sT0}, v{vRM}")
    e(f"v_mov_b32 v{vT0}, 0xff800000")
    e(f"ds_write_b32 v{vT1}, v{vT0}")
    lds_signal(e, C_S1, vT0)
    lds_wait(e, C_S1, 8, vT0)
    e(f"v_add_u32 v{vQA}, {L_Q}, v{vL16}")
    e(f"v_mov_b32 v{vT2}, v{vRM}")
    e(f"s_mov_b32 s{sCNT}, 8")
    L1 = e.label("sp1")
    e(f"{L1}:")
    e(f"ds_read_b128 {vr(Q,4)}, v{vQA}")
    e(f"v_mov_b32 v{vT0}, 0xff800000")
    e("s_waitcnt lgkmcnt(0)")
    for t in range(8):
        e(f"{MFMA} {vr(S0,16)}, {vr(KR+4*t,4)}, {vr(Q,4)}, 0")
        e("s_nop 11")
        for i in range(0, 16, 2):
            e(f"v_max3_f32 v{vT0}, v{S0+i}, v{S0+i+1}, v{vT0}")
    e(f"ds_max_f32 v{vT2}, v{vT0}")
    e(f"v_add_u32 v{vQA}, 1024, v{vQA}")
    e(f"v_add_u32 v{vT2}, 128, v{vT2}")
    e(f"s_sub_u32 s{sCNT}, s{sCNT}, 1")
    e(f"s_cmp_lg_u32 s{sCNT}, 0")
    e(f"s_cbranch_scc1 {L1}")
    lds_signal(e, C_S2, vT0)
    lds_wait(e, C_S2, 8, vT0)
    e(f"v_add_u32 v{vQA}, {L_Q}, v{vL16}")
    e(f"s_mov_b32 s{sCNT}, 8")
    L2 = e.label("sp2")
    e(f"{L2}:")
    e(f"ds_read_b128 {vr(Q,4)}, v{vQA}")
    e(f"ds_read_b32 v{vT0}, v{vRM}")
    e("s_waitcnt lgkmcnt(0)")
    for i in range(16):
        e(f"v_sub_f32 v{S1+i}, 0, v{vT0}")
    e("s_nop 1")
    for t in range(8):
        e(f"{MFMA} {vr(S0,16)}, {vr(KR+4*t,4)}, {vr(Q,4)}, {vr(S1,16)}")
        e("s_nop 11")
        for i in range(16):
            e(f"v_exp_f32 v{S0+i}, v{S0+i}")
        for i in range(8):
            e(f"v_cvt_pk_bf16_f32 v{S0+i}, v{S0+2*i}, v{S0+2*i+1}")
        e("s_nop 1")
        e(f"{MFMA} {vr(O,16)}, {vr(VR+8*t,4)}, {vr(S0,4)}, {'0' if t == 0 else vr(O,16)}")
        e(f"{MFMA} {vr(O,16)}, {vr(VR+8*t+4,4)}, {vr(S0+4,4)}, {vr(O,16)}")
    e("s_nop 11")
    a_flush(e)
    e(f"v_add_u32 v{vQA}, 1024, v{vQA}")
    e(f"v_add_u32 v{vRM}, 128, v{vRM}")
    e(f"v_subrev_u32 v{vOA}, {OSL}, v{vOA}")
    e(f"s_sub_u32 s{sCNT}, s{sCNT}, 1")
    e(f"s_cmp_lg_u32 s{sCNT}, 0")
    e(f"s_cbranch_scc1 {L2}")
    e("s_branch L_afin")

def silu_pack(e, d, t0):
    for i in range(0, 16, 4):
        e(f"v_cvt_pk_bf16_f32 v{t0}, v{d+i}, v{d+i+1}")
        e(f"v_cvt_pk_bf16_f32 v{t0+1}, v{d+i+2}, v{d+i+3}")
        e(f"v_lshlrev_b32 v{d+i}, 16, v{t0}")
        e(f"v_and_b32 v{d+i+1}, 0xffff0000, v{t0}")
        e(f"v_lshlrev_b32 v{d+i+2}, 16, v{t0+1}")
        e(f"v_and_b32 v{d+i+3}, 0xffff0000, v{t0+1}")
        for k in range(4):
            e(f"v_mul_f32 v{t0+k}, {f32bits(-LOG2E):#x}, v{d+i+k}")
        for k in range(4):
            e(f"v_exp_f32 v{t0+k}, v{t0+k}")
        for k in range(4):
            e(f"v_add_f32 v{t0+k}, 1.0, v{t0+k}")
        for k in range(4):
            e(f"v_rcp_f32 v{t0+k}, v{t0+k}")
        for k in range(4):
            e(f"v_mul_f32 v{d+i+k}, v{d+i+k}, v{t0+k}")
        e(f"v_cvt_pk_bf16_f32 v{t0}, v{d+i}, v{d+i+1}")
        e(f"v_cvt_pk_bf16_f32 v{t0+1}, v{d+i+2}, v{d+i+3}")
        e(f"v_lshlrev_b32 v{d+i}, 16, v{t0}")
        e(f"v_and_b32 v{d+i+1}, 0xffff0000, v{t0}")
        e(f"v_lshlrev_b32 v{d+i+2}, 16, v{t0+1}")
        e(f"v_and_b32 v{d+i+3}, 0xffff0000, v{t0+1}")


def ffn_role(e, st, emit_attention):
    vD1A, vD1B = 9, 10
    vTRC, vTA0, vTA1, vXB, vHH = 11, 12, 13, 14, 15
    ACC, AF, BF = 16, 80, 96
    sRING, sSO, sB0, sB1, sGRP = 90, 91, 92, 93, 84
    vPF = 159
    e(f"s_setprio 3")
    e(f"s_load_dwordx2 {sr(sNON,2)}, s[24:25], {EPOCH:#x}")
    e(f"s_sub_u32 s{sF}, s{sW}, 8")
    if DBGT:
        e("s_memrealtime s[98:99]")
    e(f"s_lshr_b32 s{sGRP}, s{sCG}, 1")
    e(f"s_lshl_b32 s{sT0}, s{sGRP}, 4")
    e(f"s_lshl_b32 s{sT1}, s{sF}, 2")
    e(f"s_add_u32 s{sT0}, s{sT0}, s{sT1}")
    e(f"s_lshl_b32 s{sT1}, s{sRP}, 6")
    e(f"s_add_u32 s{sT1}, s{sT1}, s{sT0}")
    e(f"s_lshl_b32 s{sT1}, s{sT1}, 10")
    X, T = 96, 112
    for j in range(4):
        e(f"buffer_load_dwordx4 {vr(X+4*j,4)}, v{vL16}, {sr(sX,4)}, s{sT1} offen offset:{1024*j}")
    e(f"s_bitcmp1_b32 s{sCG}, 0")
    e(f"s_cselect_b32 s{sWA}, s10, s8")
    e(f"s_cselect_b32 s{sWA+1}, s11, s9")
    e(f"s_mov_b32 s{sWA+2}, {512*16*2}")
    e(f"s_mov_b32 s{sWA+3}, 0x20000")
    e(f"s_lshl_b32 s{sT1}, s{sF}, 12")
    e(f"s_add_u32 m0, s{sT1}, {L_R}")
    rows = [85, 86, 87, 88]
    e(f"s_lshr_b32 s{sT2}, s{sT0}, 5")
    for i in range(4):
        e(f"buffer_load_dwordx4 v{vL16}, {sr(sWA,4)}, s{sT1} offen offset:{1024*i} lds")
    e("s_barrier")
    e(f"s_mul_i32 s{sT2}, s{sT2}, {XRT - 512}")
    e(f"s_lshl_b32 s{sT0}, s{sT0}, 4")
    e(f"s_add_u32 s{rows[0]}, s{sT0}, s{sT2}")
    for j in range(1, 4):
        e(f"s_add_u32 s{rows[j]}, s{rows[0]}, {16*j}")
    e(f"v_mul_u32_u24 v{vD1A}, 3584, v{vT0}")
    e(f"v_add_u32 v{vD1A}, v{vD1A}, v{vT1}")
    e(f"v_add_u32 v{vD1B}, {8*3584-1024}, v{vD1A}")
    e(f"s_mul_i32 s{sRING}, s{sF}, {RINGB}")
    e(f"s_add_u32 s{sRING}, s{sRING}, {L_WQ}")
    tr_common(e, vTRC, vT0, vT1)
    e(f"v_lshrrev_b32 v{vHH}, 5, v{vL}")
    vWA, vXA, vG, vI, vSA = ACC+8, ACC+9, ACC+10, ACC+11, ACC+7
    e(f"v_lshrrev_b32 v{vG}, 4, v{vL}")
    e(f"v_and_b32 v{vI}, 15, v{vL}")
    e(f"v_lshlrev_b32 v{vWA}, 3, v{vI}")
    e(f"v_lshl_add_u32 v{vWA}, v{vG}, 8, v{vWA}")
    e(f"v_add_u32 v{vWA}, {L_R}, v{vWA}")
    e(f"v_mul_u32_u24 v{vXA}, {XS2}, v{vG}")
    e(f"v_lshl_add_u32 v{vXA}, v{vI}, 4, v{vXA}")
    e(f"v_add_u32 v{vXA}, s{rows[0]}, v{vXA}")
    e(f"s_lshr_b32 s{sB0}, s{sGRP}, 1")
    e(f"s_lshl_b32 s{sT1}, s{sRP}, 1")
    e(f"s_add_u32 s{sB0}, s{sB0}, s{sT1}")
    e(f"s_and_b32 s{sB1}, s{sGRP}, 1")
    e(f"s_and_b32 s{sT3}, s{sCG}, 1")
    e(f"s_sub_u32 s{sT0}, 9, s{sT3}")
    e(f"v_and_b32 v{vT0}, 1, v{vG}")
    e(f"v_lshlrev_b32 v{vT0}, s{sT0}, v{vT0}")
    e(f"v_lshrrev_b32 v{vT1}, 1, v{vG}")
    e(f"v_lshl_add_u32 v{vT0}, v{vT1}, 3, v{vT0}")
    e(f"v_lshl_add_u32 v{vSA}, v{vI}, 4, v{vT0}")
    e(f"s_add_u32 s{sT0}, s{sT3}, 8")
    e(f"s_lshl_b32 s{sSO}, s{sB1}, s{sT0}")
    e(f"s_lshl_b32 s{sT0}, s{sB0}, 10")
    e(f"s_add_u32 s{sSO}, s{sSO}, s{sT0}")
    e(f"s_lshl_b32 s{sT0}, s{sT3}, 16")
    assert VF == 0x10000
    e(f"s_add_u32 s{sSO}, s{sSO}, s{sT0}")
    layernorm_rows(e, 4, X, T, rows, 4)
    e("s_waitcnt vmcnt(0)")
    lds_signal(e, C_KVX, vT0)
    e(f"s_add_u32 s{sNON}, s{sNON}, 1")
    e(f"s_addc_u32 s{sNON+1}, s{sNON+1}, 0")
    st.mark()
    Lnokv = e.label("nokv")
    e(f"s_cmp_lg_u32 s{sF}, 0")
    e(f"s_cbranch_scc1 {Lnokv}")
    lds_wait(e, C_KVX, 4, vT0, sleep=0)
    FRG = 96
    def kvreads(kk):
        b = FRG + 8*(kk % 4)
        e(f"ds_read_b64_tr_b16 {vr(b,2)}, v{vWA} offset:{kk*1024}")
        e(f"ds_read_b64_tr_b16 {vr(b+2,2)}, v{vWA} offset:{kk*1024+128}")
        e(f"ds_read_b128 {vr(b+4,4)}, v{vXA} offset:{kk*4*XS2}")
    def kvchain(isv):
        for kk in range(16):
            e(f"s_waitcnt lgkmcnt({3*min(3, 15-kk)})")
            b = FRG + 8*(kk % 4)
            c = "0" if kk == 0 else vr(ACC,4)
            if isv: e(f"{M16} {vr(ACC,4)}, {vr(b+4,4)}, {vr(b,4)}, {c}")
            else:   e(f"{M16} {vr(ACC,4)}, {vr(b,4)}, {vr(b+4,4)}, {c}")
            if kk + 4 < 16: kvreads(kk + 4)
    Lv, Lkvs, Lkvd = e.label("kvv"), e.label("kvs"), e.label("kvd")
    for kk in range(4): kvreads(kk)
    e(f"s_bitcmp1_b32 s{sCG}, 0")
    e(f"s_cbranch_scc1 {Lv}")
    kvchain(False)
    e(f"s_branch {Lkvs}")
    e(f"{Lv}:")
    kvchain(True)
    e(f"{Lkvs}:")
    e("s_nop 7")
    e(f"v_cvt_pk_bf16_f32 v{ACC}, v{ACC}, v{ACC+1}")
    e(f"v_cvt_pk_bf16_f32 v{ACC+1}, v{ACC+2}, v{ACC+3}")
    e(f"buffer_store_dwordx2 {vr(ACC,2)}, v{vSA}, {sr(sWS,4)}, s{sSO} offen sc1")
    e(f"s_cbranch_scc1 {Lkvd}")
    e(f"v_dot2_f32_bf16 v{ACC+2}, v{ACC}, v{ACC}, 0")
    e(f"v_dot2_f32_bf16 v{ACC+2}, v{ACC+1}, v{ACC+1}, v{ACC+2}")
    e(f"s_lshl_b32 s{sT2}, s{sB0}, 1")
    e(f"s_add_u32 s{sT2}, s{sT2}, s{sB1}")
    e(f"s_lshl_b32 s{sT2}, s{sT2}, 2")
    swap_op(e, "v_add_f32", 16, ACC+2, ACC+3)
    swap_op(e, "v_add_f32", 32, ACC+2, ACC+3)
    dpp_max16(e, ACC+2)
    e(f"s_add_u32 s{sT2}, s{sT2}, {KMAX}")
    e(f"v_mov_b32 v{vT0}, 0")
    e("s_mov_b64 exec, 1")
    e(f"buffer_store_dword v{ACC+2}, v{vT0}, {sr(sWS,4)}, s{sT2} offen sc1")
    e("s_mov_b64 exec, -1")
    e(f"{Lkvd}:")
    st.mark()
    e(f"s_lshl_b32 s{sT0}, s{sB0}, 2")
    e(f"s_lshl_b32 s{sT1}, s{sB1}, 1")
    e(f"s_add_u32 s{sT0}, s{sT0}, s{sT1}")
    e(f"s_add_u32 s{sT0}, s{sT0}, s{sT3}")
    e(f"s_lshl_b32 s{sT0}, s{sT0}, 7")
    e(f"s_add_u32 s{sT0}, s{sT0}, {KVFL}")
    flag_set(e, ACC+12, sT0)
    e(f"ds_write_b64 v{vCT}, {vr(ACC+12,2)} offset:{C_NON}")
    st.mark()
    for i in range(4):
        e(f"v_mov_b32 v{ACC+4+i}, 0")
    e(f"v_add_u32 v{vT0}, {L_R}, v{vL16}")
    for i in range(20):
        e(f"ds_write_b128 v{vT0}, {vr(ACC+4,4)} offset:{1024*i}")
    lds_signal(e, C_QRDY, vT0)
    if KVD_ACK: e("s_waitcnt vmcnt(0)")
    lds_signal(e, C_KVD, vT0)
    Lkvj = e.label("kvj")
    e(f"s_branch {Lkvj}")
    e(f"{Lnokv}:")
    st.n -= 2; st.mark(); st.mark()
    e(f"{Lkvj}:")
    st.mark()
    e("s_barrier")
    st.mark()
    e(f"s_and_b32 s{sT0}, s{sF}, 1")
    e(f"s_mul_i32 s{sT0}, s{sT0}, {XRT}")
    e(f"v_and_b32 v{vXB}, 31, v{vL}")
    e(f"v_lshlrev_b32 v{vXB}, 4, v{vXB}")
    e(f"v_mul_u32_u24 v{vT0}, {XS2}, v{vHH}")
    e(f"v_add_u32 v{vXB}, v{vXB}, v{vT0}")
    e(f"v_add_u32 v{vT2}, s{sT0}, v{vXB}")
    e(f"s_lshr_b32 s{sT1}, s{sF}, 1")
    e(f"s_lshl_b32 s{sT1}, s{sT1}, 6")
    e(f"v_lshl_add_u32 v{vTA0}, v{vHH}, 10, v{vTRC}")
    e(f"v_xor_b32 v{vTA0}, s{sT1}, v{vTA0}")
    e(f"v_add_u32 v{vTA0}, {L_WQ}, v{vTA0}")
    NS = 4
    def qreads(ks):
        b = BF + 8*(ks % NS)
        e(f"ds_read_b64_tr_b16 {vr(b,2)}, v{vTA0} offset:{ks*2048}")
        e(f"ds_read_b64_tr_b16 {vr(b+2,2)}, v{vTA0} offset:{ks*2048+512}")
        e(f"ds_read_b128 {vr(b+4,4)}, v{vT2} offset:{ks*XS1}")
    for ks in range(NS): qreads(ks)
    for ks in range(32):
        e(f"s_waitcnt lgkmcnt({3*min(NS-1, 31-ks)})")
        b = BF + 8*(ks % NS)
        e(f"{MFMA} {vr(ACC,16)}, {vr(b,4)}, {vr(b+4,4)}, {'0' if ks == 0 else vr(ACC,16)}")
        if ks + NS < 32: qreads(ks + NS)
    lds_signal(e, C_QRDY, vT0)
    e(f"s_and_b32 s{sT0}, s{sF}, 1")
    e(f"s_lshl_b32 s{sT0}, s{sT0}, 10")
    e(f"s_lshr_b32 s{sT1}, s{sF}, 1")
    e(f"s_lshl_b32 s{sT1}, s{sT1}, 12")
    e(f"s_add_u32 s{sT0}, s{sT0}, s{sT1}")
    e(f"s_add_u32 s{sT0}, s{sT0}, {L_Q}")
    e(f"v_add_u32 v{vT0}, s{sT0}, v{vL16}")
    e(f"s_mov_b32 s{sT2}, {f32bits(QSCALE):#x}")
    for i in range(16):
        e(f"v_mul_f32 v{ACC+i}, s{sT2}, v{ACC+i}")
    for i in range(8):
        e(f"v_cvt_pk_bf16_f32 v{ACC+i}, v{ACC+2*i}, v{ACC+2*i+1}")
    e(f"ds_write_b128 v{vT0}, {vr(ACC,4)}")
    e(f"ds_write_b128 v{vT0}, {vr(ACC+4,4)} offset:2048")
    for h in range(2):
        e(f"v_dot2_f32_bf16 v{ACC+8+h}, v{ACC+4*h}, v{ACC+4*h}, 0")
    for i in range(1, 4):
        for h in range(2):
            e(f"v_dot2_f32_bf16 v{ACC+8+h}, v{ACC+4*h+i}, v{ACC+4*h+i}, v{ACC+8+h}")
    for i in range(4):
        e(f"v_mov_b32 v{ACC+12+i}, 0")
    e(f"v_permlane32_swap_b32 v{ACC+8}, v{ACC+9}")
    e(f"s_lshl_b32 s{sT0}, s{sF}, 12")
    e(f"v_add_f32 v{ACC+8}, v{ACC+8}, v{ACC+9}")
    e(f"s_add_u32 s{sT0}, s{sT0}, {L_OA}")
    dpp_max16(e, ACC+8)
    e(f"v_add_u32 v{vT1}, s{sT0}, v{vL16}")
    e(f"s_mov_b32 exec_lo, 0x00010001")
    e(f"s_mov_b32 exec_hi, 0x00010001")
    e(f"ds_max_u32 v{vCT}, v{ACC+8} offset:{C_QMAX}")
    e("s_mov_b64 exec, -1")
    lds_wait(e, C_QRDY, 5, vT0, sleep=0)
    for i in range(4):
        e(f"ds_write_b128 v{vT1}, {vr(ACC+12,4)} offset:{1024*i}")
    lds_signal(e, C_Z, vT0)
    st.mark()
    e(f"s_setprio {FPRIO}")
    e("s_branch L_g1")
    emit_attention()
    e("L_g1:")
    abl_start = len(e.lines)
    fetch_nonce(e, AF)
    set_srd(e, sWA, 16, 512*1792*2)
    e(f"v_lshlrev_b32 v{vTA1}, 7, v{vL}")
    lds_wait(e, C_KVL, 8, vT0, sleep=2)
    st.mark()
    if PF1:
        e(f"s_lshr_b32 s{sT0}, s2, 3")
        e(f"s_mul_i32 s{sT0}, s{sT0}, {448*128}")
        e(f"s_lshl_b32 s{sT1}, s{sF}, 14")
        e(f"s_add_u32 s{sT0}, s{sT0}, s{sT1}")
        e(f"s_add_u32 s{sT1}, s{sT0}, 8192")
        e(f"buffer_load_dword v{vPF}, v{vTA1}, {sr(sWA,4)}, s{sT0} offen sc1")
        e(f"buffer_load_dword v{vPF}, v{vTA1}, {sr(sWA,4)}, s{sT1} offen sc1")
    D = 6
    Lskip1, Lg1d = e.label("g1skip"), e.label("g1done")
    sJ = sGRP
    e(f"s_lshl_b32 s{sJ}, s{sCG}, 2")
    e(f"s_add_u32 s{sJ}, s{sJ}, s{sF}")
    e(f"s_cmp_ge_u32 s{sJ}, 28")
    e(f"s_cbranch_scc1 {Lskip1}")
    e(f"s_lshl_b32 s{sSO}, s{sJ}, 7")
    def dma(k, va, vb, step):
        e(f"s_add_u32 m0, s{sRING}, {2048*(k % D)}")
        if k: e(f"s_add_u32 s{sSO}, s{sSO}, {step}")
        else: e("s_nop 0")
        e(f"buffer_load_dwordx4 v{va}, {sr(sWA,4)}, s{sSO} offen lds")
        e(f"buffer_load_dwordx4 v{vb}, {sr(sWA,4)}, s{sSO} offen offset:1024 lds")
    def areads(k, second):
        b = AF + 8*(k & 1)
        o = 2048*(k % D)
        e(f"ds_read_b64_tr_b16 {vr(b,2)}, v{vTA0} offset:{o}")
        e(f"ds_read_b64_tr_b16 {vr(b+2,2)}, v{vTA0} offset:{o+second}")
        e(f"ds_read_b64_tr_b16 {vr(b+4,2)}, v{vTA1} offset:{o}")
        e(f"ds_read_b64_tr_b16 {vr(b+6,2)}, v{vTA1} offset:{o+second}")
    def mfma4(k, bb0):
        a = AF + 8*(k & 1)
        for i in range(2):
            for j in range(2):
                d = ACC + 16*(2*i+j)
                e(f"{MFMA} {vr(d,16)}, {vr(a+4*i,4)}, {vr(bb0+4*j,4)}, {'0' if k == 0 else vr(d,16)}")
    NK = 32
    for k in range(D): dma(k, vD1A, vD1B, 16*3584)
    e(f"v_lshl_add_u32 v{vTA0}, v{vHH}, 10, v{vTRC}")
    e(f"v_add_u32 v{vTA0}, s{sRING}, v{vTA0}")
    e(f"v_xor_b32 v{vTA1}, 64, v{vTA0}")
    def g1reads(k):
        areads(k, 512)
        b = BF + 8*(k & 1)
        e(f"ds_read_b128 {vr(b,4)}, v{vXB} offset:{k*XS1}")
        e(f"ds_read_b128 {vr(b+4,4)}, v{vT2} offset:{k*XS1}")
    e(f"v_add_u32 v{vT2}, {XRT}, v{vXB}")
    e(f"s_waitcnt vmcnt({2*(D-1)})")
    g1reads(0)
    for k in range(NK):
        if k + 1 < NK:
            issued = min(NK, k + D)
            e(f"s_waitcnt vmcnt({2*(issued - (k+2))})")
            g1reads(k + 1)
            e("s_waitcnt lgkmcnt(6)")
        else:
            e("s_waitcnt lgkmcnt(0)")
        mfma4(k, BF + 8*(k & 1))
        if k + D < NK: dma(k + D, vD1A, vD1B, 16*3584)
    e(f"s_mul_i32 s{sT0}, s{sRP}, {2*112*1024}")
    e(f"s_lshl_b32 s{sT1}, s{sJ}, 12")
    e(f"s_add_u32 s{sT0}, s{sT0}, s{sT1}")
    e(f"s_add_u32 s{sT0}, s{sT0}, {HF}")
    e(f"s_add_u32 s{sT1}, s{sT0}, {112*1024}")
    e("s_nop 7")
    for a in range(2):
        for bb in range(2):
            d = ACC + 16*(2*a+bb)
            for i in range(8):
                e(f"v_cvt_pk_bf16_f32 v{d+i}, v{d+2*i}, v{d+2*i+1}")
            for i in range(8):
                e(f"v_pk_max_i16 v{d+i}, v{d+i}, 0")
            for half in range(2):
                e(f"buffer_store_dwordx4 {vr(d+4*half,4)}, v{vL16}, {sr(sWS,4)}, s{sT1 if bb else sT0} offen offset:{(2*a+half)*1024} sc1")
    e(f"s_lshl_b32 s{sT0}, s{sRP}, 5")
    e(f"s_add_u32 s{sT0}, s{sT0}, s{sJ}")
    e(f"s_lshl_b32 s{sT0}, s{sT0}, 7")
    e(f"s_add_u32 s{sT0}, s{sT0}, {HFL}")
    flag_set(e, AF, sT0)
    e(f"s_branch {Lg1d}")
    e(f"{Lskip1}:")
    e(f"s_lshr_b32 s{sT1}, s2, 6")
    e(f"s_lshl_b32 s{sT1}, s{sT1}, 2")
    e(f"s_add_u32 s{sT1}, s{sT1}, s{sF}")
    set_srd(e, sWA, 18, 512*1792*2)
    e(f"s_mul_i32 s{sT0}, s{sT1}, {896*128}")
    for i in range(14):
        e(f"buffer_load_dword v{vPF}, v{vTA1}, {sr(sWA,4)}, s{sT0} offen sc1")
        e(f"s_add_u32 s{sT0}, s{sT0}, 8192")
    set_srd(e, sWA, 12, 512*512*2)
    e(f"s_lshl_b32 s{sT0}, s{sT1}, 15")
    for i in range(4):
        e(f"buffer_load_dword v{vPF}, v{vTA1}, {sr(sWA,4)}, s{sT0} offen sc1")
        e(f"s_add_u32 s{sT0}, s{sT0}, 8192")
    e(f"{Lg1d}:")
    lds_signal(e, C_G1, vT0)
    st.mark()
    NK = 28
    e(f"v_lshl_add_u32 v{vTA0}, v{vHH}, 9, v{vTRC}")
    e(f"v_add_u32 v{vTA0}, s{sRING}, v{vTA0}")
    e(f"v_xor_b32 v{vTA1}, 64, v{vTA0}")
    set_srd(e, sWA, 18, 512*1792*2)
    e(f"s_mul_i32 s{sSO}, s{sF}, {448*1024}")
    e(f"s_lshl_b32 s{sT0}, s{sCG}, 7")
    e(f"s_add_u32 s{sSO}, s{sSO}, s{sT0}")
    for k in range(D): dma(k, vDA, vDB, 16384)
    lds_wait(e, C_G1, 4, vT0, sleep=2)
    stage_w512(e, 12, L_XN, sF, 4, sB0)
    set_srd(e, sWA, 18, 512*1792*2)
    e(f"v_min_u32 v{vT0}, 6, v{vL}")
    e(f"v_lshlrev_b32 v{vT0}, 7, v{vT0}")
    e(f"s_lshl_b32 s{sT0}, s{sRP}, 12")
    e(f"s_mul_i32 s{sT1}, s{sF}, {7*128}")
    e(f"s_add_u32 s{sT0}, s{sT0}, s{sT1}")
    e(f"s_add_u32 s{sT0}, s{sT0}, {HFL}")
    flag_poll(e, AF, vT0, sT0, sleep=8)
    st.mark()
    e(f"s_mul_i32 s{sB0}, s{sRP}, {2*112*1024}")
    e(f"s_mul_i32 s{sT1}, s{sF}, {28*1024}")
    e(f"s_add_u32 s{sB0}, s{sB0}, s{sT1}")
    e(f"s_add_u32 s{sB0}, s{sB0}, {HF}")
    e(f"s_add_u32 s{sB1}, s{sB0}, {112*1024}")
    DB = 8
    def bload(k):
        if k % 4 == 0 and k > 0:
            e(f"s_add_u32 s{sB0}, s{sB0}, 4096")
            e(f"s_add_u32 s{sB1}, s{sB1}, 4096")
        b = BF + 8*(k % DB)
        e(f"buffer_load_dwordx4 {vr(b,4)}, v{vL16}, {sr(sWS,4)}, s{sB0} offen offset:{(k%4)*1024} sc1")
        e(f"buffer_load_dwordx4 {vr(b+4,4)}, v{vL16}, {sr(sWS,4)}, s{sB1} offen offset:{(k%4)*1024} sc1")
    log = []
    for k in range(DB):
        bload(k); log += [("B", k)]*2
    def wait_for(items):
        last = max(i for i, it in enumerate(log) if it in items) if any(it in items for it in log) else -1
        e(f"s_waitcnt vmcnt({len(log) - 1 - last})")
    areads(0, 1024)
    for k in range(NK):
        if k + 1 < NK:
            wait_for([("A", k+1), ("B", k)])
            areads(k + 1, 1024)
            e("s_waitcnt lgkmcnt(4)")
        else:
            wait_for([("B", k)])
            e("s_waitcnt lgkmcnt(0)")
        mfma4(k, BF + 8*(k % DB))
        if k + D < NK:
            dma(k + D, vDA, vDB, 16384); log += [("A", k+D)]*2
        if k + DB < NK:
            bload(k + DB); log += [("B", k+DB)]*2
    st.mark()
    if ABL:
        keep = []
        for l in e.lines[abl_start:]:
            t = l.strip()
            if "m" in ABL and t.startswith("v_mfma"): continue
            if "g" in ABL and t.startswith("buffer_load_dwordx4"): continue
            if "l" in ABL and (t.startswith("ds_read_b64_tr") or t.startswith("ds_read_b128")): continue
            if "v" in ABL and (t.startswith("v_cvt_pk") or t.startswith("v_pk_max") or t.startswith("buffer_store_dwordx4")): continue
            keep.append(l)
        e.lines[abl_start:] = keep
    XR, G = AF, ACC
    vXO = vD1A
    e(f"s_lshr_b32 s{sT0}, s{sF}, 1")
    e(f"s_lshl_b32 s{sT1}, s{sCG}, 1")
    e(f"s_add_u32 s{sT0}, s{sT0}, s{sT1}")
    e(f"s_lshl_b32 s{sSO}, s{sT0}, 6")
    e(f"s_and_b32 s{sT0}, s{sF}, 1")
    e(f"s_lshl_b32 s{sT1}, s{sRP}, 1")
    e(f"s_add_u32 s{sB1}, s{sT0}, s{sT1}")
    e(f"s_lshl_b32 s{sB0}, s{sB1}, 15")
    e(f"s_add_u32 s{sSO}, s{sSO}, s{sB0}")
    e(f"s_add_u32 s{sB0}, s{sB0}, {OF}")
    e(f"s_lshl_b32 s{sB1}, s{sB1}, 12")
    e(f"s_add_u32 s{sB1}, s{sB1}, {OFL}")
    e(f"v_and_b32 v{vXO}, 31, v{vL}")
    e(f"v_lshlrev_b32 v{vXO}, 10, v{vXO}")
    e(f"v_lshl_add_u32 v{vXO}, v{vHH}, 3, v{vXO}")
    for q in range(4):
        e(f"buffer_load_dwordx2 {vr(XR+2*q,2)}, v{vXO}, {sr(sX,4)}, s{sSO} offen offset:{16*q}")
    e(f"v_add_u32 v{vT0}, s{sRING}, v{vL16}")
    Lr = [e.label("rq") for _ in range(4)]
    Lrd = e.label("rqd")
    for f in range(4):
        e(f"{Lr[f]}:")
        if f < 3:
            e(f"s_cmp_lg_u32 s{sF}, {f}")
            e(f"s_cbranch_scc1 {Lr[f+1]}")
        for q in range(4):
            if q == f: continue
            for i in range(4):
                e(f"ds_write_b128 v{vT0}, {vr(ACC+16*q+4*i,4)} offset:{4096*((q-f-1)&3)+1024*i}")
        if f:
            e("s_waitcnt lgkmcnt(0)")
            for i in range(0, 16, 2):
                e(f"v_mov_b64 {vr(ACC+i,2)}, {vr(ACC+16*f+i,2)}")
        if f < 3:
            e(f"s_branch {Lrd}")
    e(f"{Lrd}:")
    lds_signal(e, C_RED, vT2)
    for sl in range(3):
        e(f"s_add_u32 s{sT0}, s{sF}, {3 - sl}")
        e(f"s_and_b32 s{sT0}, s{sT0}, 3")
        e(f"s_mul_i32 s{sT0}, s{sT0}, {RINGB}")
        e(f"s_add_u32 s{sT0}, s{sT0}, {L_WQ + 4096*sl}")
        e(f"v_add_u32 v{BF+sl}, s{sT0}, v{vL16}")
    lds_wait(e, C_RED, 4, vT2, sleep=2)
    for sl in range(3):
        for i in range(4):
            e(f"ds_read_b128 {vr(ACC+16+16*sl+4*i,4)}, v{BF+sl} offset:{1024*i}")
    e("s_waitcnt vmcnt(0) lgkmcnt(0)")
    for i in range(0, 16, 2):
        e(f"v_pk_add_f32 {vr(ACC+i,2)}, {vr(ACC+i,2)}, {vr(ACC+16+i,2)}")
        e(f"v_pk_add_f32 {vr(ACC+32+i,2)}, {vr(ACC+32+i,2)}, {vr(ACC+48+i,2)}")
    for i in range(0, 16, 2):
        e(f"v_pk_add_f32 {vr(ACC+i,2)}, {vr(ACC+i,2)}, {vr(ACC+32+i,2)}")
    silu_pack(e, ACC, ACC+16)
    XP = ACC + 16
    for q in range(0, 8, 2):
        e(f"v_mov_b64 {vr(XP+q,2)}, {vr(XR+q,2)}")
    st.mark()
    SA = ACC + 24
    AW = 56
    OB = 72
    vFO, vCA = vD1B, vXB
    e(f"s_lshr_b32 s{sT1}, s{sF}, 1")
    e(f"s_lshl_b32 s{sT1}, s{sT1}, 6")
    e(f"v_lshl_add_u32 v{vTA0}, v{vHH}, 9, v{vTRC}")
    e(f"v_xor_b32 v{vTA0}, s{sT1}, v{vTA0}")
    assert L_XN == 0
    e(f"v_min_u32 v{vFO}, 23, v{vL}")
    e(f"v_lshlrev_b32 v{vFO}, 7, v{vFO}")
    e(f"s_and_b32 s{sT0}, s{sF}, 1")
    e(f"s_mul_i32 s{sT0}, s{sT0}, {OSL}")
    e(f"s_sub_u32 s{sT0}, {L_OA + OSL}, s{sT0}")
    e(f"v_mov_b32 v{vCA}, s{sT0}")
    def woread(dst, head):
        e(f"ds_read_b64_tr_b16 {vr(dst,2)}, v{vTA0} offset:{head*2048}")
        e(f"ds_read_b64_tr_b16 {vr(dst+2,2)}, v{vTA0} offset:{head*2048+1024}")
    seqA = [(i, c) for i in range(3) for c in range(8)]
    lds_wait(e, OCNT + 2*OSL, 8, vT1, sleep=4, vaddr=vCA)
    flag_poll(e, OB, vFO, sB1, sleep=2)
    for n in range(24):
        if n % 4 == 0 and n: e(f"s_add_u32 s{sB0}, s{sB0}, 4096")
        e(f"buffer_load_dwordx4 {vr(OB+4*n,4)}, v{vL16}, {sr(sWS,4)}, s{sB0} offen offset:{(n%4)*1024} sc1")
    for n in range(4): woread(AW + 4*n, 4*seqA[n][1] + seqA[n][0])
    for n in range(24):
        e(f"s_waitcnt vmcnt({23-n}) lgkmcnt({2*min(3, 23-n)})")
        e(f"{MFMA} {vr(SA,16)}, {vr(AW+4*(n%4),4)}, {vr(OB+4*n,4)}, {'0' if n == 0 else vr(SA,16)}")
        if n + 4 < 24: woread(AW + 4*(n%4), 4*seqA[n+4][1] + seqA[n+4][0])
    st.mark()
    e("s_setprio 3")
    AW2 = OB + 32
    for c in range(8):
        woread(AW2 + 4*c, 4*c + 3)
        if c == 5: e("s_waitcnt lgkmcnt(4)")
    XF = OB + 64
    for q in range(8):
        e(f"v_lshlrev_b32 v{XF+2*q}, 16, v{XP+q}")
        e(f"v_and_b32 v{XF+2*q+1}, 0xffff0000, v{XP+q}")
    e(f"v_min_u32 v{vFO}, {7*128}, v{vFO}")
    e(f"s_add_u32 s{sB1}, s{sB1}, 3072")
    e(f"s_add_u32 s{sB0}, s{sB0}, 4096")
    e(f"s_add_u32 s{sT0}, s{sB0}, 4096")
    lds_wait(e, OCNT, 8, vT1, sleep=2, vaddr=vCA)
    flag_poll(e, OB, vFO, sB1, sleep=1)
    for c in range(8):
        e(f"buffer_load_dwordx4 {vr(OB+4*c,4)}, v{vL16}, {sr(sWS,4)}, s{sB0 if c < 4 else sT0} offen offset:{(c%4)*1024} sc1")
    for c in range(8):
        e(f"s_waitcnt vmcnt({7-c})")
        e(f"{MFMA} {vr(SA,16)}, {vr(AW2+4*c,4)}, {vr(OB+4*c,4)}, {vr(SA,16)}")
    e("s_nop 11")
    T4 = AW
    for q in range(4):
        a = SA + 4*q
        e(f"v_cvt_pk_bf16_f32 v{T4}, v{a}, v{a+1}")
        e(f"v_cvt_pk_bf16_f32 v{T4+1}, v{a+2}, v{a+3}")
        e(f"v_lshlrev_b32 v{a}, 16, v{T4}")
        e(f"v_and_b32 v{a+1}, 0xffff0000, v{T4}")
        e(f"v_lshlrev_b32 v{a+2}, 16, v{T4+1}")
        e(f"v_and_b32 v{a+3}, 0xffff0000, v{T4+1}")
        e(f"v_pk_mul_f32 {vr(a,2)}, {vr(a,2)}, {vr(G+4*q,2)}")
        e(f"v_pk_mul_f32 {vr(a+2,2)}, {vr(a+2,2)}, {vr(G+4*q+2,2)}")
        e(f"v_cvt_pk_bf16_f32 v{T4}, v{a}, v{a+1}")
        e(f"v_cvt_pk_bf16_f32 v{T4+1}, v{a+2}, v{a+3}")
        e(f"v_lshlrev_b32 v{a}, 16, v{T4}")
        e(f"v_and_b32 v{a+1}, 0xffff0000, v{T4}")
        e(f"v_lshlrev_b32 v{a+2}, 16, v{T4+1}")
        e(f"v_and_b32 v{a+3}, 0xffff0000, v{T4+1}")
        e(f"v_pk_add_f32 {vr(a,2)}, {vr(a,2)}, {vr(XF+4*q,2)}")
        e(f"v_pk_add_f32 {vr(a+2,2)}, {vr(a+2,2)}, {vr(XF+4*q+2,2)}")
        e(f"v_cvt_pk_bf16_f32 v{a}, v{a}, v{a+1}")
        e(f"v_cvt_pk_bf16_f32 v{a+1}, v{a+2}, v{a+3}")
        e(f"buffer_store_dwordx2 {vr(a,2)}, v{vXO}, {sr(sOUT,4)}, s{sSO} offen offset:{16*q}")
    Lne = e.label("ne")
    e(f"s_xor_b32 s{sT0}, s{sF}, 3")
    e(f"s_or_b32 s{sT0}, s{sT0}, s2")
    e(f"s_cmp_lg_u32 s{sT0}, 0")
    e(f"s_cbranch_scc1 {Lne}")
    e(f"s_mov_b32 s{sT0}, {EPOCH}")
    flag_set(e, OB, sT0)
    e(f"{Lne}:")
    if DBGT:
        e("s_waitcnt vmcnt(0)")
        dbg_time(e, 2, False, vT0, vT1)
        e(f"v_mov_b32 v{vT0}, s98")
        e(f"v_not_b32 v{vT2}, s98")
        e(f"v_mov_b32 v{vT1}, 0")
        e("s_mov_b64 exec, 1")
        e(f"global_atomic_umax v{vT1}, v{vT2}, s[22:23]")
        e(f"global_atomic_umax v{vT1}, v{vT0}, s[22:23] offset:4")
        e("s_mov_b64 exec, -1")
    if common.STAMP: e("s_waitcnt vmcnt(0)")
    st.mark(); st.mark(True)
    st.flush(sW, sWS, vT0, vT1, 12)
    e("s_endpgm")
    attention_slow(e)

def gen(e, name):
    kernel_begin(e, name)
    stA, stF = Stamps(e, 0), Stamps(e, 0)
    e("s_load_dwordx16 s[4:19], s[0:1], 0")
    e("s_load_dwordx4 s[20:23], s[0:1], 64")
    e("s_load_dwordx2 s[24:25], s[0:1], 80")
    e(f"s_cmp_ge_u32 s2, 256")
    e(f"s_cbranch_scc1 L_end")
    if common.STAMP:
        e("s_memrealtime s[98:99]")
        e("s_memtime s[96:97]")
        stA.n = stF.n = 2
    e(f"v_lshrrev_b32 v{vT0}, 6, v0")
    e(f"v_and_b32 v{vL}, 63, v0")
    e(f"v_readfirstlane_b32 s{sW}, v{vT0}")
    e("s_getpc_b64 s[26:27]")
    e(f"v_mov_b32 v{vCT}, {L_C}")
    e(f"s_cmp_lg_u32 s{sW}, 0")
    e(f"s_cbranch_scc1 L_nopf")
    e(f"s_lshr_b32 s{sT0}, s2, 3")
    e(f"s_lshl_b32 s{sT0}, s{sT0}, 10")
    e(f"v_lshlrev_b32 v{vT1}, 7, v0")
    e(f"v_add_u32 v{vT1}, s{sT0}, v{vT1}")
    e(f"v_min_u32 v{vT1}, CODE_BYTES, v{vT1}")
    e(f"s_mov_b64 exec, 0xff")
    e(f"global_load_dword v{vT2}, v{vT1}, s[26:27]")
    e("s_mov_b64 exec, -1")
    e(f"v_lshl_add_u32 v{vT0}, v{vL}, 2, v{vCT}")
    e(f"v_mov_b32 v{vT1}, 0")
    e(f"ds_write_b32 v{vT0}, v{vT1}")
    e("L_nopf:")
    decode_ids(e)
    e(f"v_lshlrev_b32 v{vL16}, 4, v{vL}")
    e(f"s_mov_b32 s{sONES}, 0x3f803f80")
    e(f"s_mov_b32 s{sMASK}, 0xffff")
    e(f"s_mov_b32 s{sMASK+1}, 0xffff")
    e(f"v_lshrrev_b32 v{vT0}, 2, v{vL}")
    e(f"v_and_b32 v{vT0}, 4, v{vT0}")
    e(f"v_and_b32 v{vT1}, 7, v{vL}")
    e(f"v_xor_b32 v{vT1}, v{vT1}, v{vT0}")
    e(f"v_lshlrev_b32 v{vT1}, 4, v{vT1}")
    e(f"v_lshrrev_b32 v{vT0}, 3, v{vL}")
    e(f"v_lshl_add_u32 v{vDA}, v{vT0}, 10, v{vT1}")
    e(f"v_add_u32 v{vDB}, {8192-1024}, v{vDA}")
    for d, n in ((sX, 2048*512*2), (sWS, WS_BYTES), (sOUT, 2048*512*2)):
        e(f"s_mov_b32 s{d+2}, {n:#x}")
        e(f"s_mov_b32 s{d+3}, 0x20000")
    e("s_waitcnt lgkmcnt(0)")
    if common.STAMP:
        e(f"s_mov_b32 s{common.S_ST}, s98")
        e(f"s_mov_b32 s{common.S_ST+1}, s96")
    for d, b in ((sX, 4), (sWS, 24), (sOUT, 20)):
        e(f"s_mov_b64 s[{d}:{d+1}], s[{b}:{b+1}]")
    e(f"s_cmp_ge_u32 s{sW}, 8")
    e(f"s_cbranch_scc1 L_ffn")
    e("s_barrier")
    e("s_branch L_attn")
    e("L_ffn:")
    ffn_role(e, stF, lambda: attention_role(e, stA))
    e("L_end:")
    e("s_endpgm")
    e("L_code_end:")
    e(f".set CODE_BYTES, L_code_end - {name} - 128")
    return 168

if __name__ == "__main__":
    if "--stamp" in sys.argv:
        sys.argv.remove("--stamp"); common.STAMP = True
    out = sys.argv[1] if len(sys.argv) > 1 else "cdna_kernels/" + NAME + ".s"
    HDR = open("cdna_kernels/" + NAME + ".s.ref").read().split("; Override")[0]
    e = Asm()
    e('.amdgcn_target "amdgcn-amd-amdhsa--gfx950"')
    e(".text")
    name = NAME + "_kernel"
    nv = gen(e, name)
    hdr = HDR + f"; @launch grid=(256,1,1) block=(768,1,1) lds={LDS_BYTES}\n"
    open(out, "w").write(hdr + e.text() + '.section .rodata,"a"\n' + descriptor(name, nv))
```

```python
import sys
from common import *
import common
import struct
def f32bits(x): return struct.unpack("<I", struct.pack("<f", x))[0]
LOG2E = 1.4426950408889634
QSCALE = 0.25 * LOG2E
BOUND2 = 40.0 * 40.0
M16 = "v_mfma_f32_16x16x32_bf16"

KF   = 0x000000
VF   = 0x010000
KMAX = 0x020000
EPOCH = 0x021000
KVFL = 0x028000
HFL  = 0x040000
OFL  = 0x080000
HF   = 0x100000
OF   = 0x800000
XS2, XS1, XRT = 528, 1056, 33792
L_XN  = 0
L_WQ  = 67584
L_R   = L_WQ + 65536
OSL   = 4608
L_OA  = L_WQ + 49152
RINGB = 12288
L_Q   = L_R + 20480
L_C   = L_Q + 8192
C_KVX, C_QRDY, C_QMAX, C_REDO, C_ADONE, C_G1, C_RED, C_WO, C_S1, C_S2, C_Z, C_KVD, C_KVL, C_TICK, C_S0, C_XN = [4*i for i in range(16)]
C_QW = 72
C_NON = 64
assert L_OA + 8*OSL == L_Q
L_RM  = L_C + 256
LDS_BYTES = L_RM + 1024
assert LDS_BYTES <= 163840
SPIN_MAX = 1 << 18
import os
OPT = dict(kv.split("=") for kv in os.environ.get("FOPT", "").split(",") if kv)
FPRIO = int(OPT.get("fprio", 1))
BOOST = int(OPT.get("boost", 1))
KVD_ACK = int(OPT.get("kvdack", 0))
PF1 = int(OPT.get("pf1", 0))
ABL = OPT.get("abl", "")
DBGT = int(OPT.get("dbgt", 0))
def dbg_time(e, idx, inv, va, vb):
    if not DBGT: return
    e("s_memrealtime s[96:97]")
    e("s_waitcnt lgkmcnt(0)")
    if inv: e("s_not_b32 s96, s96")
    e(f"v_mov_b32 v{va}, s96")
    e(f"v_mov_b32 v{vb}, {4*idx}")
    e("s_mov_b64 exec, 1")
    e(f"global_atomic_umax v{vb}, v{va}, s[22:23]")
    e("s_mov_b64 exec, -1")
GROUP = int(OPT.get("group", 2))
PF2 = int(OPT.get("pf2", 1))
QFIRST = int(OPT.get("qfirst", 1))
XEARLY = int(OPT.get("xearly", 0))
YDELAY = int(OPT.get("ydelay", 0))
SENT = int(OPT.get("sent", 1))

sX, sWS, sWA, sOUT, sDBG = 28, 32, 36, 40, 44
sW, sRP, sCG, sT0, sT1, sT2, sT3, sCNT, sF = 48, 49, 50, 51, 52, 53, 54, 55, 56
sONES = 57
sNON = 58
sMASK = 60
sLN = 62
sSP = 3
vL, vL16, vT0, vT1, vT2, vCT = 1, 2, 3, 4, 5, 6
vDA, vDB = 7, 8

def decode_ids(e):
    e(f"s_and_b32 s{sRP}, s2, 7")
    e(f"s_lshl_b32 s{sRP}, s{sRP}, 2")
    e(f"s_lshr_b32 s{sCG}, s2, 6")
    e(f"s_add_u32 s{sRP}, s{sRP}, s{sCG}")
    e(f"s_lshr_b32 s{sCG}, s2, 3")
    e(f"s_and_b32 s{sCG}, s{sCG}, 7")

def lds_signal(e, off, vtmp):
    e("s_waitcnt lgkmcnt(0)")
    e(f"v_mov_b32 v{vtmp}, 1")
    e("s_mov_b64 exec, 1")
    e(f"ds_add_u32 v{vCT}, v{vtmp} offset:{off}")
    e("s_mov_b64 exec, -1")

def lds_wait(e, off, n, vtmp, sleep=1, vaddr=None):
    L, D = e.label("lw"), e.label("lwd")
    vaddr = vCT if vaddr is None else vaddr
    e(f"s_mov_b32 s{sSP}, {SPIN_MAX*8}")
    e(f"{L}:")
    e(f"ds_read_b32 v{vtmp}, v{vaddr} offset:{off}")
    e(f"s_sub_u32 s{sSP}, s{sSP}, 1")
    e("s_waitcnt lgkmcnt(0)")
    e(f"v_cmp_gt_u32 vcc, {n}, v{vtmp}")
    e(f"s_cbranch_vccz {D}")
    e(f"s_sleep {sleep}")
    e(f"s_cbranch_scc0 {L}")
    e(f"{D}:")

def fetch_nonce(e, vt):
    e(f"ds_read_b64 {vr(vt,2)}, v{vCT} offset:{C_NON}")
    e("s_waitcnt lgkmcnt(0)")
    e(f"v_readfirstlane_b32 s{sNON}, v{vt}")
    e(f"v_readfirstlane_b32 s{sNON+1}, v{vt+1}")

def flag_poll(e, vt, voff, soff, sleep=1):
    L, D = e.label("fp"), e.label("fpd")
    e(f"s_mov_b32 s{sSP}, {SPIN_MAX}")
    e(f"{L}:")
    e(f"buffer_load_dwordx2 {vr(vt,2)}, v{voff}, {sr(sWS,4)}, s{soff} offen sc1")
    e(f"s_sub_u32 s{sSP}, s{sSP}, 1")
    e("s_waitcnt vmcnt(0)")
    e(f"v_cmp_ne_u64 vcc, {sr(sNON,2)}, {vr(vt,2)}")
    e(f"s_cbranch_vccz {D}")
    e(f"s_sleep {sleep}")
    e(f"s_cbranch_scc0 {L}")
    e(f"{D}:")

def flag_set(e, vt, soff):
    e(f"v_mov_b32 v{vt}, s{sNON}")
    e(f"v_mov_b32 v{vt+1}, s{sNON+1}")
    e(f"v_mov_b32 v{vt+2}, 0")
    e("s_waitcnt vmcnt(0)")
    e("s_mov_b64 exec, 1")
    e(f"buffer_store_dwordx2 {vr(vt,2)}, v{vt+2}, {sr(sWS,4)}, s{soff} offen sc1")
    e("s_mov_b64 exec, -1")

def set_srd(e, d, base, nbytes):
    srd(e, d, base, nbytes)

def layernorm_rows(e, n, X, T, U, srow, vm_after, mid=None, st=None):
    S1, S2 = T, T + n
    def dots(js):
        for i in range(4):
            for j in js:
                x = X + 4*j + i
                e(f"v_dot2_f32_bf16 v{S1+j}, v{x}, s{sONES}, {'0' if i == 0 else 'v' + str(S1+j)}")
                e(f"v_dot2_f32_bf16 v{S2+j}, v{x}, v{x}, {'0' if i == 0 else 'v' + str(S2+j)}")
    for j in range(0, n, 2):
        if vm_after is not None: e(f"s_waitcnt vmcnt({vm_after + n - 2 - j})")
        dots([j, j+1])
    e("s_nop 2")
    if st: st.mark()
    A = T + 2*n
    p32 = [(0, 2), (1, 3)] + ([(4, 5)] if n == 6 else [])
    for base in (S1, S2):
        for (a, b) in p32:
            e(f"v_permlane32_swap_b32 v{base+a}, v{base+b}")
    for base in (S1, S2):
        for (a, b) in p32:
            e(f"v_add_f32 v{base+a}, v{base+a}, v{base+b}")
    if n == 6:
        e(f"v_mov_b32 v{S1+5}, v{S1+4}")
        e(f"v_mov_b32 v{S2+5}, v{S2+4}")
    e("s_nop 1")
    p16 = [(0, 1)] + ([(4, 5)] if n == 6 else [])
    for base in (S1, S2):
        for (a, b) in p16:
            e(f"v_permlane16_swap_b32 v{base+a}, v{base+b}")
    e("s_nop 0")
    for base in (S1, S2):
        for (a, b) in p16:
            e(f"v_add_f32 v{base+a}, v{base+a}, v{base+b}")
    G = [0] + ([4] if n == 6 else [])
    for rot in (8, 4, 2, 1):
        e("s_nop 1" if len(G) == 1 else "s_nop 0")
        for g in G:
            for base in (S1, S2):
                e(f"v_add_f32_dpp v{base+g}, v{base+g}, v{base+g} row_ror:{rot} row_mask:0xf bank_mask:0xf")
    def each(fmt):
        for gi, g in enumerate(G):
            e(fmt.format(m=S1+g, v=S2+g, t=A+gi))
    each(f"v_mul_f32 v{{m}}, {f32bits(1/512):#x}, v{{m}}")
    each(f"v_mul_f32 v{{v}}, {f32bits(1/512):#x}, v{{v}}")
    each("v_fma_f32 v{v}, -v{m}, v{m}, v{v}")
    each("v_max_f32 v{v}, 0, v{v}")
    each("v_cvt_pk_bf16_f32 v{t}, v{m}, v{v}")
    each("v_lshlrev_b32 v{m}, 16, v{t}")
    each("v_and_b32 v{v}, 0xffff0000, v{t}")
    each(f"v_add_f32 v{{v}}, {f32bits(1e-5):#x}, v{{v}}")
    each("v_cvt_pk_bf16_f32 v{v}, v{v}, v{v}")
    each("v_lshlrev_b32 v{v}, 16, v{v}")
    each("v_sqrt_f32 v{v}, v{v}")
    e("s_nop 0")
    each("v_cvt_pk_bf16_f32 v{v}, v{v}, v{v}")
    each("v_lshlrev_b32 v{v}, 16, v{v}")
    each("v_rcp_f32 v{v}, v{v}")
    e("s_nop 0")
    each("v_mul_f32 v{m}, -v{m}, v{v}")
    e("s_nop 0")
    if mid: mid()
    if st: st.mark()
    lane_of = [0, 16, 32, 48, 0, 32]
    grp_of = [0, 0, 0, 0, 4, 4]
    vA = A + 2
    e(f"v_mul_u32_u24 v{vA}, {XS2}, v{vL}")
    AD, CC = A + 3, A + 4
    assert CC % 2 == 0 and U % 2 == 0
    def head(j):
        e(f"v_readlane_b32 s{sLN + 2*(j & 1)}, v{S2+grp_of[j]}, {lane_of[j]}")
        e(f"v_readlane_b32 s{sLN+4}, v{S1+grp_of[j]}, {lane_of[j]}")
        x, P = X + 4*j, U + 8*(j & 1)
        for i in range(4):
            e(f"v_lshlrev_b32 v{P+2*i}, 16, v{x+i}")
            e(f"v_and_b32 v{P+2*i+1}, 0xffff0000, v{x+i}")
            if i == 1: e(f"v_mov_b32 v{CC + 2*(j & 1)}, s{sLN+4}")
    def fma(j):
        P = U + 8*(j & 1)
        for i in range(4):
            e(f"v_pk_fma_f32 {vr(P+2*i,2)}, {vr(P+2*i,2)}, {sr(sLN + 2*(j & 1),2)}, {vr(CC + 2*(j & 1),2)} op_sel_hi:[1,0,0]")
    def tail(j):
        x, P = X + 4*j, U + 8*(j & 1)
        e(f"v_add_u32 v{AD}, s{srow[j]}, v{vA}")
        for i in range(4):
            e(f"v_cvt_pk_bf16_f32 v{x+i}, v{P+2*i}, v{P+2*i+1}")
        e(f"ds_write_b128 v{AD}, {vr(x,4)}")
    head(0)
    for j in range(n):
        fma(j)
        if j + 1 < n: head(j + 1)
        tail(j)

def tr_common(e, vd, t0, t1):
    e(f"v_and_b32 v{t0}, 12, v{vL}")
    e(f"v_lshlrev_b32 v{vd}, 5, v{t0}")
    e(f"v_lshrrev_b32 v{t0}, 3, v{vL}")
    e(f"v_and_b32 v{t0}, 2, v{t0}")
    e(f"v_bfe_u32 v{t1}, v{vL}, 1, 1")
    e(f"v_or_b32 v{t0}, v{t0}, v{t1}")
    e(f"v_lshrrev_b32 v{t1}, 1, v{vL}")
    e(f"v_and_b32 v{t1}, 4, v{t1}")
    e(f"v_xor_b32 v{t0}, v{t0}, v{t1}")
    e(f"v_lshl_add_u32 v{vd}, v{t0}, 4, v{vd}")
    e(f"v_and_b32 v{t0}, 1, v{vL}")
    e(f"v_lshl_add_u32 v{vd}, v{t0}, 3, v{vd}")

def dpp_max16(e, v):
    for ctl in ("row_ror:8", "row_ror:4", "row_ror:2", "row_ror:1"):
        e("s_nop 1")
        e(f"v_max_f32_dpp v{v}, v{v}, v{v} {ctl} row_mask:0xf bank_mask:0xf")

def swap_op(e, op, kind, v, t):
    e(f"v_mov_b32 v{t}, v{v}")
    e("s_nop 1")
    e(f"v_permlane{kind}_swap_b32 v{v}, v{t}")
    e("s_nop 0")
    e(f"{op} v{v}, v{v}, v{t}")


OCNT = 4096 + 256
def stage_w512(e, base_sreg, lbase, sIDX, nparts, sSO):
    rows = 512 // nparts
    set_srd(e, sWA, base_sreg, 512*512*2)
    e(f"s_mul_i32 s{sSO}, s{sIDX}, {rows*1024}")
    e(f"s_lshl_b32 s{sT0}, s{sCG}, 7")
    e(f"s_add_u32 s{sSO}, s{sSO}, s{sT0}")
    e(f"s_mul_i32 s{sT0}, s{sIDX}, {rows*128}")
    for i in range(rows // 16):
        e(f"s_add_u32 m0, s{sT0}, {lbase + 2048*i}")
        if i: e(f"s_add_u32 s{sSO}, s{sSO}, 16384")
        else: e("s_nop 0")
        e(f"buffer_load_dwordx4 v{vDA}, {sr(sWA,4)}, s{sSO} offen lds")
        e(f"buffer_load_dwordx4 v{vDB}, {sr(sWA,4)}, s{sSO} offen offset:1024 lds")

A_Q, A_KR, A_VR, A_S0, A_S1, A_O = 12, 16, 48, 112, 128, 144
vOA, vQA, vVO = 7, 8, 9
vONE = 9
def a_flush(e):
    O = A_O
    dst = {8: O+10, 7: O+12, 6: O+14, 5: O+8, 4: O+6, 3: O+4, 2: 10, 1: O+2, 0: O}
    prev = None
    for r in range(8, -1, -1):
        e(f"v_cvt_f64_f32 {vr(dst[r],2)}, v{O+r}")
        if prev is not None and prev != 8:
            e(f"ds_add_f64 v{vOA}, {vr(dst[prev],2)} offset:{512*prev}")
        prev = r
    e(f"ds_add_f64 v{vOA}, {vr(dst[0],2)}")
    e("s_mov_b32 exec_hi, 0")
    e(f"ds_add_f64 v{vOA}, {vr(dst[8],2)} offset:4096")
    e("s_mov_b32 exec_lo, 1")
    e(f"ds_add_u32 v{vOA}, v{vONE} offset:{OCNT}")
    e("s_mov_b64 exec, -1")

def attention_role(e, st):
    Q, KR, VR, S0, S1, O = A_Q, A_KR, A_VR, A_S0, A_S1, A_O
    X, T = 112, 136
    e("L_attn:")
    e(f"s_lshr_b32 s{sT3}, s{sCG}, 1")
    e(f"s_lshl_b32 s{sT3}, s{sT3}, 4")
    e(f"s_mul_i32 s{sT2}, s{sW}, 6")
    e(f"s_add_u32 s{sT2}, s{sT2}, s{sT3}")
    e(f"s_lshl_b32 s{sT1}, s{sRP}, 16")
    rows = [84, 85, 86, 87, 88, 89]
    for j in range(6):
        r = rows[j]
        e(f"s_add_u32 s{r}, s{sT2}, {16+j}")
        e(f"s_and_b32 s{r}, s{r}, 63")
        e(f"s_lshl_b32 s{sT0}, s{r}, 10")
        e(f"s_add_u32 s{sT0}, s{sT0}, s{sT1}")
        e(f"buffer_load_dwordx4 {vr(X+4*j,4)}, v{vL16}, {sr(sX,4)}, s{sT0} offen")
    for j in range(6):
        r = rows[j]
        e(f"s_lshr_b32 s{sT0}, s{r}, 5")
        e(f"s_mul_i32 s{sT0}, s{sT0}, {XRT - 512}")
        e(f"s_lshl_b32 s{r}, s{r}, 4")
        e(f"s_add_u32 s{r}, s{r}, s{sT0}")
    if XEARLY: e("s_barrier")
    Lnw = e.label("nowq")
    e(f"s_cmp_lt_u32 s{sW}, 4")
    e(f"s_cbranch_scc1 {Lnw}")
    e(f"s_sub_u32 s{sT3}, s{sW}, 4")
    stage_w512(e, 6, L_WQ, sT3, 4, sT1)
    e("s_waitcnt vmcnt(16)")
    Lnw2 = e.label("nowq2")
    e(f"s_branch {Lnw2}")
    e(f"{Lnw}:")
    e("s_waitcnt vmcnt(0)")
    e(f"{Lnw2}:")
    e("s_setprio 2")
    st.mark()
    layernorm_rows(e, 6, X, T, 16, rows, None, st=st if OPT.get("lnst") else None)
    if OPT.get("lnst"): st.mark()
    e("s_waitcnt vmcnt(0)")
    lds_signal(e, C_XN, vT0)
    e("s_setprio 0")
    st.mark()
    e(f"v_and_b32 v{vT0}, 31, v{vL}")
    e(f"v_cmp_eq_u32 vcc, 16, v{vT0}")
    e(f"v_mov_b32 v{vT1}, 0x3f803f80")
    e(f"v_and_b32 v{vVO}, 15, v{vL}")
    e(f"v_cndmask_b32 v{VR}, 0, v{vT1}, vcc")
    e(f"v_cndmask_b32 v{VR+1}, 0, v{vT1}, vcc")
    for i in range(2, 64, 2):
        e(f"v_mov_b64 {vr(VR+i,2)}, {vr(VR,2)}")
    e(f"v_lshlrev_b32 v{vT2}, 2, v{vVO}")
    e(f"v_lshlrev_b32 v{vVO}, 4, v{vVO}")
    e(f"v_lshrrev_b32 v{vT1}, 5, v{vL}")
    e(f"v_lshl_add_u32 v{vVO}, v{vT1}, 8, v{vVO}")
    e(f"v_lshlrev_b32 v{vOA}, 3, v{vL}")
    e(f"v_add_u32 v{vOA}, {L_OA + 7*OSL}, v{vOA}")
    e(f"v_add_u32 v{vQA}, {L_Q}, v{vL16}")
    e(f"v_lshlrev_b32 v{vT0}, 7, v{vT0}")
    e(f"s_lshl_b32 s{sT0}, s{sW}, 12")
    e(f"s_add_u32 s{sT0}, s{sT0}, {KVFL}")
    sK0, sK1, sV0, sV1, sKM = 84, 85, 86, 87, 88
    e(f"s_lshl_b32 s{sKM}, s{sW}, 6")
    e(f"s_add_u32 s{sKM}, s{sKM}, {KMAX}")
    e(f"s_lshl_b32 s{sK0}, s{sW}, 13")
    e(f"s_add_u32 s{sK1}, s{sK0}, {KF + 4096}")
    e(f"s_add_u32 s{sV0}, s{sK0}, {VF}")
    e(f"s_add_u32 s{sV1}, s{sK0}, {VF + 4096}")
    assert KF == 0
    lds_wait(e, C_KVD, 1, vT1)
    fetch_nonce(e, S0)
    st.mark()
    if YDELAY:
        Ly = e.label("old")
        e(f"s_cmp_lt_u32 s{sW}, 4")
        e(f"s_cbranch_scc1 {Ly}")
        lds_wait(e, C_KVL, 4, vT1, sleep=2)
        e(f"{Ly}:")
    flag_poll(e, S0, vT0, sT0)
    st.mark()
    log = []
    def ldk(t):
        log.append(("K", t))
        return [f"buffer_load_dwordx4 {vr(KR+4*t,4)}, v{vL16}, {sr(sWS,4)}, s{sK0 if t < 4 else sK1} offen offset:{(t%4)*1024} sc1"]
    def ldv(t):
        log.extend([("V", t)]*2)
        return [f"s_mov_b64 exec, {sr(sMASK,2)}"] + \
               [f"buffer_load_dwordx4 {vr(VR+8*t+4*h,4)}, v{vVO}, {sr(sWS,4)}, s{sV0 if t < 4 else sV1} offen offset:{(t%4)*1024+512*h} sc1" for h in range(2)] + \
               ["s_mov_b64 exec, -1"]
    def wait_for(items):
        last = max(i for i, it in enumerate(log) if it in items)
        return f"s_waitcnt vmcnt({len(log) - 1 - last})"
    e(f"buffer_load_dword v{vT2}, v{vT2}, {sr(sWS,4)}, s{sKM} offen sc1"); log.append(("M", 0))
    for l in ldk(0): e(l)
    for t in range(7):
        for l in ldk(t+1) + ldv(t): e(l)
    for l in ldv(7): e(l)
    lds_signal(e, C_KVL, vONE)
    lds_wait(e, C_QW, 2 if QFIRST else 4, vT0)
    e(f"ds_read_b128 {vr(Q,4)}, v{vQA}")
    e(wait_for([("K", 0)]))
    e("s_waitcnt lgkmcnt(0)")
    e(f"{MFMA} {vr(S0,16)}, {vr(KR,4)}, {vr(Q,4)}, 0")
    dpp_max16(e, vT2)
    e("s_nop 1")
    e(f"s_mov_b32 s{sCNT}, 7")
    if DBGT:
        e("s_memrealtime s[98:99]")
        e("s_waitcnt lgkmcnt(0)")
    st.mark()
    def qtile(first):
        for t in range(8):
            a = S0 if (t & 1) == 0 else S1
            b = S1 if (t & 1) == 0 else S0
            tp = (t - 1) % 8
            tn = (t + 1) % 8
            ex = [f"v_exp_f32 v{a+i}, v{a+i}" for i in range(16)]
            pk = [f"v_cvt_pk_bf16_f32 v{a+i}, v{a+2*i}, v{a+2*i+1}" for i in range(8)]
            c0 = "0" if t == 1 else vr(O,16)
            pv0 = [f"{MFMA} {vr(O,16)}, {vr(VR+8*tp,4)}, {vr(b,4)}, {c0}"]
            pv1 = [f"{MFMA} {vr(O,16)}, {vr(VR+8*tp+4,4)}, {vr(b+4,4)}, {vr(O,16)}"]
            qk = [f"{MFMA} {vr(b,16)}, {vr(KR+4*tn,4)}, {vr(Q,4)}, 0"]
            wait, extra = [], []
            if first:
                if t == 0: pv0 = pv1 = []
                need = ([("K", t+1)] if t < 7 else []) + ([("V", t-1)] if t > 0 else [])
                wait = [wait_for(need)]
            if t == 7: wait += ["s_waitcnt lgkmcnt(0)"]
            if t == 6: extra += [f"ds_read_b128 {vr(Q,4)}, v{vQA} offset:1024"]
            hi, lo = (["s_setprio 3"], ["s_setprio 0"]) if BOOST else (["s_nop 0"], [])
            seq = wait + hi + pv0 + ex[0:3] + pv1 + ex[3:6] + qk + lo + extra
            seq += [pk[0], pk[1]] + ex[6:8] + [pk[2]] + ex[8:10] + [pk[3]] + ex[10:12] + [pk[4]] + ex[12:14] + [pk[5]] + ex[14:16] + [pk[6], pk[7]]
            for x in seq: e(x)
            if t == 0 and not first:
                a_flush(e)
                e(f"v_subrev_u32 v{vOA}, {OSL}, v{vOA}")
        e(f"v_add_u32 v{vQA}, 1024, v{vQA}")
    qtile(True)
    lds_wait(e, C_Z, 4, vT0)
    e(f"ds_read_b32 v{vT1}, v{vCT} offset:{C_QMAX}")
    e("s_waitcnt vmcnt(0) lgkmcnt(0)")
    e(f"v_mul_f32 v{vT2}, v{vT2}, v{vT1}")
    e(f"v_cmp_nge_f32 vcc, {f32bits(BOUND2):#x}, v{vT2}")
    Lok = e.label("bok")
    e(f"s_cbranch_vccz {Lok}")
    lds_signal(e, C_REDO, vT0)
    e(f"{Lok}:")
    Lloop = e.label("aloop")
    e(".p2align 6")
    e(f"{Lloop}:")
    qtile(False)
    e(f"s_sub_u32 s{sCNT}, s{sCNT}, 1")
    e(f"s_cmp_lg_u32 s{sCNT}, 0")
    e(f"s_cbranch_scc1 {Lloop}")
    e(f"{MFMA} {vr(O,16)}, {vr(VR+56,4)}, {vr(S1,4)}, {vr(O,16)}")
    e(f"{MFMA} {vr(O,16)}, {vr(VR+60,4)}, {vr(S1+4,4)}, {vr(O,16)}")
    e(f"v_mov_b32 v{vT2}, {L_OA + 7*OSL}")
    e("s_nop 10")
    a_flush(e)
    lds_signal(e, C_ADONE, vT0)
    if DBGT:
        dbg_time(e, 5, False, vT0, vT1)
        e(f"v_mov_b32 v{vT0}, s98")
        e(f"v_not_b32 v10, s98")
        e(f"v_mov_b32 v{vT1}, 0")
        e("s_mov_b64 exec, 1")
        e(f"global_atomic_umax v{vT1}, v10, s[22:23] offset:12")
        e(f"global_atomic_umax v{vT1}, v{vT0}, s[22:23] offset:16")
        e("s_mov_b64 exec, -1")
    st.mark()
    lds_wait(e, OCNT, 8, vT0, vaddr=vT2)
    e(f"ds_read_b32 v{vT0}, v{vCT} offset:{C_REDO}")
    e("s_waitcnt lgkmcnt(0)")
    e(f"v_cmp_ne_u32 vcc, 0, v{vT0}")
    e(f"s_cbranch_vccnz L_slow")
    e("L_afin:")
    e("s_setprio 2")
    e("s_mov_b64 exec, 1")
    e(f"ds_add_rtn_u32 v{vT0}, v{vCT}, v{vONE} offset:{C_TICK}")
    e("s_mov_b64 exec, -1")
    e("s_waitcnt lgkmcnt(0)")
    e(f"v_readfirstlane_b32 s{sCNT}, v{vT0}")
    e(f"v_lshlrev_b32 v{vT1}, 3, v{vL}")
    e(f"v_and_b32 v{vQA}, 0xf8, v{vT1}")
    e(f"s_cmp_ge_u32 s{sCNT}, 8")
    e(f"s_cbranch_scc1 L_aend")
    e(f"s_mul_i32 s{sT0}, s{sCNT}, {OSL}")
    e(f"s_sub_u32 s{sT0}, {L_OA + 7*OSL}, s{sT0}")
    e(f"v_mov_b32 v{vT2}, s{sT0}")
    e(f"v_add_u32 v{vT1}, s{sT0}, v{vT1}")
    e(f"v_add_u32 v{vQA}, s{sT0}, v{vQA}")
    e(f"s_lshl_b32 s{sT0}, s{sRP}, 3")
    e(f"s_and_b32 s{sT1}, s{sCNT}, 1")
    e(f"s_lshl_b32 s{sT1}, s{sT1}, 2")
    e(f"s_add_u32 s{sT0}, s{sT0}, s{sT1}")
    e(f"s_lshr_b32 s{sT1}, s{sCNT}, 1")
    e(f"s_add_u32 s{sT0}, s{sT0}, s{sT1}")
    e(f"s_lshl_b32 s{sT0}, s{sT0}, 3")
    e(f"s_add_u32 s{sT0}, s{sT0}, s{sCG}")
    e(f"s_lshl_b32 s{sT1}, s{sT0}, 10")
    e(f"s_add_u32 s{sT1}, s{sT1}, {OF}")
    e(f"s_lshl_b32 s{sT0}, s{sT0}, 7")
    e(f"s_add_u32 s{sT0}, s{sT0}, {OFL}")
    if SENT: lds_wait(e, C_G1, 4, vT0, sleep=4)
    lds_wait(e, OCNT, 8, vT0, vaddr=vT2, sleep=2)
    F = S1
    e(f"ds_read_b64 {vr(F+16,2)}, v{vQA} offset:4096")
    for r in range(8):
        e(f"ds_read_b64 {vr(F+2*r,2)}, v{vT1} offset:{512*r}")
    e("s_waitcnt lgkmcnt(8)")
    e(f"v_cvt_f32_f64 v{vT0}, {vr(F+16,2)}")
    e(f"v_rcp_f32 v{vT0}, v{vT0}")
    e("s_waitcnt lgkmcnt(0)")
    for i in range(8):
        e(f"v_cvt_f32_f64 v{F+i}, {vr(F+2*i,2)}")
    for i in range(8):
        e(f"v_mul_f32 v{F+i}, v{F+i}, v{vT0}")
    for i in range(4):
        e(f"v_cvt_pk_bf16_f32 v{F+i}, v{F+2*i}, v{F+2*i+1}")
    if SENT:
        for i in range(4):
            e(f"v_min_u32 v{F+i}, -2, v{F+i}")
    e(f"buffer_store_dwordx4 {vr(F,4)}, v{vL16}, {sr(sWS,4)}, s{sT1} offen sc1")
    flag_set(e, S0, sT0)
    e("s_branch L_afin")
    e("L_aend:")
    st.mark(); st.mark(True)
    st.flush(sW, sWS, vT0, vT1, 12)
    e("s_endpgm")

def attention_slow(e):
    Q, KR, VR, S0, S1, O = A_Q, A_KR, A_VR, A_S0, A_S1, A_O
    vRM = 0
    e("L_slow:")
    lds_wait(e, C_ADONE, 8, vT0)
    e(f"s_mul_i32 s{sT0}, s{sW}, {OSL}")
    e(f"v_lshlrev_b32 v{vOA}, 3, v{vL}")
    e(f"v_add_u32 v{vOA}, {L_OA + 7*OSL}, v{vOA}")
    e(f"v_subrev_u32 v{vT1}, s{sT0}, v{vOA}")
    e(f"v_mov_b32 v10, 0")
    e(f"v_mov_b32 v11, 0")
    lds_signal(e, C_S0, vT0)
    lds_wait(e, C_S0, 8, vT0)
    for r in range(9):
        e(f"ds_write_b64 v{vT1}, v[10:11] offset:{512*r}")
    e(f"v_and_b32 v{vRM}, 31, v{vL}")
    e(f"v_lshlrev_b32 v{vRM}, 2, v{vRM}")
    e(f"v_add_u32 v{vRM}, {L_RM}, v{vRM}")
    e(f"s_lshl_b32 s{sT0}, s{sW}, 7")
    e(f"v_add_u32 v{vT1}, s{sT0}, v{vRM}")
    e(f"v_mov_b32 v{vT0}, 0xff800000")
    e(f"ds_write_b32 v{vT1}, v{vT0}")
    lds_signal(e, C_S1, vT0)
    lds_wait(e, C_S1, 8, vT0)
    e(f"v_add_u32 v{vQA}, {L_Q}, v{vL16}")
    e(f"v_mov_b32 v{vT2}, v{vRM}")
    e(f"s_mov_b32 s{sCNT}, 8")
    L1 = e.label("sp1")
    e(f"{L1}:")
    e(f"ds_read_b128 {vr(Q,4)}, v{vQA}")
    e(f"v_mov_b32 v{vT0}, 0xff800000")
    e("s_waitcnt lgkmcnt(0)")
    for t in range(8):
        e(f"{MFMA} {vr(S0,16)}, {vr(KR+4*t,4)}, {vr(Q,4)}, 0")
        e("s_nop 11")
        for i in range(0, 16, 2):
            e(f"v_max3_f32 v{vT0}, v{S0+i}, v{S0+i+1}, v{vT0}")
    e(f"ds_max_f32 v{vT2}, v{vT0}")
    e(f"v_add_u32 v{vQA}, 1024, v{vQA}")
    e(f"v_add_u32 v{vT2}, 128, v{vT2}")
    e(f"s_sub_u32 s{sCNT}, s{sCNT}, 1")
    e(f"s_cmp_lg_u32 s{sCNT}, 0")
    e(f"s_cbranch_scc1 {L1}")
    lds_signal(e, C_S2, vT0)
    lds_wait(e, C_S2, 8, vT0)
    e(f"v_add_u32 v{vQA}, {L_Q}, v{vL16}")
    e(f"s_mov_b32 s{sCNT}, 8")
    L2 = e.label("sp2")
    e(f"{L2}:")
    e(f"ds_read_b128 {vr(Q,4)}, v{vQA}")
    e(f"ds_read_b32 v{vT0}, v{vRM}")
    e("s_waitcnt lgkmcnt(0)")
    for i in range(16):
        e(f"v_sub_f32 v{S1+i}, 0, v{vT0}")
    e("s_nop 1")
    for t in range(8):
        e(f"{MFMA} {vr(S0,16)}, {vr(KR+4*t,4)}, {vr(Q,4)}, {vr(S1,16)}")
        e("s_nop 11")
        for i in range(16):
            e(f"v_exp_f32 v{S0+i}, v{S0+i}")
        for i in range(8):
            e(f"v_cvt_pk_bf16_f32 v{S0+i}, v{S0+2*i}, v{S0+2*i+1}")
        e("s_nop 1")
        e(f"{MFMA} {vr(O,16)}, {vr(VR+8*t,4)}, {vr(S0,4)}, {'0' if t == 0 else vr(O,16)}")
        e(f"{MFMA} {vr(O,16)}, {vr(VR+8*t+4,4)}, {vr(S0+4,4)}, {vr(O,16)}")
    e("s_nop 11")
    a_flush(e)
    e(f"v_add_u32 v{vQA}, 1024, v{vQA}")
    e(f"v_add_u32 v{vRM}, 128, v{vRM}")
    e(f"v_subrev_u32 v{vOA}, {OSL}, v{vOA}")
    e(f"s_sub_u32 s{sCNT}, s{sCNT}, 1")
    e(f"s_cmp_lg_u32 s{sCNT}, 0")
    e(f"s_cbranch_scc1 {L2}")
    e("s_branch L_afin")

def silu_pack(e, d, t0):
    for i in range(0, 16, 4):
        e(f"v_cvt_pk_bf16_f32 v{t0}, v{d+i}, v{d+i+1}")
        e(f"v_cvt_pk_bf16_f32 v{t0+1}, v{d+i+2}, v{d+i+3}")
        e(f"v_lshlrev_b32 v{d+i}, 16, v{t0}")
        e(f"v_and_b32 v{d+i+1}, 0xffff0000, v{t0}")
        e(f"v_lshlrev_b32 v{d+i+2}, 16, v{t0+1}")
        e(f"v_and_b32 v{d+i+3}, 0xffff0000, v{t0+1}")
        for k in range(4):
            e(f"v_mul_f32 v{t0+k}, {f32bits(-LOG2E):#x}, v{d+i+k}")
        for k in range(4):
            e(f"v_exp_f32 v{t0+k}, v{t0+k}")
        for k in range(4):
            e(f"v_add_f32 v{t0+k}, 1.0, v{t0+k}")
        for k in range(4):
            e(f"v_rcp_f32 v{t0+k}, v{t0+k}")
        for k in range(4):
            e(f"v_mul_f32 v{d+i+k}, v{d+i+k}, v{t0+k}")
        e(f"v_cvt_pk_bf16_f32 v{t0}, v{d+i}, v{d+i+1}")
        e(f"v_cvt_pk_bf16_f32 v{t0+1}, v{d+i+2}, v{d+i+3}")
        e(f"v_lshlrev_b32 v{d+i}, 16, v{t0}")
        e(f"v_and_b32 v{d+i+1}, 0xffff0000, v{t0}")
        e(f"v_lshlrev_b32 v{d+i+2}, 16, v{t0+1}")
        e(f"v_and_b32 v{d+i+3}, 0xffff0000, v{t0+1}")


def ffn_role(e, st, emit_attention):
    vD1A, vD1B = 9, 10
    vTRC, vTA0, vTA1, vXB, vHH = 11, 12, 13, 14, 15
    ACC, AF, BF = 16, 80, 96
    sRING, sSO, sB0, sB1, sGRP = 90, 91, 92, 93, 84
    vPF = BF + 59
    e(f"s_setprio 3")
    e(f"s_load_dwordx2 {sr(sNON,2)}, s[24:25], {EPOCH:#x}")
    e(f"s_sub_u32 s{sF}, s{sW}, 8")
    if DBGT:
        e("s_memrealtime s[98:99]")
    e(f"s_lshr_b32 s{sGRP}, s{sCG}, 1")
    e(f"s_lshl_b32 s{sT0}, s{sGRP}, 4")
    e(f"s_lshl_b32 s{sT1}, s{sF}, 2")
    e(f"s_add_u32 s{sT0}, s{sT0}, s{sT1}")
    e(f"s_lshl_b32 s{sT1}, s{sRP}, 6")
    e(f"s_add_u32 s{sT1}, s{sT1}, s{sT0}")
    e(f"s_lshl_b32 s{sT1}, s{sT1}, 10")
    X, T = 96, 112
    for j in range(4):
        e(f"buffer_load_dwordx4 {vr(X+4*j,4)}, v{vL16}, {sr(sX,4)}, s{sT1} offen offset:{1024*j}")
    e(f"s_bitcmp1_b32 s{sCG}, 0")
    e(f"s_cselect_b32 s{sWA}, s10, s8")
    e(f"s_cselect_b32 s{sWA+1}, s11, s9")
    e(f"s_mov_b32 s{sWA+2}, {512*16*2}")
    e(f"s_mov_b32 s{sWA+3}, 0x20000")
    e(f"s_lshl_b32 s{sT1}, s{sF}, 12")
    e(f"s_add_u32 m0, s{sT1}, {L_R}")
    rows = [85, 86, 87, 88]
    e(f"s_lshr_b32 s{sT2}, s{sT0}, 5")
    for i in range(4):
        e(f"buffer_load_dwordx4 v{vL16}, {sr(sWA,4)}, s{sT1} offen offset:{1024*i} lds")
    e("s_barrier")
    e(f"s_mul_i32 s{sT2}, s{sT2}, {XRT - 512}")
    e(f"s_lshl_b32 s{sT0}, s{sT0}, 4")
    e(f"s_add_u32 s{rows[0]}, s{sT0}, s{sT2}")
    for j in range(1, 4):
        e(f"s_add_u32 s{rows[j]}, s{rows[0]}, {16*j}")
    e(f"v_mul_u32_u24 v{vD1A}, 3584, v{vT0}")
    e(f"v_add_u32 v{vD1A}, v{vD1A}, v{vT1}")
    e(f"v_add_u32 v{vD1B}, {8*3584-1024}, v{vD1A}")
    e(f"s_mul_i32 s{sRING}, s{sF}, {RINGB}")
    e(f"s_add_u32 s{sRING}, s{sRING}, {L_WQ}")
    tr_common(e, vTRC, vT0, vT1)
    e(f"v_lshrrev_b32 v{vHH}, 5, v{vL}")
    vWA, vXA, vG, vI, vSA = ACC+8, ACC+9, ACC+10, ACC+11, ACC+7
    e(f"v_lshrrev_b32 v{vG}, 4, v{vL}")
    e(f"v_and_b32 v{vI}, 15, v{vL}")
    e(f"v_lshlrev_b32 v{vWA}, 3, v{vI}")
    e(f"v_lshl_add_u32 v{vWA}, v{vG}, 8, v{vWA}")
    e(f"v_add_u32 v{vWA}, {L_R}, v{vWA}")
    e(f"v_mul_u32_u24 v{vXA}, {XS2}, v{vG}")
    e(f"v_lshl_add_u32 v{vXA}, v{vI}, 4, v{vXA}")
    e(f"v_add_u32 v{vXA}, s{rows[0]}, v{vXA}")
    e(f"s_lshr_b32 s{sB0}, s{sGRP}, 1")
    e(f"s_lshl_b32 s{sT1}, s{sRP}, 1")
    e(f"s_add_u32 s{sB0}, s{sB0}, s{sT1}")
    e(f"s_and_b32 s{sB1}, s{sGRP}, 1")
    e(f"s_and_b32 s{sT3}, s{sCG}, 1")
    e(f"s_sub_u32 s{sT0}, 9, s{sT3}")
    e(f"v_and_b32 v{vT0}, 1, v{vG}")
    e(f"v_lshlrev_b32 v{vT0}, s{sT0}, v{vT0}")
    e(f"v_lshrrev_b32 v{vT1}, 1, v{vG}")
    e(f"v_lshl_add_u32 v{vT0}, v{vT1}, 3, v{vT0}")
    e(f"v_lshl_add_u32 v{vSA}, v{vI}, 4, v{vT0}")
    e(f"s_add_u32 s{sT0}, s{sT3}, 8")
    e(f"s_lshl_b32 s{sSO}, s{sB1}, s{sT0}")
    e(f"s_lshl_b32 s{sT0}, s{sB0}, 10")
    e(f"s_add_u32 s{sSO}, s{sSO}, s{sT0}")
    e(f"s_lshl_b32 s{sT0}, s{sT3}, 16")
    assert VF == 0x10000
    e(f"s_add_u32 s{sSO}, s{sSO}, s{sT0}")
    layernorm_rows(e, 4, X, T, 136, rows, 4)
    e("s_waitcnt vmcnt(0)")
    lds_signal(e, C_KVX, vT0)
    e(f"s_add_u32 s{sNON}, s{sNON}, 1")
    e(f"s_addc_u32 s{sNON+1}, s{sNON+1}, 0")
    st.mark()
    Lnokv = e.label("nokv")
    e(f"s_cmp_lg_u32 s{sF}, 0")
    e(f"s_cbranch_scc1 {Lnokv}")
    lds_wait(e, C_KVX, 4, vT0, sleep=0)
    FRG = 96
    def kvreads(kk):
        b = FRG + 8*(kk % 4)
        e(f"ds_read_b64_tr_b16 {vr(b,2)}, v{vWA} offset:{kk*1024}")
        e(f"ds_read_b64_tr_b16 {vr(b+2,2)}, v{vWA} offset:{kk*1024+128}")
        e(f"ds_read_b128 {vr(b+4,4)}, v{vXA} offset:{kk*4*XS2}")
    def kvchain(isv):
        for kk in range(16):
            e(f"s_waitcnt lgkmcnt({3*min(3, 15-kk)})")
            b = FRG + 8*(kk % 4)
            c = "0" if kk == 0 else vr(ACC,4)
            if isv: e(f"{M16} {vr(ACC,4)}, {vr(b+4,4)}, {vr(b,4)}, {c}")
            else:   e(f"{M16} {vr(ACC,4)}, {vr(b,4)}, {vr(b+4,4)}, {c}")
            if kk + 4 < 16: kvreads(kk + 4)
    Lv, Lkvs, Lkvd = e.label("kvv"), e.label("kvs"), e.label("kvd")
    for kk in range(4): kvreads(kk)
    e(f"s_bitcmp1_b32 s{sCG}, 0")
    e(f"s_cbranch_scc1 {Lv}")
    kvchain(False)
    e(f"s_branch {Lkvs}")
    e(f"{Lv}:")
    kvchain(True)
    e(f"{Lkvs}:")
    e("s_nop 7")
    e(f"v_cvt_pk_bf16_f32 v{ACC}, v{ACC}, v{ACC+1}")
    e(f"v_cvt_pk_bf16_f32 v{ACC+1}, v{ACC+2}, v{ACC+3}")
    e(f"buffer_store_dwordx2 {vr(ACC,2)}, v{vSA}, {sr(sWS,4)}, s{sSO} offen sc1")
    e(f"s_cbranch_scc1 {Lkvd}")
    e(f"v_dot2_f32_bf16 v{ACC+2}, v{ACC}, v{ACC}, 0")
    e(f"v_dot2_f32_bf16 v{ACC+2}, v{ACC+1}, v{ACC+1}, v{ACC+2}")
    e(f"s_lshl_b32 s{sT2}, s{sB0}, 1")
    e(f"s_add_u32 s{sT2}, s{sT2}, s{sB1}")
    e(f"s_lshl_b32 s{sT2}, s{sT2}, 2")
    swap_op(e, "v_add_f32", 16, ACC+2, ACC+3)
    swap_op(e, "v_add_f32", 32, ACC+2, ACC+3)
    dpp_max16(e, ACC+2)
    e(f"s_add_u32 s{sT2}, s{sT2}, {KMAX}")
    e(f"v_mov_b32 v{vT0}, 0")
    e("s_mov_b64 exec, 1")
    e(f"buffer_store_dword v{ACC+2}, v{vT0}, {sr(sWS,4)}, s{sT2} offen sc1")
    e("s_mov_b64 exec, -1")
    e(f"{Lkvd}:")
    st.mark()
    e(f"s_lshl_b32 s{sT0}, s{sB0}, 2")
    e(f"s_lshl_b32 s{sT1}, s{sB1}, 1")
    e(f"s_add_u32 s{sT0}, s{sT0}, s{sT1}")
    e(f"s_add_u32 s{sT0}, s{sT0}, s{sT3}")
    e(f"s_lshl_b32 s{sT0}, s{sT0}, 7")
    e(f"s_add_u32 s{sT0}, s{sT0}, {KVFL}")
    flag_set(e, ACC+12, sT0)
    e(f"ds_write_b64 v{vCT}, {vr(ACC+12,2)} offset:{C_NON}")
    if not KVD_ACK: lds_signal(e, C_KVD, vT0)
    st.mark()
    if KVD_ACK:
        e("s_waitcnt vmcnt(0)")
        lds_signal(e, C_KVD, vT0)
    Lkvj = e.label("kvj")
    e(f"s_branch {Lkvj}")
    e(f"{Lnokv}:")
    st.n -= 2; st.mark(); st.mark()
    e(f"{Lkvj}:")
    st.mark()
    e(f"s_and_b32 s{sT0}, s{sF}, 1")
    e(f"s_mul_i32 s{sT0}, s{sT0}, {XRT}")
    e(f"v_and_b32 v{vXB}, 31, v{vL}")
    e(f"v_lshlrev_b32 v{vXB}, 4, v{vXB}")
    e(f"v_mul_u32_u24 v{vT0}, {XS2}, v{vHH}")
    e(f"v_add_u32 v{vXB}, v{vXB}, v{vT0}")
    e(f"v_add_u32 v{vT2}, s{sT0}, v{vXB}")
    e(f"s_lshr_b32 s{sT1}, s{sF}, 1")
    e(f"s_lshl_b32 s{sT1}, s{sT1}, 6")
    e(f"v_lshl_add_u32 v{vTA0}, v{vHH}, 10, v{vTRC}")
    e(f"v_xor_b32 v{vTA0}, s{sT1}, v{vTA0}")
    e(f"v_add_u32 v{vTA0}, {L_WQ}, v{vTA0}")
    NS = 5
    lds_wait(e, C_KVX, 4, vT0, sleep=1)
    lds_wait(e, C_XN, 8, vT0, sleep=1)
    if QFIRST:
        Lq = e.label("qa")
        e(f"s_cmp_lt_u32 s{sF}, 2")
        e(f"s_cbranch_scc1 {Lq}")
        lds_wait(e, C_QW, 2, vT0, sleep=2)
        e(f"{Lq}:")
    st.mark()
    def qreads(ks):
        b = BF + 8*(ks % NS)
        e(f"ds_read_b64_tr_b16 {vr(b,2)}, v{vTA0} offset:{ks*2048}")
        e(f"ds_read_b64_tr_b16 {vr(b+2,2)}, v{vTA0} offset:{ks*2048+512}")
        e(f"ds_read_b128 {vr(b+4,4)}, v{vT2} offset:{ks*XS1}")
    for ks in range(NS): qreads(ks)
    for ks in range(32):
        e(f"s_waitcnt lgkmcnt({3*min(NS-1, 31-ks)})")
        b = BF + 8*(ks % NS)
        e(f"{MFMA} {vr(ACC,16)}, {vr(b,4)}, {vr(b+4,4)}, {'0' if ks == 0 else vr(ACC,16)}")
        if ks + NS < 32: qreads(ks + NS)
    e(f"s_and_b32 s{sT0}, s{sF}, 1")
    e(f"s_lshl_b32 s{sT0}, s{sT0}, 10")
    e(f"s_lshr_b32 s{sT1}, s{sF}, 1")
    e(f"s_lshl_b32 s{sT1}, s{sT1}, 12")
    e(f"s_add_u32 s{sT0}, s{sT0}, s{sT1}")
    e(f"s_add_u32 s{sT0}, s{sT0}, {L_Q}")
    e(f"v_add_u32 v{vT0}, s{sT0}, v{vL16}")
    e(f"s_mov_b32 s{sLN}, {f32bits(QSCALE):#x}")
    e("s_nop 3")
    for i in range(0, 16, 2):
        e(f"v_pk_mul_f32 {vr(ACC+i,2)}, {vr(ACC+i,2)}, {sr(sLN,2)} op_sel_hi:[1,0]")
    for i in range(8):
        e(f"v_cvt_pk_bf16_f32 v{ACC+i}, v{ACC+2*i}, v{ACC+2*i+1}")
    e(f"ds_write_b128 v{vT0}, {vr(ACC,4)}")
    e(f"ds_write_b128 v{vT0}, {vr(ACC+4,4)} offset:2048")
    lds_signal(e, C_QW, vT0)
    e(f"s_setprio {FPRIO}")
    for h in range(2):
        e(f"v_dot2_f32_bf16 v{ACC+8+h}, v{ACC+4*h}, v{ACC+4*h}, 0")
    for i in range(1, 4):
        for h in range(2):
            e(f"v_dot2_f32_bf16 v{ACC+8+h}, v{ACC+4*h+i}, v{ACC+4*h+i}, v{ACC+8+h}")
    for i in range(4):
        e(f"v_mov_b32 v{ACC+12+i}, 0")
    e(f"v_permlane32_swap_b32 v{ACC+8}, v{ACC+9}")
    e(f"s_mul_i32 s{sT0}, s{sF}, {9*1024}")
    e(f"v_add_f32 v{ACC+8}, v{ACC+8}, v{ACC+9}")
    e(f"s_add_u32 s{sT0}, s{sT0}, {L_OA}")
    dpp_max16(e, ACC+8)
    e(f"v_add_u32 v{vT1}, s{sT0}, v{vL16}")
    e(f"s_mov_b32 exec_lo, 0x00010001")
    e(f"s_mov_b32 exec_hi, 0x00010001")
    e(f"ds_max_u32 v{vCT}, v{ACC+8} offset:{C_QMAX}")
    e("s_mov_b64 exec, -1")
    lds_wait(e, C_QW, 4, vT0)
    for i in range(9):
        e(f"ds_write_b128 v{vT1}, {vr(ACC+12,4)} offset:{1024*i}")
    lds_signal(e, C_Z, vT0)
    st.mark()
    e(f"s_setprio {FPRIO}")
    e("s_branch L_g1")
    emit_attention()
    e("L_g1:")
    abl_start = len(e.lines)
    set_srd(e, sWA, 16, 512*1792*2)
    e(f"v_lshlrev_b32 v{vTA1}, 7, v{vL}")
    lds_wait(e, C_KVL, 8, vT0, sleep=4)
    fetch_nonce(e, AF)
    st.mark()
    if SENT:
        e(f"s_lshl_b32 s{sT0}, s{sRP}, 1")
        e(f"s_and_b32 s{sT1}, s{sF}, 1")
        e(f"s_add_u32 s{sT0}, s{sT0}, s{sT1}")
        e(f"s_lshl_b32 s{sT0}, s{sT0}, 5")
        e(f"s_add_u32 s{sT0}, s{sT0}, s{sCG}")
        e(f"s_lshl_b32 s{sT0}, s{sT0}, 10")
        e(f"s_add_u32 s{sT0}, s{sT0}, {OF + 24*1024}")
        e(f"v_mov_b64 {vr(BF+60,2)}, -1")
        e(f"v_mov_b64 {vr(BF+62,2)}, -1")
        e(f"buffer_store_dwordx4 {vr(BF+60,4)}, v{vL16}, {sr(sWS,4)}, s{sT0} offen sc1")
    if PF1:
        e(f"s_lshr_b32 s{sT0}, s2, 3")
        e(f"s_mul_i32 s{sT0}, s{sT0}, {448*128}")
        e(f"s_lshl_b32 s{sT1}, s{sF}, 14")
        e(f"s_add_u32 s{sT0}, s{sT0}, s{sT1}")
        e(f"s_add_u32 s{sT1}, s{sT0}, 8192")
        e(f"buffer_load_dword v{vPF}, v{vTA1}, {sr(sWA,4)}, s{sT0} offen sc1")
        e(f"buffer_load_dword v{vPF}, v{vTA1}, {sr(sWA,4)}, s{sT1} offen sc1")
    vPO, sP2, sPO = BF + 58, 40 + 48, 40 + 49
    sPS = 44
    def prefetch(i):
        if i < 2:
            e(f"buffer_load_dword v{vPF}, v{vPO}, {sr(sPS,4)}, s{sP2} offen sc1")
            e(f"s_add_u32 s{sP2}, s{sP2}, 8192")
        else:
            set_srd(e, sPS, 12, 512*512*2)
            e("s_mov_b32 exec_hi, 0")
            e(f"buffer_load_dword v{vPF}, v{vPO}, {sr(sPS,4)}, s{sPO} offen sc1")
            e("s_mov_b64 exec, -1")
    if PF2:
        set_srd(e, sPS, 18, 512*1792*2)
        e(f"v_lshlrev_b32 v{vPO}, 7, v{vL}")
        e(f"s_lshr_b32 s{sT0}, s2, 3")
        e(f"s_mul_i32 s{sP2}, s{sT0}, {448*128}")
        e(f"s_lshl_b32 s{sT1}, s{sF}, 14")
        e(f"s_add_u32 s{sP2}, s{sP2}, s{sT1}")
        e(f"s_lshl_b32 s{sPO}, s{sT0}, 14")
        e(f"s_lshl_b32 s{sT1}, s{sF}, 12")
        e(f"s_add_u32 s{sPO}, s{sPO}, s{sT1}")
    D = 6
    Lskip1 = e.label("g1skip")
    sJ = sGRP
    e(f"s_lshl_b32 s{sJ}, s{sCG}, 2")
    e(f"s_add_u32 s{sJ}, s{sJ}, s{sF}")
    e(f"s_cmp_ge_u32 s{sJ}, 28")
    e(f"s_cbranch_scc1 {Lskip1}")
    e(f"s_lshl_b32 s{sSO}, s{sJ}, 7")
    def dma(k, va, vb, step):
        e(f"s_add_u32 m0, s{sRING}, {2048*(k % D)}")
        if k: e(f"s_add_u32 s{sSO}, s{sSO}, {step}")
        else: e("s_nop 0")
        e(f"buffer_load_dwordx4 v{va}, {sr(sWA,4)}, s{sSO} offen lds")
        e(f"buffer_load_dwordx4 v{vb}, {sr(sWA,4)}, s{sSO} offen offset:1024 lds")
    def areads(k, second):
        b = AF + 8*(k & 1)
        o = 2048*(k % D)
        e(f"ds_read_b64_tr_b16 {vr(b,2)}, v{vTA0} offset:{o}")
        e(f"ds_read_b64_tr_b16 {vr(b+2,2)}, v{vTA0} offset:{o+second}")
        e(f"ds_read_b64_tr_b16 {vr(b+4,2)}, v{vTA1} offset:{o}")
        e(f"ds_read_b64_tr_b16 {vr(b+6,2)}, v{vTA1} offset:{o+second}")
    def mfma4(k, bb0):
        a = AF + 8*(k & 1)
        for i in range(2):
            for j in range(2):
                d = ACC + 16*(2*i+j)
                e(f"{MFMA} {vr(d,16)}, {vr(a+4*i,4)}, {vr(bb0+4*j,4)}, {'0' if k == 0 else vr(d,16)}")
    NK = 32
    log1 = []
    for k in range(D):
        dma(k, vD1A, vD1B, 16*3584); log1 += [k]*2
    e(f"v_lshl_add_u32 v{vTA0}, v{vHH}, 10, v{vTRC}")
    e(f"v_add_u32 v{vTA0}, s{sRING}, v{vTA0}")
    e(f"v_xor_b32 v{vTA1}, 64, v{vTA0}")
    def g1reads(k):
        areads(k, 512)
        b = BF + 8*(k & 1)
        e(f"ds_read_b128 {vr(b,4)}, v{vXB} offset:{k*XS1}")
        e(f"ds_read_b128 {vr(b+4,4)}, v{vT2} offset:{k*XS1}")
    e(f"v_add_u32 v{vT2}, {XRT}, v{vXB}")
    def w1(k):
        last = max(i for i, it in enumerate(log1) if it == k)
        e(f"s_waitcnt vmcnt({len(log1) - 1 - last})")
    w1(0)
    g1reads(0)
    for k in range(NK):
        if k + 1 < NK:
            w1(k + 1)
            g1reads(k + 1)
            e("s_waitcnt lgkmcnt(6)")
        else:
            e("s_waitcnt lgkmcnt(0)")
        mfma4(k, BF + 8*(k & 1))
        if k + D < NK:
            dma(k + D, vD1A, vD1B, 16*3584); log1 += [k + D]*2
        if PF2 and k in (4, 12, 20):
            prefetch((k - 4) // 8); log1.append(-1)
    e(f"s_mul_i32 s{sT0}, s{sRP}, {2*112*1024}")
    e(f"s_lshl_b32 s{sT1}, s{sJ}, 12")
    e(f"s_add_u32 s{sT0}, s{sT0}, s{sT1}")
    e(f"s_add_u32 s{sT0}, s{sT0}, {HF}")
    e(f"s_add_u32 s{sT1}, s{sT0}, {112*1024}")
    e("s_nop 7")
    for a in range(2):
        for bb in range(2):
            d = ACC + 16*(2*a+bb)
            for i in range(8):
                e(f"v_cvt_pk_bf16_f32 v{d+i}, v{d+2*i}, v{d+2*i+1}")
            for i in range(8):
                e(f"v_pk_max_i16 v{d+i}, v{d+i}, 0")
            for half in range(2):
                e(f"buffer_store_dwordx4 {vr(d+4*half,4)}, v{vL16}, {sr(sWS,4)}, s{sT1 if bb else sT0} offen offset:{(2*a+half)*1024} sc1")
    Lg1d = e.label("g1d")
    e(f"s_branch {Lg1d}")
    e(f"{Lskip1}:")
    if PF2:
        for i in range(3): prefetch(i)
    e(f"{Lg1d}:")
    e(f"s_lshl_b32 s{sT0}, s{sRP}, 5")
    e(f"s_add_u32 s{sT0}, s{sT0}, s{sJ}")
    e(f"s_lshl_b32 s{sT0}, s{sT0}, 7")
    e(f"s_add_u32 s{sT0}, s{sT0}, {HFL}")
    flag_set(e, AF, sT0)
    lds_signal(e, C_G1, vT0)
    st.mark()
    NK = 28
    e(f"v_lshl_add_u32 v{vTA0}, v{vHH}, 9, v{vTRC}")
    e(f"v_add_u32 v{vTA0}, s{sRING}, v{vTA0}")
    e(f"v_xor_b32 v{vTA1}, 64, v{vTA0}")
    set_srd(e, sWA, 18, 512*1792*2)
    e(f"s_mul_i32 s{sSO}, s{sF}, {448*1024}")
    e(f"s_lshl_b32 s{sT0}, s{sCG}, 7")
    e(f"s_add_u32 s{sSO}, s{sSO}, s{sT0}")
    for k in range(D): dma(k, vDA, vDB, 16384)
    lds_wait(e, C_G1, 4, vT0, sleep=2)
    stage_w512(e, 12, L_XN, sF, 4, sB0)
    set_srd(e, sWA, 18, 512*1792*2)
    e(f"s_mul_i32 s{sT1}, s{sF}, 7")
    e(f"s_add_u32 s{sT0}, s{sF}, 28")
    e(f"v_add_u32 v{vT0}, s{sT1}, v{vL}")
    e(f"v_mov_b32 v{vT1}, s{sT0}")
    e(f"v_cmp_gt_u32 vcc, 7, v{vL}")
    e(f"s_lshl_b32 s{sT0}, s{sRP}, 12")
    e(f"s_add_u32 s{sT0}, s{sT0}, {HFL}")
    e(f"v_cndmask_b32 v{vT0}, v{vT1}, v{vT0}, vcc")
    e(f"v_lshlrev_b32 v{vT0}, 7, v{vT0}")
    flag_poll(e, AF, vT0, sT0, sleep=8)
    st.mark()
    e(f"s_mul_i32 s{sB0}, s{sRP}, {2*112*1024}")
    e(f"s_mul_i32 s{sT1}, s{sF}, {28*1024}")
    e(f"s_add_u32 s{sB0}, s{sB0}, s{sT1}")
    e(f"s_add_u32 s{sB0}, s{sB0}, {HF}")
    e(f"s_add_u32 s{sB1}, s{sB0}, {112*1024}")
    DB = 8
    def bload(k):
        if k % 4 == 0 and k > 0:
            e(f"s_add_u32 s{sB0}, s{sB0}, 4096")
            e(f"s_add_u32 s{sB1}, s{sB1}, 4096")
        b = BF + 8*(k % DB)
        e(f"buffer_load_dwordx4 {vr(b,4)}, v{vL16}, {sr(sWS,4)}, s{sB0} offen offset:{(k%4)*1024} sc1")
        e(f"buffer_load_dwordx4 {vr(b+4,4)}, v{vL16}, {sr(sWS,4)}, s{sB1} offen offset:{(k%4)*1024} sc1")
    log = []
    for k in range(DB):
        bload(k); log += [("B", k)]*2
    def wait_for(items):
        last = max(i for i, it in enumerate(log) if it in items) if any(it in items for it in log) else -1
        e(f"s_waitcnt vmcnt({len(log) - 1 - last})")
    areads(0, 1024)
    for k in range(NK):
        if k + 1 < NK:
            wait_for([("A", k+1), ("B", k)])
            areads(k + 1, 1024)
            e("s_waitcnt lgkmcnt(4)")
        else:
            wait_for([("B", k)])
            e("s_waitcnt lgkmcnt(0)")
        mfma4(k, BF + 8*(k % DB))
        if k + D < NK:
            dma(k + D, vDA, vDB, 16384); log += [("A", k+D)]*2
        if k + DB < NK:
            bload(k + DB); log += [("B", k+DB)]*2
    st.mark()
    if ABL:
        keep = []
        for l in e.lines[abl_start:]:
            t = l.strip()
            if "m" in ABL and t.startswith("v_mfma"): continue
            if "g" in ABL and t.startswith("buffer_load_dwordx4"): continue
            if "l" in ABL and (t.startswith("ds_read_b64_tr") or t.startswith("ds_read_b128")): continue
            if "v" in ABL and (t.startswith("v_cvt_pk") or t.startswith("v_pk_max") or t.startswith("buffer_store_dwordx4")): continue
            keep.append(l)
        e.lines[abl_start:] = keep
    XR, G = AF, ACC
    vXO = vD1A
    e(f"s_lshr_b32 s{sT0}, s{sF}, 1")
    e(f"s_lshl_b32 s{sT1}, s{sCG}, 1")
    e(f"s_add_u32 s{sT0}, s{sT0}, s{sT1}")
    e(f"s_lshl_b32 s{sSO}, s{sT0}, 6")
    e(f"s_and_b32 s{sT0}, s{sF}, 1")
    e(f"s_lshl_b32 s{sT1}, s{sRP}, 1")
    e(f"s_add_u32 s{sB1}, s{sT0}, s{sT1}")
    e(f"s_lshl_b32 s{sB0}, s{sB1}, 15")
    e(f"s_add_u32 s{sSO}, s{sSO}, s{sB0}")
    e(f"s_add_u32 s{sB0}, s{sB0}, {OF}")
    e(f"s_lshl_b32 s{sB1}, s{sB1}, 12")
    e(f"s_add_u32 s{sB1}, s{sB1}, {OFL}")
    e(f"v_and_b32 v{vXO}, 31, v{vL}")
    e(f"v_lshlrev_b32 v{vXO}, 10, v{vXO}")
    e(f"v_lshl_add_u32 v{vXO}, v{vHH}, 3, v{vXO}")
    for q in range(4):
        e(f"buffer_load_dwordx2 {vr(XR+2*q,2)}, v{vXO}, {sr(sX,4)}, s{sSO} offen offset:{16*q}")
    e(f"v_add_u32 v{vT0}, s{sRING}, v{vL16}")
    Lr = [e.label("rq") for _ in range(4)]
    Lrd = e.label("rqd")
    for f in range(4):
        e(f"{Lr[f]}:")
        if f < 3:
            e(f"s_cmp_lg_u32 s{sF}, {f}")
            e(f"s_cbranch_scc1 {Lr[f+1]}")
        for q in range(4):
            if q == f: continue
            for i in range(4):
                e(f"ds_write_b128 v{vT0}, {vr(ACC+16*q+4*i,4)} offset:{4096*((q-f-1)&3)+1024*i}")
        if f:
            e("s_waitcnt lgkmcnt(0)")
            for i in range(0, 16, 2):
                e(f"v_mov_b64 {vr(ACC+i,2)}, {vr(ACC+16*f+i,2)}")
        if f < 3:
            e(f"s_branch {Lrd}")
    e(f"{Lrd}:")
    lds_signal(e, C_RED, vT2)
    for sl in range(3):
        e(f"s_add_u32 s{sT0}, s{sF}, {3 - sl}")
        e(f"s_and_b32 s{sT0}, s{sT0}, 3")
        e(f"s_mul_i32 s{sT0}, s{sT0}, {RINGB}")
        e(f"s_add_u32 s{sT0}, s{sT0}, {L_WQ + 4096*sl}")
        e(f"v_add_u32 v{BF+sl}, s{sT0}, v{vL16}")
    lds_wait(e, C_RED, 4, vT2, sleep=2)
    for sl in range(3):
        for i in range(4):
            e(f"ds_read_b128 {vr(ACC+16+16*sl+4*i,4)}, v{BF+sl} offset:{1024*i}")
    e("s_waitcnt vmcnt(0) lgkmcnt(0)")
    for i in range(0, 16, 2):
        e(f"v_pk_add_f32 {vr(ACC+i,2)}, {vr(ACC+i,2)}, {vr(ACC+16+i,2)}")
        e(f"v_pk_add_f32 {vr(ACC+32+i,2)}, {vr(ACC+32+i,2)}, {vr(ACC+48+i,2)}")
    for i in range(0, 16, 2):
        e(f"v_pk_add_f32 {vr(ACC+i,2)}, {vr(ACC+i,2)}, {vr(ACC+32+i,2)}")
    silu_pack(e, ACC, ACC+16)
    XP = ACC + 16
    for q in range(0, 8, 2):
        e(f"v_mov_b64 {vr(XP+q,2)}, {vr(XR+q,2)}")
    st.mark()
    SA = ACC + 24
    AW = 56
    OB = 72
    vFO, vCA = vD1B, vXB
    e(f"s_lshr_b32 s{sT1}, s{sF}, 1")
    e(f"s_lshl_b32 s{sT1}, s{sT1}, 6")
    e(f"v_lshl_add_u32 v{vTA0}, v{vHH}, 9, v{vTRC}")
    e(f"v_xor_b32 v{vTA0}, s{sT1}, v{vTA0}")
    assert L_XN == 0
    e(f"v_min_u32 v{vFO}, 23, v{vL}")
    e(f"v_lshlrev_b32 v{vFO}, 7, v{vFO}")
    e(f"s_and_b32 s{sT0}, s{sF}, 1")
    e(f"s_mul_i32 s{sT0}, s{sT0}, {OSL}")
    e(f"s_sub_u32 s{sT0}, {L_OA + OSL}, s{sT0}")
    e(f"v_mov_b32 v{vCA}, s{sT0}")
    def woread(dst, head):
        e(f"ds_read_b64_tr_b16 {vr(dst,2)}, v{vTA0} offset:{head*2048}")
        e(f"ds_read_b64_tr_b16 {vr(dst+2,2)}, v{vTA0} offset:{head*2048+1024}")
    seqA = [(i, c) for i in range(3) for c in range(8)]
    lds_wait(e, OCNT + 2*OSL, 8, vT1, sleep=4, vaddr=vCA)
    flag_poll(e, OB, vFO, sB1, sleep=2)
    for n in range(24):
        if n % 4 == 0 and n: e(f"s_add_u32 s{sB0}, s{sB0}, 4096")
        e(f"buffer_load_dwordx4 {vr(OB+4*n,4)}, v{vL16}, {sr(sWS,4)}, s{sB0} offen offset:{(n%4)*1024} sc1")
    for n in range(4): woread(AW + 4*n, 4*seqA[n][1] + seqA[n][0])
    for n in range(24):
        e(f"s_waitcnt vmcnt({23-n}) lgkmcnt({2*min(3, 23-n)})")
        e(f"{MFMA} {vr(SA,16)}, {vr(AW+4*(n%4),4)}, {vr(OB+4*n,4)}, {'0' if n == 0 else vr(SA,16)}")
        if n + 4 < 24: woread(AW + 4*(n%4), 4*seqA[n+4][1] + seqA[n+4][0])
    st.mark()
    e("s_setprio 3")
    AW2 = OB + 32
    for c in range(8):
        woread(AW2 + 4*c, 4*c + 3)
        if c == 5: e("s_waitcnt lgkmcnt(4)")
    XF = OB + 64
    for q in range(8):
        e(f"v_lshlrev_b32 v{XF+2*q}, 16, v{XP+q}")
        e(f"v_and_b32 v{XF+2*q+1}, 0xffff0000, v{XP+q}")
    e(f"v_min_u32 v{vFO}, {7*128}, v{vFO}")
    e(f"s_add_u32 s{sB1}, s{sB1}, 3072")
    e(f"s_add_u32 s{sB0}, s{sB0}, 4096")
    e(f"s_add_u32 s{sT0}, s{sB0}, 4096")
    lds_wait(e, OCNT, 8, vT1, sleep=2, vaddr=vCA)
    if SENT:
        Lp, Lpd = e.label("op"), e.label("opd")
        e(f"s_mov_b32 s{sSP}, {SPIN_MAX}")
        e(f"s_sleep {int(OPT.get('osleep', 6))}")
        e(f"{Lp}:")
        for c in range(8):
            e(f"buffer_load_dwordx4 {vr(OB+4*c,4)}, v{vL16}, {sr(sWS,4)}, s{sB0 if c < 4 else sT0} offen offset:{(c%4)*1024} sc1")
        e(f"s_sub_u32 s{sSP}, s{sSP}, 1")
        for c in range(8):
            e(f"s_waitcnt vmcnt({7-c})")
            if c == 0:
                e(f"v_max_u32 v{vT1}, v{OB}, v{OB+1}")
                e(f"v_max3_u32 v{vT1}, v{OB+2}, v{OB+3}, v{vT1}")
            else:
                e(f"v_max3_u32 v{vT1}, v{OB+4*c}, v{OB+4*c+1}, v{vT1}")
                e(f"v_max3_u32 v{vT1}, v{OB+4*c+2}, v{OB+4*c+3}, v{vT1}")
        e(f"v_cmp_eq_u32 vcc, -1, v{vT1}")
        e(f"s_cbranch_vccz {Lpd}")
        e(f"s_cbranch_scc0 {Lp}")
        e(f"{Lpd}:")
        for c in range(8):
            e(f"{MFMA} {vr(SA,16)}, {vr(AW2+4*c,4)}, {vr(OB+4*c,4)}, {vr(SA,16)}")
    else:
        flag_poll(e, OB, vFO, sB1, sleep=1)
        for c in range(8):
            e(f"buffer_load_dwordx4 {vr(OB+4*c,4)}, v{vL16}, {sr(sWS,4)}, s{sB0 if c < 4 else sT0} offen offset:{(c%4)*1024} sc1")
        for c in range(8):
            e(f"s_waitcnt vmcnt({7-c})")
            e(f"{MFMA} {vr(SA,16)}, {vr(AW2+4*c,4)}, {vr(OB+4*c,4)}, {vr(SA,16)}")
    e("s_nop 11")
    T4 = AW
    for q in range(4):
        a = SA + 4*q
        e(f"v_cvt_pk_bf16_f32 v{T4}, v{a}, v{a+1}")
        e(f"v_cvt_pk_bf16_f32 v{T4+1}, v{a+2}, v{a+3}")
        e(f"v_lshlrev_b32 v{a}, 16, v{T4}")
        e(f"v_and_b32 v{a+1}, 0xffff0000, v{T4}")
        e(f"v_lshlrev_b32 v{a+2}, 16, v{T4+1}")
        e(f"v_and_b32 v{a+3}, 0xffff0000, v{T4+1}")
        e(f"v_pk_mul_f32 {vr(a,2)}, {vr(a,2)}, {vr(G+4*q,2)}")
        e(f"v_pk_mul_f32 {vr(a+2,2)}, {vr(a+2,2)}, {vr(G+4*q+2,2)}")
        e(f"v_cvt_pk_bf16_f32 v{T4}, v{a}, v{a+1}")
        e(f"v_cvt_pk_bf16_f32 v{T4+1}, v{a+2}, v{a+3}")
        e(f"v_lshlrev_b32 v{a}, 16, v{T4}")
        e(f"v_and_b32 v{a+1}, 0xffff0000, v{T4}")
        e(f"v_lshlrev_b32 v{a+2}, 16, v{T4+1}")
        e(f"v_and_b32 v{a+3}, 0xffff0000, v{T4+1}")
        e(f"v_pk_add_f32 {vr(a,2)}, {vr(a,2)}, {vr(XF+4*q,2)}")
        e(f"v_pk_add_f32 {vr(a+2,2)}, {vr(a+2,2)}, {vr(XF+4*q+2,2)}")
        e(f"v_cvt_pk_bf16_f32 v{a}, v{a}, v{a+1}")
        e(f"v_cvt_pk_bf16_f32 v{a+1}, v{a+2}, v{a+3}")
        e(f"buffer_store_dwordx2 {vr(a,2)}, v{vXO}, {sr(sOUT,4)}, s{sSO} offen offset:{16*q}")
    Lne = e.label("ne")
    e(f"s_xor_b32 s{sT0}, s{sF}, 3")
    e(f"s_or_b32 s{sT0}, s{sT0}, s2")
    e(f"s_cmp_lg_u32 s{sT0}, 0")
    e(f"s_cbranch_scc1 {Lne}")
    e(f"s_mov_b32 s{sT0}, {EPOCH}")
    flag_set(e, OB, sT0)
    e(f"{Lne}:")
    if DBGT:
        e("s_waitcnt vmcnt(0)")
        dbg_time(e, 2, False, vT0, vT1)
        e(f"v_mov_b32 v{vT0}, s98")
        e(f"v_not_b32 v{vT2}, s98")
        e(f"v_mov_b32 v{vT1}, 0")
        e("s_mov_b64 exec, 1")
        e(f"global_atomic_umax v{vT1}, v{vT2}, s[22:23]")
        e(f"global_atomic_umax v{vT1}, v{vT0}, s[22:23] offset:4")
        e("s_mov_b64 exec, -1")
    if common.STAMP: e("s_waitcnt vmcnt(0)")
    st.mark(); st.mark(True)
    st.flush(sW, sWS, vT0, vT1, 12)
    e("s_endpgm")
    attention_slow(e)

def gen(e, name):
    kernel_begin(e, name)
    stA, stF = Stamps(e, 0), Stamps(e, 0)
    e("s_load_dwordx16 s[4:19], s[0:1], 0")
    e("s_load_dwordx4 s[20:23], s[0:1], 64")
    e("s_load_dwordx2 s[24:25], s[0:1], 80")
    e(f"s_cmp_ge_u32 s2, 256")
    e(f"s_cbranch_scc1 L_end")
    if common.STAMP:
        e("s_memrealtime s[98:99]")
        e("s_memtime s[96:97]")
        stA.n = stF.n = 2
    e(f"v_lshrrev_b32 v{vT0}, 6, v0")
    e(f"v_and_b32 v{vL}, 63, v0")
    e(f"v_readfirstlane_b32 s{sW}, v{vT0}")
    e("s_getpc_b64 s[26:27]")
    e(f"v_mov_b32 v{vCT}, {L_C}")
    e(f"s_cmp_lg_u32 s{sW}, 0")
    e(f"s_cbranch_scc1 L_nopf")
    e(f"s_lshr_b32 s{sT0}, s2, 3")
    e(f"s_lshl_b32 s{sT0}, s{sT0}, 10")
    e(f"v_lshlrev_b32 v{vT1}, 7, v0")
    e(f"v_add_u32 v{vT1}, s{sT0}, v{vT1}")
    e(f"v_min_u32 v{vT1}, CODE_BYTES, v{vT1}")
    e(f"s_mov_b64 exec, 0xff")
    e(f"global_load_dword v{vT2}, v{vT1}, s[26:27]")
    e("s_mov_b64 exec, -1")
    e(f"v_lshl_add_u32 v{vT0}, v{vL}, 2, v{vCT}")
    e(f"v_mov_b32 v{vT1}, 0")
    e(f"ds_write_b32 v{vT0}, v{vT1}")
    e("L_nopf:")
    decode_ids(e)
    e(f"v_lshlrev_b32 v{vL16}, 4, v{vL}")
    e(f"s_mov_b32 s{sONES}, 0x3f803f80")
    e(f"s_mov_b32 s{sMASK}, 0xffff")
    e(f"s_mov_b32 s{sMASK+1}, 0xffff")
    e(f"v_lshrrev_b32 v{vT0}, 2, v{vL}")
    e(f"v_and_b32 v{vT0}, 4, v{vT0}")
    e(f"v_and_b32 v{vT1}, 7, v{vL}")
    e(f"v_xor_b32 v{vT1}, v{vT1}, v{vT0}")
    e(f"v_lshlrev_b32 v{vT1}, 4, v{vT1}")
    e(f"v_lshrrev_b32 v{vT0}, 3, v{vL}")
    e(f"v_lshl_add_u32 v{vDA}, v{vT0}, 10, v{vT1}")
    e(f"v_add_u32 v{vDB}, {8192-1024}, v{vDA}")
    for d, n in ((sX, 2048*512*2), (sWS, WS_BYTES), (sOUT, 2048*512*2)):
        e(f"s_mov_b32 s{d+2}, {n:#x}")
        e(f"s_mov_b32 s{d+3}, 0x20000")
    e("s_waitcnt lgkmcnt(0)")
    if common.STAMP:
        e(f"s_mov_b32 s{common.S_ST}, s98")
        e(f"s_mov_b32 s{common.S_ST+1}, s96")
    for d, b in ((sX, 4), (sWS, 24), (sOUT, 20)):
        e(f"s_mov_b64 s[{d}:{d+1}], s[{b}:{b+1}]")
    e(f"s_cmp_ge_u32 s{sW}, 8")
    e(f"s_cbranch_scc1 L_ffn")
    if not XEARLY: e("s_barrier")
    e("s_branch L_attn")
    e("L_ffn:")
    ffn_role(e, stF, lambda: attention_role(e, stA))
    e("L_end:")
    e("s_endpgm")
    e("L_code_end:")
    e(f".set CODE_BYTES, L_code_end - {name} - 128")
    return 168

if __name__ == "__main__":
    if "--stamp" in sys.argv:
        sys.argv.remove("--stamp"); common.STAMP = True
    out = sys.argv[1] if len(sys.argv) > 1 else "cdna_kernels/" + NAME + ".s"
    HDR = open("cdna_kernels/" + NAME + ".s.ref").read().split("; Override")[0]
    e = Asm()
    e('.amdgcn_target "amdgcn-amd-amdhsa--gfx950"')
    e(".text")
    name = NAME + "_kernel"
    nv = gen(e, name)
    hdr = HDR + f"; @launch grid=(256,1,1) block=(768,1,1) lds={LDS_BYTES}\n"
    open(out, "w").write(hdr + e.text() + '.section .rodata,"a"\n' + descriptor(name, nv))
```

```python
NAME = "recurrent_scan__grouped_kv_mqa__dense_activation_relu__prompt"

XN   = 0x000000
QF   = 0x200000
KF   = 0x400000
VF   = 0x410000
KMAX = 0x420000
FLAGS= 0x421000
W1F  = 0x500000
W2F  = 0x700000
WOF  = 0x900000
HF   = 0xA00000
OF   = 0x1100000
GF   = 0x1300000
WS_BYTES = 0x2000000

class Asm:
    def __init__(self):
        self.lines = []
        self.uid = 0
    def __call__(self, s):
        for l in s.strip("\n").split("\n"):
            l = l.strip()
            if not l: continue
            if l.endswith(":") or l.startswith("."):
                self.lines.append(l)
            else:
                self.lines.append("    " + l)
    def label(self, base):
        self.uid += 1
        return f"L_{base}_{self.uid}"
    def text(self):
        return "\n".join(self.lines) + "\n"

def vr(a, n):
    return f"v[{a}:{a+n-1}]" if n > 1 else f"v{a}"
def sr(a, n):
    return f"s[{a}:{a+n-1}]" if n > 1 else f"s{a}"

def srd(e, d, base, nbytes):
    e(f"s_mov_b32 s{d}, s{base}")
    e(f"s_mov_b32 s{d+1}, s{base+1}")
    e(f"s_mov_b32 s{d+2}, {nbytes:#x}")
    e(f"s_mov_b32 s{d+3}, 0x20000")

def kernel_begin(e, name):
    e(f".globl {name}")
    e(".p2align 8")
    e(f".type {name},@function")
    e(f"{name}:")

def descriptor(name, nv, ns=100):
    acc = (nv + 3) // 4 * 4
    return f""".p2align 6
.amdhsa_kernel {name}
  .amdhsa_next_free_vgpr {nv}
  .amdhsa_next_free_sgpr {ns}
  .amdhsa_accum_offset {acc}
  .amdhsa_group_segment_fixed_size 0
  .amdhsa_kernarg_size 88
  .amdhsa_user_sgpr_count 2
  .amdhsa_user_sgpr_kernarg_segment_ptr 1
  .amdhsa_system_sgpr_workgroup_id_x 1
  .amdhsa_float_denorm_mode_32 3
  .amdhsa_float_denorm_mode_16_64 3
.end_amdhsa_kernel
"""
MFMA = "v_mfma_f32_32x32x16_bf16"

STAMP = False
import os
ALLREAL = bool(os.environ.get('ALLREAL'))
STAMP_OFF = 0x1700000
S_ST = 67
class Stamps:
    def __init__(self, e, kid):
        self.e = e; self.n = 0; self.kid = kid
    off = False
    def mark(self, real=False):
        if not STAMP or self.off: return
        e = self.e
        e(f"s_mem{'real' if (real or ALLREAL) else ''}time s[96:97]")
        e("s_waitcnt lgkmcnt(0)")
        e(f"s_mov_b32 s{S_ST+self.n}, s96")
        self.n += 1
    def flush(self, sW, sWS, vt0, vt1, nw, n=None):
        if not STAMP: return
        e = self.e
        n = n or self.n
        e("s_mov_b64 exec, 1")
        e(f"s_lshl_b32 s96, s2, 4")
        e(f"s_add_u32 s96, s96, s{sW}")
        e(f"s_lshl_b32 s96, s96, 6")
        e(f"s_add_u32 s96, s96, {STAMP_OFF + self.kid*0x40000}")
        e(f"v_mov_b32 v{vt1}, 0")
        for i in range(n):
            e(f"v_mov_b32 v{vt0}, s{S_ST+i}")
            e(f"buffer_store_dword v{vt0}, v{vt1}, {sr(sWS,4)}, s96 offen offset:{4*i}")
        e("s_mov_b64 exec, -1")

def STAMPON(): return STAMP
```

```python
import sys
from common import *
import common
import struct
def f32bits(x): return struct.unpack("<I", struct.pack("<f", x))[0]
LOG2E = 1.4426950408889634
QSCALE = 0.25 * LOG2E
BOUND2 = 40.0 * 40.0
M16 = "v_mfma_f32_16x16x32_bf16"

KF   = 0x000000
VF   = 0x010000
KMAX = 0x020000
EPOCH = 0x021000
KVFL = 0x028000
HFL  = 0x040000
OFL  = 0x080000
HF   = 0x100000
OF   = 0x800000
XS2, XS1, XRT = 528, 1056, 33792
L_XN  = 0
L_WQ  = 67584
L_R   = L_WQ + 65536
OSL   = 4608
L_OA  = L_WQ + 49152
RINGB = 12288
L_Q   = L_R + 20480
L_C   = L_Q + 8192
C_KVX, C_QRDY, C_QMAX, C_REDO, C_ADONE, C_G1, C_RED, C_WO, C_S1, C_S2, C_Z, C_KVD, C_KVL, C_TICK, C_S0, C_XN = [4*i for i in range(16)]
C_QW = 72
C_CHK = 76
C_KVF = 80
C_WQ = 84
C_KVS = 88
C_NON = 64
assert L_OA + 8*OSL == L_Q
L_RM  = L_C + 256
LDS_BYTES = L_RM + 1024
assert LDS_BYTES <= 163840
SPIN_MAX = 1 << 18
import os
OPT = dict(kv.split("=") for kv in os.environ.get("FOPT", "").split(",") if kv)
FPRIO = int(OPT.get("fprio", 2))
NOLD = int(OPT.get("nold", 6))
BOOST = int(OPT.get("boost", 1))
KVD_ACK = int(OPT.get("kvdack", 0))
PF1 = int(OPT.get("pf1", 0))
ABL = OPT.get("abl", "")
DBGT = int(OPT.get("dbgt", 0))
def dbg_time(e, idx, inv, va, vb):
    if not DBGT: return
    e("s_memrealtime s[96:97]")
    e("s_waitcnt lgkmcnt(0)")
    if inv: e("s_not_b32 s96, s96")
    e(f"v_mov_b32 v{va}, s96")
    e(f"v_mov_b32 v{vb}, {4*idx}")
    e("s_mov_b64 exec, 1")
    e(f"global_atomic_umax v{vb}, v{va}, s[22:23]")
    e("s_mov_b64 exec, -1")
GROUP = int(OPT.get("group", 2))
PF2 = int(OPT.get("pf2", 1))
QFIRST = int(OPT.get("qfirst", 0))
CSWAP = int(OPT.get("cswap", 1))
JIT = int(OPT.get("jit", 0))
EARLYP = int(OPT.get("earlyp", 1))
PFQ = int(OPT.get("pfq", 0))
FULLCHK = int(OPT.get("fullchk", 1))
WQLATE = int(OPT.get("wqlate", 1))
PSLEEP = int(OPT.get("psleep", 0))
PWQ = int(OPT.get("pwq", 1))
WQAT = OPT.get("wqat", "f")
LOT = OPT.get("lot", "567")
TLBW = int(OPT.get("tlbw", 0))
ROT = int(OPT.get("rot", 0))
FILLATE = int(OPT.get("fillate", 1))
XEARLY = int(OPT.get("xearly", 0))
YDELAY = int(OPT.get("ydelay", 2))
SENT = int(OPT.get("sent", 1))

sX, sWS, sWA, sOUT, sDBG = 28, 32, 36, 40, 44
sW, sRP, sCG, sT0, sT1, sT2, sT3, sCNT, sF = 48, 49, 50, 51, 52, 53, 54, 55, 56
sONES = 57
sNON = 58
sMASK = 60
sLN = 62
sSP = 3
vL, vL16, vT0, vT1, vT2, vCT = 1, 2, 3, 4, 5, 6
vDA, vDB = 7, 8

def decode_ids(e):
    e(f"s_and_b32 s{sRP}, s2, 7")
    e(f"s_lshl_b32 s{sRP}, s{sRP}, 2")
    e(f"s_lshr_b32 s{sCG}, s2, 6")
    e(f"s_add_u32 s{sRP}, s{sRP}, s{sCG}")
    e(f"s_lshr_b32 s{sCG}, s2, 3")
    e(f"s_and_b32 s{sCG}, s{sCG}, 7")

def lds_signal(e, off, vtmp):
    e("s_waitcnt lgkmcnt(0)")
    e(f"v_mov_b32 v{vtmp}, 1")
    e("s_mov_b64 exec, 1")
    e(f"ds_add_u32 v{vCT}, v{vtmp} offset:{off}")
    e("s_mov_b64 exec, -1")

def lds_wait(e, off, n, vtmp, sleep=1, vaddr=None, exact=False):
    L, D = e.label("lw"), e.label("lwd")
    vaddr = vCT if vaddr is None else vaddr
    e(f"s_mov_b32 s{sSP}, {SPIN_MAX*8}")
    e(f"{L}:")
    e(f"ds_read_b32 v{vtmp}, v{vaddr} offset:{off}")
    e(f"s_sub_u32 s{sSP}, s{sSP}, 1")
    e("s_waitcnt lgkmcnt(0)")
    e(f"v_cmp_{'ne' if exact else 'gt'}_u32 vcc, {n}, v{vtmp}")
    e(f"s_cbranch_vccz {D}")
    e(f"s_sleep {sleep}")
    e(f"s_cbranch_scc0 {L}")
    e(f"{D}:")

def fetch_nonce(e, vt):
    e(f"ds_read_b64 {vr(vt,2)}, v{vCT} offset:{C_NON}")
    e("s_waitcnt lgkmcnt(0)")
    e(f"v_readfirstlane_b32 s{sNON}, v{vt}")
    e(f"v_readfirstlane_b32 s{sNON+1}, v{vt+1}")

def flag_poll(e, vt, voff, soff, sleep=1):
    L, D = e.label("fp"), e.label("fpd")
    e(f"s_mov_b32 s{sSP}, {SPIN_MAX}")
    e(f"{L}:")
    e(f"buffer_load_dwordx2 {vr(vt,2)}, v{voff}, {sr(sWS,4)}, s{soff} offen sc1")
    e(f"s_sub_u32 s{sSP}, s{sSP}, 1")
    e("s_waitcnt vmcnt(0)")
    e(f"v_cmp_ne_u64 vcc, {sr(sNON,2)}, {vr(vt,2)}")
    e(f"s_cbranch_vccz {D}")
    e(f"s_sleep {sleep}")
    e(f"s_cbranch_scc0 {L}")
    e(f"{D}:")

def flag_set(e, vt, soff):
    e(f"v_mov_b32 v{vt}, s{sNON}")
    e(f"v_mov_b32 v{vt+1}, s{sNON+1}")
    e(f"v_mov_b32 v{vt+2}, 0")
    e("s_waitcnt vmcnt(0)")
    e("s_mov_b64 exec, 1")
    e(f"buffer_store_dwordx2 {vr(vt,2)}, v{vt+2}, {sr(sWS,4)}, s{soff} offen sc1")
    e("s_mov_b64 exec, -1")

def set_srd(e, d, base, nbytes):
    srd(e, d, base, nbytes)

def layernorm_rows(e, n, X, T, U, srow, vm_after, mid=None, st=None):
    S1, S2 = T, T + n
    def dots(js):
        for i in range(4):
            for j in js:
                x = X + 4*j + i
                e(f"v_dot2_f32_bf16 v{S1+j}, v{x}, s{sONES}, {'0' if i == 0 else 'v' + str(S1+j)}")
                e(f"v_dot2_f32_bf16 v{S2+j}, v{x}, v{x}, {'0' if i == 0 else 'v' + str(S2+j)}")
    for j in range(0, n, 2):
        if vm_after is not None: e(f"s_waitcnt vmcnt({vm_after + n - 2 - j})")
        dots([j, j+1])
    e("s_nop 2")
    if st: st.mark()
    A = T + 2*n
    p32 = [(0, 2), (1, 3)] + ([(4, 5)] if n == 6 else [])
    for base in (S1, S2):
        for (a, b) in p32:
            e(f"v_permlane32_swap_b32 v{base+a}, v{base+b}")
    for base in (S1, S2):
        for (a, b) in p32:
            e(f"v_add_f32 v{base+a}, v{base+a}, v{base+b}")
    if n == 6:
        e(f"v_mov_b32 v{S1+5}, v{S1+4}")
        e(f"v_mov_b32 v{S2+5}, v{S2+4}")
    e("s_nop 1")
    p16 = [(0, 1)] + ([(4, 5)] if n == 6 else [])
    for base in (S1, S2):
        for (a, b) in p16:
            e(f"v_permlane16_swap_b32 v{base+a}, v{base+b}")
    e("s_nop 0")
    for base in (S1, S2):
        for (a, b) in p16:
            e(f"v_add_f32 v{base+a}, v{base+a}, v{base+b}")
    G = [0] + ([4] if n == 6 else [])
    for rot in (8, 4, 2, 1):
        e("s_nop 1" if len(G) == 1 else "s_nop 0")
        for g in G:
            for base in (S1, S2):
                e(f"v_add_f32_dpp v{base+g}, v{base+g}, v{base+g} row_ror:{rot} row_mask:0xf bank_mask:0xf")
    def each(fmt):
        for gi, g in enumerate(G):
            e(fmt.format(m=S1+g, v=S2+g, t=A+gi))
    each(f"v_mul_f32 v{{m}}, {f32bits(1/512):#x}, v{{m}}")
    each(f"v_mul_f32 v{{v}}, {f32bits(1/512):#x}, v{{v}}")
    each("v_fma_f32 v{v}, -v{m}, v{m}, v{v}")
    each("v_max_f32 v{v}, 0, v{v}")
    each("v_cvt_pk_bf16_f32 v{t}, v{m}, v{v}")
    each("v_lshlrev_b32 v{m}, 16, v{t}")
    each("v_and_b32 v{v}, 0xffff0000, v{t}")
    each(f"v_add_f32 v{{v}}, {f32bits(1e-5):#x}, v{{v}}")
    each("v_cvt_pk_bf16_f32 v{v}, v{v}, v{v}")
    each("v_lshlrev_b32 v{v}, 16, v{v}")
    each("v_sqrt_f32 v{v}, v{v}")
    e("s_nop 0")
    each("v_cvt_pk_bf16_f32 v{v}, v{v}, v{v}")
    each("v_lshlrev_b32 v{v}, 16, v{v}")
    each("v_rcp_f32 v{v}, v{v}")
    e("s_nop 0")
    each("v_mul_f32 v{m}, -v{m}, v{v}")
    e("s_nop 0")
    if mid: mid()
    if st: st.mark()
    lane_of = [0, 16, 32, 48, 0, 32]
    grp_of = [0, 0, 0, 0, 4, 4]
    vA = A + 2
    e(f"v_mul_u32_u24 v{vA}, {XS2}, v{vL}")
    AD, CC = A + 3, A + 4
    assert CC % 2 == 0 and U % 2 == 0
    def head(j):
        e(f"v_readlane_b32 s{sLN + 2*(j & 1)}, v{S2+grp_of[j]}, {lane_of[j]}")
        e(f"v_readlane_b32 s{sLN+4}, v{S1+grp_of[j]}, {lane_of[j]}")
        x, P = X + 4*j, U + 8*(j & 1)
        for i in range(4):
            e(f"v_lshlrev_b32 v{P+2*i}, 16, v{x+i}")
            e(f"v_and_b32 v{P+2*i+1}, 0xffff0000, v{x+i}")
            if i == 1: e(f"v_mov_b32 v{CC + 2*(j & 1)}, s{sLN+4}")
    def fma(j):
        P = U + 8*(j & 1)
        for i in range(4):
            e(f"v_pk_fma_f32 {vr(P+2*i,2)}, {vr(P+2*i,2)}, {sr(sLN + 2*(j & 1),2)}, {vr(CC + 2*(j & 1),2)} op_sel_hi:[1,0,0]")
    def tail(j):
        x, P = X + 4*j, U + 8*(j & 1)
        e(f"v_add_u32 v{AD}, s{srow[j]}, v{vA}")
        for i in range(4):
            e(f"v_cvt_pk_bf16_f32 v{x+i}, v{P+2*i}, v{P+2*i+1}")
        e(f"ds_write_b128 v{AD}, {vr(x,4)}")
    head(0)
    for j in range(n):
        fma(j)
        if j + 1 < n: head(j + 1)
        tail(j)

def tr_common(e, vd, t0, t1):
    e(f"v_and_b32 v{t0}, 12, v{vL}")
    e(f"v_lshlrev_b32 v{vd}, 5, v{t0}")
    e(f"v_lshrrev_b32 v{t0}, 3, v{vL}")
    e(f"v_and_b32 v{t0}, 2, v{t0}")
    e(f"v_bfe_u32 v{t1}, v{vL}, 1, 1")
    e(f"v_or_b32 v{t0}, v{t0}, v{t1}")
    e(f"v_lshrrev_b32 v{t1}, 1, v{vL}")
    e(f"v_and_b32 v{t1}, 4, v{t1}")
    e(f"v_xor_b32 v{t0}, v{t0}, v{t1}")
    e(f"v_lshl_add_u32 v{vd}, v{t0}, 4, v{vd}")
    e(f"v_and_b32 v{t0}, 1, v{vL}")
    e(f"v_lshl_add_u32 v{vd}, v{t0}, 3, v{vd}")

def dpp_max16(e, v):
    for ctl in ("row_ror:8", "row_ror:4", "row_ror:2", "row_ror:1"):
        e("s_nop 1")
        e(f"v_max_f32_dpp v{v}, v{v}, v{v} {ctl} row_mask:0xf bank_mask:0xf")

def swap_op(e, op, kind, v, t):
    e(f"v_mov_b32 v{t}, v{v}")
    e("s_nop 1")
    e(f"v_permlane{kind}_swap_b32 v{v}, v{t}")
    e("s_nop 0")
    e(f"{op} v{v}, v{v}, v{t}")


OCNT = 4096 + 256
def stage_w512(e, base_sreg, lbase, sIDX, nparts, sSO):
    rows = 512 // nparts
    set_srd(e, sWA, base_sreg, 512*512*2)
    e(f"s_mul_i32 s{sSO}, s{sIDX}, {rows*1024}")
    e(f"s_lshl_b32 s{sT0}, s{sCG}, 7")
    e(f"s_add_u32 s{sSO}, s{sSO}, s{sT0}")
    e(f"s_mul_i32 s{sT0}, s{sIDX}, {rows*128}")
    for i in range(rows // 16):
        e(f"s_add_u32 m0, s{sT0}, {lbase + 2048*i}")
        if i: e(f"s_add_u32 s{sSO}, s{sSO}, 16384")
        else: e("s_nop 0")
        e(f"buffer_load_dwordx4 v{vDA}, {sr(sWA,4)}, s{sSO} offen lds")
        e(f"buffer_load_dwordx4 v{vDB}, {sr(sWA,4)}, s{sSO} offen offset:1024 lds")

A_Q, A_KR, A_VR, A_S0, A_S1, A_O = 12, 16, 48, 112, 128, 144
vOA, vQA, vVO = 7, 8, 9
vONE = 9
def a_flush(e):
    O = A_O
    dst = {8: O+10, 7: O+12, 6: O+14, 5: O+8, 4: O+6, 3: O+4, 2: 10, 1: O+2, 0: O}
    prev = None
    for r in range(8, -1, -1):
        e(f"v_cvt_f64_f32 {vr(dst[r],2)}, v{O+r}")
        if prev is not None and prev != 8:
            e(f"ds_add_f64 v{vOA}, {vr(dst[prev],2)} offset:{512*prev}")
        prev = r
    e(f"ds_add_f64 v{vOA}, {vr(dst[0],2)}")
    e("s_mov_b32 exec_hi, 0")
    e(f"ds_add_f64 v{vOA}, {vr(dst[8],2)} offset:4096")
    e("s_mov_b32 exec_lo, 1")
    e(f"ds_add_rtn_u32 v{vT0}, v{vOA}, v{vONE} offset:{OCNT}")
    e("s_mov_b64 exec, -1")
    e(f"v_subrev_u32 v{vOA}, {OSL}, v{vOA}")
    e("s_waitcnt lgkmcnt(0)")
    e(f"v_readfirstlane_b32 s{sT0}, v{vT0}")
    e("s_nop 0")
    last_arriver(e)

sQT, sLAST, sRET = 84, 85, 86
ROWS = [84, 85, 86, 87, 88, 89]
XOFF = [90, 91, 92, 93, 94, 95]
def last_arriver(e):
    L = e.label("nl")
    e(f"s_cmp_lg_u32 s{sT0}, s{sLAST}")
    e(f"s_cbranch_scc1 {L}")
    e(f"s_cmp_lg_u32 s{sQT}, 7")
    e(f"s_cbranch_scc1 {L}")
    e(f"s_call_b64 {sr(sRET,2)}, L_pub")
    e(f"{L}:")
    e(f"s_add_u32 s{sQT}, s{sQT}, 1")

def attention_role(e, st):
    Q, KR, VR, S0, S1, O = A_Q, A_KR, A_VR, A_S0, A_S1, A_O
    X, T = 112, 136
    e("L_attn:")
    rows = ROWS
    if common.STAMP:
        e(f"s_mov_b32 s{common.S_ST}, s98")
        e(f"s_mov_b32 s{common.S_ST+1}, s96")
    row_offsets(e, sT2, 6)
    e(f"s_mov_b32 s{sMASK}, 0xffff")
    e(f"s_mov_b32 s{sMASK+1}, 0xffff")
    Lnq = e.label("nopq")
    e(f"s_cmp_lt_u32 s{sW}, 6")
    e(f"s_cbranch_scc1 {Lnq}")
    e(f"s_lshr_b32 s{sT1}, s2, 3")
    e(f"s_lshl_b32 s{sT1}, s{sT1}, 1")
    e(f"s_add_u32 s{sT0}, s{sW}, s{sT1}")
    e(f"s_sub_u32 s{sT0}, s{sT0}, 6")
    e(f"s_lshl_b32 s{sT0}, s{sT0}, 13")
    e(f"v_lshl_add_u32 v10, v{vL}, 7, s{sT0}")
    e(f"global_load_dword v10, v10, s[6:7]")
    e(f"{Lnq}:")
    vPO_, vKM = 160, 161
    e(f"v_and_b32 v{vT0}, 31, v{vL}")
    e(f"v_cmp_eq_u32 vcc, 16, v{vT0}")
    e(f"v_mov_b32 v{vT1}, 0x3f803f80")
    e(f"v_and_b32 v{vVO}, 15, v{vL}")
    e(f"v_cndmask_b32 v{VR}, 0, v{vT1}, vcc")
    e(f"v_cndmask_b32 v{VR+1}, 0, v{vT1}, vcc")
    for i in range(2, 64, 2):
        e(f"v_mov_b64 {vr(VR+i,2)}, {vr(VR,2)}")
    e(f"v_lshlrev_b32 v{vKM}, 2, v{vVO}")
    e(f"v_lshlrev_b32 v{vVO}, 4, v{vVO}")
    e(f"v_lshrrev_b32 v{vT1}, 5, v{vL}")
    e(f"v_lshl_add_u32 v{vVO}, v{vT1}, 8, v{vVO}")
    e(f"v_lshlrev_b32 v{vOA}, 3, v{vL}")
    e(f"v_add_u32 v{vOA}, {L_OA + 7*OSL}, v{vOA}")
    e(f"v_add_u32 v{vQA}, {L_Q}, v{vL16}")
    e(f"v_lshlrev_b32 v{vPO_}, 7, v{vT0}")
    sK0, sK1, sV0, sV1, sKM, sFLG = 90, 91, 92, 93, 94, 95
    e(f"s_lshr_b32 s{sK1}, s2, 1")
    e(f"s_and_b32 s{sK1}, s{sK1}, {4 if CSWAP else 0}")
    e(f"s_xor_b32 s{sK1}, s{sK1}, s{sW}")
    e(f"s_lshl_b32 s{sFLG}, s{sK1}, 12")
    e(f"s_add_u32 s{sFLG}, s{sFLG}, {KVFL}")
    e(f"s_lshl_b32 s{sKM}, s{sK1}, 6")
    e(f"s_add_u32 s{sKM}, s{sKM}, {KMAX}")
    e(f"s_lshl_b32 s{sK0}, s{sK1}, 13")
    e(f"s_add_u32 s{sK1}, s{sK0}, {KF + 4096}")
    e(f"s_add_u32 s{sV0}, s{sK0}, {VF}")
    e(f"s_add_u32 s{sV1}, s{sK0}, {VF + 4096}")
    assert KF == 0
    common_setup(e)
    Lw1, Lw2 = e.label("xw"), e.label("xw2")
    e(f"s_cmp_lt_u32 s{sW}, 6")
    e(f"s_cbranch_scc1 {Lw1}")
    e("s_waitcnt vmcnt(1)")
    e(f"s_branch {Lw2}")
    e(f"{Lw1}:")
    e("s_waitcnt vmcnt(0)")
    e(f"{Lw2}:")
    st.mark()
    layernorm_rows(e, 6, X, T, 16, rows, None, st=st if OPT.get("lnst") else None)
    if OPT.get("lnst"): st.mark()
    lds_signal(e, C_XN, vT0)
    st.mark()
    lds_wait(e, *((C_WQ, 4) if PWQ else (C_KVF, 1)), vT1)
    fetch_nonce(e, S0)
    st.mark()
    if PSLEEP: e(f"s_sleep {PSLEEP}")
    flag_poll(e, S0, vPO_, sFLG, sleep=int(OPT.get("kvsleep", 1)))
    st.mark()
    if YDELAY == 2:
        Ly = e.label("old")
        e(f"s_cmp_lt_u32 s{sW}, 4")
        e(f"s_cbranch_scc1 {Ly}")
        lds_wait(e, C_KVL, 4, vT1, sleep=1)
        e(f"{Ly}:")
    log = []
    def ldk(t):
        log.append(("K", t))
        return [f"buffer_load_dwordx4 {vr(KR+4*t,4)}, v{vL16}, {sr(sWS,4)}, s{sK0 if t < 4 else sK1} offen offset:{(t%4)*1024} sc1"]
    def ldv(t):
        log.extend([("V", t)]*2)
        return [f"s_mov_b64 exec, {sr(sMASK,2)}"] + \
               [f"buffer_load_dwordx4 {vr(VR+8*t+4*h,4)}, v{vVO}, {sr(sWS,4)}, s{sV0 if t < 4 else sV1} offen offset:{(t%4)*1024+512*h} sc1" for h in range(2)] + \
               ["s_mov_b64 exec, -1"]
    def wait_for(items):
        last = max(i for i, it in enumerate(log) if it in items)
        return f"s_waitcnt vmcnt({len(log) - 1 - last})"
    order = [("K", 0), ("K", 1), ("V", 0), ("K", 2), ("V", 1), ("K", 3), ("V", 2), ("K", 4), ("V", 3), ("K", 5), ("V", 4), ("K", 6), ("V", 5), ("K", 7), ("V", 6), ("V", 7)]
    ld = lambda it: ldk(it[1]) if it[0] == "K" else ldv(it[1])
    NPRE = int(OPT.get("npre", 6)) if JIT else 16
    for it in order[:NPRE]:
        for l in ld(it): e(l)
    e(f"buffer_load_dword v{vT2}, v{vKM}, {sr(sWS,4)}, s{sKM} offen sc1"); log.append(("M", 0))
    rest = order[NPRE:]
    if JIT:
        Lo = e.label("jo")
        e(f"s_cmp_lt_u32 s{sW}, 4")
        e(f"s_cbranch_scc1 {Lo}")
        keep = list(log)
        for it in rest:
            for l in ld(it): e(l)
        log[:] = keep
        lds_signal(e, C_KVL, vONE)
        e("s_waitcnt vmcnt(0)")
        e(f"{Lo}:")
    else:
        lds_signal(e, C_KVL, vONE)
    lds_wait(e, C_QW, 2 if QFIRST else 4, vT0)
    e(f"ds_read_b128 {vr(Q,4)}, v{vQA}")
    e(wait_for([("K", 0)]))
    e("s_waitcnt lgkmcnt(0)")
    e(f"{MFMA} {vr(S0,16)}, {vr(KR,4)}, {vr(Q,4)}, 0")
    e(f"s_cmp_ge_u32 s{sW}, 4")
    def jit_group(n):
        out = []
        if rest:
            L = e.label("js")
            out.append(f"s_cbranch_scc1 {L}")
            for it in rest[:n]: out += ld(it)
            del rest[:n]
            if not rest:
                out += [f"v_mov_b32 v{vONE}, 1", "s_mov_b64 exec, 1", f"ds_add_u32 v{vCT}, v{vONE} offset:{C_KVL}", "s_mov_b64 exec, -1"]
            out.append(f"{L}:")
        return out
    for l in jit_group(int(OPT.get("jn", 4))): e(l)
    e("s_nop 9")
    st.mark()
    def qtile(first, base):
        for t in range(8):
            a = S0 if (t & 1) == 0 else S1
            b = S1 if (t & 1) == 0 else S0
            tp = (t - 1) % 8
            tn = (t + 1) % 8
            ex = [f"v_exp_f32 v{a+i}, v{a+i}" for i in range(16)]
            pk = [f"v_cvt_pk_bf16_f32 v{a+i}, v{a+2*i}, v{a+2*i+1}" for i in range(8)]
            if OPT.get("perm"): pk = [f"v_perm_b32 v{a+i}, v{a+2*i+1}, v{a+2*i}, s88" for i in range(8)]
            c0 = "0" if t == 1 else vr(O,16)
            pv0 = [f"{MFMA} {vr(O,16)}, {vr(VR+8*tp,4)}, {vr(b,4)}, {c0}"]
            pv1 = [f"{MFMA} {vr(O,16)}, {vr(VR+8*tp+4,4)}, {vr(b+4,4)}, {vr(O,16)}"]
            qk = [f"{MFMA} {vr(b,16)}, {vr(KR+4*tn,4)}, {vr(Q,4)}, 0"]
            wait, extra = [], []
            if first:
                if t == 0: pv0 = pv1 = []
                need = ([("K", t+1)] if t < 7 else []) + ([("V", t-1)] if t > 0 else [])
                wait = [wait_for(need)]
                extra += jit_group(int(OPT.get("jn", 4)))
            if t == 7: wait += ["s_waitcnt lgkmcnt(0)"]
            if t == 6: extra += [f"ds_read_b128 {vr(Q,4)}, v{vQA} offset:1024"]
            bs = base if isinstance(base, int) else (0 if str(t) in base else 1)
            hi, lo = ["s_setprio 3"], [f"s_setprio {bs}"]
            if not BOOST: hi = []
            seq = wait + hi + pv0 + ex[0:3] + pv1 + ex[3:6] + qk + lo + extra
            if t == 0 and not first:
                dst = {8: O+10, 7: O+12, 6: O+14, 5: O+8, 4: O+6, 3: O+4, 2: 10, 1: O+2, 0: O}
                cv = {r: f"v_cvt_f64_f32 {vr(dst[r],2)}, v{O+r}" for r in range(9)}
                da = {r: f"ds_add_f64 v{vOA}, {vr(dst[r],2)} offset:{512*r}" for r in range(9)}
                seq += [pk[0], pk[1]] + ex[6:8] + [pk[2]] + ex[8:10]
                seq += [cv[8], pk[3], cv[7], ex[10], da[7], cv[6], ex[11], da[6], cv[5], pk[4], da[5], cv[4], ex[12], da[4], cv[3], ex[13], da[3],
                        cv[2], pk[5], da[2], cv[1], ex[14], da[1], cv[0], ex[15], da[0], pk[6],
                        "s_mov_b32 exec_hi, 0", da[8], "s_mov_b32 exec_lo, 1", f"ds_add_u32 v{vOA}, v{vONE} offset:{OCNT}", "s_mov_b64 exec, -1", pk[7],
                        f"v_subrev_u32 v{vOA}, {OSL}, v{vOA}"]
            else:
                seq += [pk[0], pk[1]] + ex[6:8] + [pk[2]] + ex[8:10] + [pk[3]] + ex[10:12] + [pk[4]] + ex[12:14] + [pk[5]]
                seq += ex[14:16] + [pk[6], pk[7]]
            for x in seq: e(x)
        e(f"v_add_u32 v{vQA}, 1024, v{vQA}")
        if not first: e(f"s_add_u32 s{sQT}, s{sQT}, 1")
    if OPT.get("perm"): e("s_mov_b32 s88, 0x07060302")
    BASE = 1 if NOLD < 8 else 0
    qtile(True, BASE)
    lds_wait(e, C_Z, 4, vT0)
    e(f"ds_read_b32 v{vT1}, v{vCT} offset:{C_QMAX}")
    e(f"s_mov_b32 s{sLAST}, 7")
    e("s_waitcnt vmcnt(0) lgkmcnt(0)")
    dpp_max16(e, vT2)
    e(f"v_mul_f32 v{vT2}, v{vT2}, v{vT1}")
    e(f"v_cmp_nge_f32 vcc, {f32bits(BOUND2):#x}, v{vT2}")
    Lok = e.label("bok")
    e(f"s_cbranch_vccz {Lok}")
    lds_signal(e, C_REDO, vT0)
    e(f"v_mov_b32 v{vONE}, 0x101")
    e(f"s_mov_b32 s{sLAST}, -1")
    e(f"{Lok}:")
    lds_signal(e, C_CHK, vT0)
    e(f"s_mov_b32 s{sQT}, 0")
    if LOT != "x":
        LA, LB, LE = e.label("aloopa"), e.label("aloopb"), e.label("aloope")
        e(f"s_cmp_lt_u32 s{sW}, 4")
        e(f"s_cbranch_scc1 {LB}")
        e(".p2align 6")
        e(f"{LA}:")
        qtile(False, 1)
        e(f"s_cmp_lt_u32 s{sQT}, 7")
        e(f"s_cbranch_scc1 {LA}")
        e(f"s_branch {LE}")
        e(".p2align 6")
        e(f"{LB}:")
        qtile(False, LOT)
        e(f"s_cmp_lt_u32 s{sQT}, 7")
        e(f"s_cbranch_scc1 {LB}")
        e(f"{LE}:")
    else:
        e(f"s_cmp_lt_u32 s{sW}, 4")
        e(f"s_cselect_b32 s{sCNT}, {NOLD - 1}, 7")
        LA, LB, LE = e.label("aloopa"), e.label("aloopb"), e.label("aloope")
        e(".p2align 6")
        e(f"{LA}:")
        qtile(False, BASE)
        e(f"s_cmp_lt_u32 s{sQT}, s{sCNT}")
        e(f"s_cbranch_scc1 {LA}")
        if NOLD < 8:
            e(f"s_cmp_eq_u32 s{sQT}, 7")
            e(f"s_cbranch_scc1 {LE}")
            e(f"{LB}:")
            qtile(False, 0)
            e(f"s_cmp_lt_u32 s{sQT}, 7")
            e(f"s_cbranch_scc1 {LB}")
            e(f"{LE}:")
    e("s_setprio 3")
    e(f"{MFMA} {vr(O,16)}, {vr(VR+56,4)}, {vr(S1,4)}, {vr(O,16)}")
    e(f"{MFMA} {vr(O,16)}, {vr(VR+60,4)}, {vr(S1+4,4)}, {vr(O,16)}")
    e("s_nop 11")
    a_flush(e)
    st.mark()
    lds_wait(e, C_CHK, 8, vT0)
    e(f"ds_read_b32 v{vT0}, v{vCT} offset:{C_REDO}")
    e("s_waitcnt lgkmcnt(0)")
    e(f"v_cmp_ne_u32 vcc, 0, v{vT0}")
    e(f"s_cbranch_vccnz L_slow")
    e("L_aend:")
    st.mark(); st.mark(True)
    st.flush(sW, sWS, vT0, vT1, 12)
    e("s_endpgm")
    e("L_pub:")
    publish(e, vOA, OSL, sQT, S1, vT1)
    e(f"s_setpc_b64 {sr(sRET,2)}")

def publish(e, va, off, sq, F, vt):
    e(f"v_and_b32 v{vt}, 32, v{vL}")
    e(f"v_lshlrev_b32 v{vt}, 3, v{vt}")
    e(f"v_sub_u32 v{vt}, v{va}, v{vt}")
    e(f"ds_read_b64 {vr(F+16,2)}, v{vt} offset:{off + 4096}")
    for r in range(8):
        e(f"ds_read_b64 {vr(F+2*r,2)}, v{va} offset:{off + 512*r}")
    e(f"s_lshl_b32 s{sT0}, s{sRP}, 3")
    e(f"s_and_b32 s{sT1}, s{sq}, 1")
    e(f"s_lshl_b32 s{sT1}, s{sT1}, 2")
    e(f"s_add_u32 s{sT0}, s{sT0}, s{sT1}")
    e(f"s_lshr_b32 s{sT1}, s{sq}, 1")
    e(f"s_add_u32 s{sT0}, s{sT0}, s{sT1}")
    e(f"s_lshl_b32 s{sT0}, s{sT0}, 3")
    e(f"s_add_u32 s{sT0}, s{sT0}, s{sCG}")
    e(f"s_lshl_b32 s{sT1}, s{sT0}, 10")
    e(f"s_add_u32 s{sT1}, s{sT1}, {OF}")
    e("s_waitcnt lgkmcnt(8)")
    e(f"v_cvt_f32_f64 v{F+16}, {vr(F+16,2)}")
    e(f"v_rcp_f32 v{F+16}, v{F+16}")
    e("s_waitcnt lgkmcnt(4)")
    for i in range(8):
        if i == 4: e("s_waitcnt lgkmcnt(0)")
        e(f"v_cvt_f32_f64 v{F+i}, {vr(F+2*i,2)}")
    for i in range(0, 8, 2):
        e(f"v_pk_mul_f32 {vr(F+i,2)}, {vr(F+i,2)}, {vr(F+16,2)} op_sel_hi:[1,0]")
    for i in range(4):
        e(f"v_cvt_pk_bf16_f32 v{F+i}, v{F+2*i}, v{F+2*i+1}")
    for i in range(4 if FULLCHK else 1):
        e(f"v_min_u32 v{F+i}, -2, v{F+i}")
    e(f"buffer_store_dwordx4 {vr(F,4)}, v{vL16}, {sr(sWS,4)}, s{sT1} offen sc1")

def attention_slow(e):
    Q, KR, VR, S0, S1, O = A_Q, A_KR, A_VR, A_S0, A_S1, A_O
    vRM = 0
    e("L_slow:")
    e("s_setprio 0")
    e(f"v_mov_b32 v{vONE}, 1")
    e(f"s_mov_b32 s{sLAST}, 7")
    e(f"s_mov_b32 s{sQT}, 0")
    e(f"s_mul_i32 s{sT0}, s{sW}, {OSL}")
    e(f"v_lshlrev_b32 v{vOA}, 3, v{vL}")
    e(f"v_add_u32 v{vOA}, {L_OA + 7*OSL}, v{vOA}")
    e(f"v_subrev_u32 v{vT1}, s{sT0}, v{vOA}")
    e(f"v_mov_b32 v10, 0")
    e(f"v_mov_b32 v11, 0")
    lds_signal(e, C_S0, vT0)
    lds_wait(e, C_S0, 8, vT0)
    for r in range(9):
        e(f"ds_write_b64 v{vT1}, v[10:11] offset:{512*r}")
    e(f"v_and_b32 v{vRM}, 31, v{vL}")
    e(f"v_lshlrev_b32 v{vRM}, 2, v{vRM}")
    e(f"v_add_u32 v{vRM}, {L_RM}, v{vRM}")
    e(f"s_lshl_b32 s{sT0}, s{sW}, 7")
    e(f"v_add_u32 v{vT1}, s{sT0}, v{vRM}")
    e(f"v_mov_b32 v{vT0}, 0xff800000")
    e(f"ds_write_b32 v{vT1}, v{vT0}")
    lds_signal(e, C_S1, vT0)
    lds_wait(e, C_S1, 8, vT0)
    e(f"v_add_u32 v{vQA}, {L_Q}, v{vL16}")
    e(f"v_mov_b32 v{vT2}, v{vRM}")
    e(f"s_mov_b32 s{sCNT}, 8")
    L1 = e.label("sp1")
    e(f"{L1}:")
    e(f"ds_read_b128 {vr(Q,4)}, v{vQA}")
    e(f"v_mov_b32 v{vT0}, 0xff800000")
    e("s_waitcnt lgkmcnt(0)")
    for t in range(8):
        e(f"{MFMA} {vr(S0,16)}, {vr(KR+4*t,4)}, {vr(Q,4)}, 0")
        e("s_nop 11")
        for i in range(0, 16, 2):
            e(f"v_max3_f32 v{vT0}, v{S0+i}, v{S0+i+1}, v{vT0}")
    e(f"ds_max_f32 v{vT2}, v{vT0}")
    e(f"v_add_u32 v{vQA}, 1024, v{vQA}")
    e(f"v_add_u32 v{vT2}, 128, v{vT2}")
    e(f"s_sub_u32 s{sCNT}, s{sCNT}, 1")
    e(f"s_cmp_lg_u32 s{sCNT}, 0")
    e(f"s_cbranch_scc1 {L1}")
    lds_signal(e, C_S2, vT0)
    lds_wait(e, C_S2, 8, vT0)
    e(f"v_add_u32 v{vQA}, {L_Q}, v{vL16}")
    e(f"s_mov_b32 s{sCNT}, 8")
    L2 = e.label("sp2")
    e(f"{L2}:")
    e(f"ds_read_b128 {vr(Q,4)}, v{vQA}")
    e(f"ds_read_b32 v{vT0}, v{vRM}")
    e("s_waitcnt lgkmcnt(0)")
    for i in range(16):
        e(f"v_sub_f32 v{S1+i}, 0, v{vT0}")
    e("s_nop 1")
    for t in range(8):
        e(f"{MFMA} {vr(S0,16)}, {vr(KR+4*t,4)}, {vr(Q,4)}, {vr(S1,16)}")
        e("s_nop 11")
        for i in range(16):
            e(f"v_exp_f32 v{S0+i}, v{S0+i}")
        for i in range(8):
            e(f"v_cvt_pk_bf16_f32 v{S0+i}, v{S0+2*i}, v{S0+2*i+1}")
        e("s_nop 1")
        e(f"{MFMA} {vr(O,16)}, {vr(VR+8*t,4)}, {vr(S0,4)}, {'0' if t == 0 else vr(O,16)}")
        e(f"{MFMA} {vr(O,16)}, {vr(VR+8*t+4,4)}, {vr(S0+4,4)}, {vr(O,16)}")
    e("s_nop 11")
    a_flush(e)
    e(f"v_add_u32 v{vQA}, 1024, v{vQA}")
    e(f"v_add_u32 v{vRM}, 128, v{vRM}")
    e(f"s_sub_u32 s{sCNT}, s{sCNT}, 1")
    e(f"s_cmp_lg_u32 s{sCNT}, 0")
    e(f"s_cbranch_scc1 {L2}")
    e("s_branch L_aend")

def silu(e, d, t):
    e(f"s_mov_b32 s{sLN}, {f32bits(-LOG2E):#x}")
    for i in range(0, 16, 2):
        e(f"v_pk_mul_f32 {vr(t+i,2)}, {vr(d+i,2)}, {sr(sLN,2)} op_sel_hi:[1,0]")
    for i in range(16):
        e(f"v_exp_f32 v{t+i}, v{t+i}")
    for i in range(0, 16, 2):
        e(f"v_pk_add_f32 {vr(t+i,2)}, {vr(t+i,2)}, 1.0 op_sel_hi:[1,0]")
    for i in range(16):
        e(f"v_rcp_f32 v{t+i}, v{t+i}")
    for i in range(0, 16, 2):
        e(f"v_pk_mul_f32 {vr(d+i,2)}, {vr(d+i,2)}, {vr(t+i,2)}")

def ffn_role(e, st, emit_attention):
    vD1A, vD1B = 9, 10
    vTRC, vTA0, vTA1, vXB, vHH = 11, 12, 13, 14, 15
    ACC, AF, BF = 16, 80, 96
    sRING, sSO, sB0, sB1, sGRP = 90, 91, 92, 93, 89
    vPF = BF + 59
    TS = bool(OPT.get("tailst"))
    GS = bool(OPT.get("g1st"))
    st.off = TS or GS
    def tm():
        if TS: st.mark()
    def gm():
        if GS:
            st.off = False; st.mark(); st.off = True
    if DBGT:
        e("s_memrealtime s[98:99]")
    X, T = 96, 112
    rows = ROWS[:4]
    if common.STAMP:
        e(f"s_mov_b32 s{common.S_ST}, s98")
        e(f"s_mov_b32 s{common.S_ST+1}, s96")
    e(f"s_lshl_b32 s{sT3}, s{sF}, 2")
    e(f"s_add_u32 s{sT2}, s{sT2}, s{sT3}")
    row_offsets(e, sT2, 4)
    e(f"v_lshrrev_b32 v{vT0}, 2, v{vL}")
    e(f"v_and_b32 v{vT0}, 4, v{vT0}")
    e(f"v_and_b32 v{vT1}, 7, v{vL}")
    e(f"v_xor_b32 v{vT1}, v{vT1}, v{vT0}")
    e(f"v_lshlrev_b32 v{vT1}, 4, v{vT1}")
    e(f"v_lshrrev_b32 v{vT0}, 3, v{vL}")
    e(f"v_lshl_add_u32 v{vDA}, v{vT0}, 10, v{vT1}")
    e(f"v_add_u32 v{vDB}, {8192-1024}, v{vDA}")
    common_setup(e)
    e(f"s_lshr_b32 s{sGRP}, s{sCG}, 1")
    e(f"v_mul_u32_u24 v{vD1A}, 3584, v{vT0}")
    e(f"v_add_u32 v{vD1A}, v{vD1A}, v{vT1}")
    e(f"v_add_u32 v{vD1B}, {8*3584-1024}, v{vD1A}")
    e(f"s_mul_i32 s{sRING}, s{sF}, {RINGB}")
    e(f"s_add_u32 s{sRING}, s{sRING}, {L_WQ}")
    tr_common(e, vTRC, vT0, vT1)
    e(f"v_lshrrev_b32 v{vHH}, 5, v{vL}")
    vWA, vXA, vG, vI, vSA = ACC+8, ACC+9, ACC+10, ACC+11, ACC+7
    e(f"v_lshrrev_b32 v{vG}, 4, v{vL}")
    e(f"v_and_b32 v{vI}, 15, v{vL}")
    e(f"v_lshlrev_b32 v{vWA}, 3, v{vI}")
    e(f"v_lshl_add_u32 v{vWA}, v{vG}, 8, v{vWA}")
    e(f"v_add_u32 v{vWA}, {L_R}, v{vWA}")
    e(f"v_mul_u32_u24 v{vXA}, {XS2}, v{vG}")
    e(f"v_lshl_add_u32 v{vXA}, v{vI}, 4, v{vXA}")
    e(f"v_add_u32 v{vXA}, s{rows[0]}, v{vXA}")
    e(f"s_lshr_b32 s{sB0}, s{sGRP}, 1")
    e(f"s_lshl_b32 s{sT1}, s{sRP}, 1")
    e(f"s_add_u32 s{sB0}, s{sB0}, s{sT1}")
    e(f"s_and_b32 s{sB1}, s{sGRP}, 1")
    e(f"s_and_b32 s{sT3}, s{sCG}, 1")
    e(f"s_sub_u32 s{sT0}, 9, s{sT3}")
    e(f"v_and_b32 v{vT0}, 1, v{vG}")
    e(f"v_lshlrev_b32 v{vT0}, s{sT0}, v{vT0}")
    e(f"v_lshrrev_b32 v{vT1}, 1, v{vG}")
    e(f"v_lshl_add_u32 v{vT0}, v{vT1}, 3, v{vT0}")
    e(f"v_lshl_add_u32 v{vSA}, v{vI}, 4, v{vT0}")
    e(f"s_add_u32 s{sT0}, s{sT3}, 8")
    e(f"s_lshl_b32 s{sSO}, s{sB1}, s{sT0}")
    e(f"s_lshl_b32 s{sT0}, s{sB0}, 10")
    e(f"s_add_u32 s{sSO}, s{sSO}, s{sT0}")
    e(f"s_lshl_b32 s{sT0}, s{sT3}, 16")
    assert VF == 0x10000
    e(f"s_add_u32 s{sSO}, s{sSO}, s{sT0}")
    layernorm_rows(e, 4, X, T, 136, rows, 5)
    e("s_waitcnt vmcnt(1)")
    lds_signal(e, C_KVX, vT0)
    st.mark()
    Lnokv = e.label("nokv")
    e(f"s_cmp_lg_u32 s{sF}, 0")
    e(f"s_cbranch_scc1 {Lnokv}")
    lds_wait(e, C_KVX, 4, vT0, sleep=0)
    FRG = 96
    def kvreads(kk):
        b = FRG + 8*(kk % 4)
        e(f"ds_read_b64_tr_b16 {vr(b,2)}, v{vWA} offset:{kk*1024}")
        e(f"ds_read_b64_tr_b16 {vr(b+2,2)}, v{vWA} offset:{kk*1024+128}")
        e(f"ds_read_b128 {vr(b+4,4)}, v{vXA} offset:{kk*4*XS2}")
    def kvchain(isv):
        for kk in range(16):
            e(f"s_waitcnt lgkmcnt({3*min(3, 15-kk)})")
            b = FRG + 8*(kk % 4)
            c = "0" if kk == 0 else vr(ACC,4)
            if isv: e(f"{M16} {vr(ACC,4)}, {vr(b+4,4)}, {vr(b,4)}, {c}")
            else:   e(f"{M16} {vr(ACC,4)}, {vr(b,4)}, {vr(b+4,4)}, {c}")
            if kk + 4 < 16: kvreads(kk + 4)
    Lv, Lkvs, Lkvd = e.label("kvv"), e.label("kvs"), e.label("kvd")
    for kk in range(4): kvreads(kk)
    e(f"s_bitcmp1_b32 s{sCG}, 0")
    e(f"s_cbranch_scc1 {Lv}")
    kvchain(False)
    e(f"s_branch {Lkvs}")
    e(f"{Lv}:")
    kvchain(True)
    e(f"{Lkvs}:")
    e("s_nop 7")
    e(f"v_cvt_pk_bf16_f32 v{ACC}, v{ACC}, v{ACC+1}")
    e(f"v_cvt_pk_bf16_f32 v{ACC+1}, v{ACC+2}, v{ACC+3}")
    e(f"buffer_store_dwordx2 {vr(ACC,2)}, v{vSA}, {sr(sWS,4)}, s{sSO} offen sc1")
    e(f"s_cbranch_scc1 {Lkvd}")
    e(f"v_dot2_f32_bf16 v{ACC+2}, v{ACC}, v{ACC}, 0")
    e(f"v_dot2_f32_bf16 v{ACC+2}, v{ACC+1}, v{ACC+1}, v{ACC+2}")
    e(f"s_lshl_b32 s{sT2}, s{sB0}, 1")
    e(f"s_add_u32 s{sT2}, s{sT2}, s{sB1}")
    e(f"s_lshl_b32 s{sT2}, s{sT2}, 2")
    swap_op(e, "v_add_f32", 16, ACC+2, ACC+3)
    swap_op(e, "v_add_f32", 32, ACC+2, ACC+3)
    dpp_max16(e, ACC+2)
    e(f"s_add_u32 s{sT2}, s{sT2}, {KMAX}")
    e(f"v_mov_b32 v{vT0}, 0")
    e("s_mov_b64 exec, 1")
    e(f"buffer_store_dword v{ACC+2}, v{vT0}, {sr(sWS,4)}, s{sT2} offen sc1")
    e("s_mov_b64 exec, -1")
    e(f"{Lkvd}:")
    if WQAT == "s": lds_signal(e, C_KVS, vT0)
    st.mark()
    e(f"s_lshl_b32 s{sT0}, s{sB0}, 2")
    e(f"s_lshl_b32 s{sT1}, s{sB1}, 1")
    e(f"s_add_u32 s{sT0}, s{sT0}, s{sT1}")
    e(f"s_add_u32 s{sT0}, s{sT0}, s{sT3}")
    e(f"s_lshl_b32 s{sT0}, s{sT0}, 7")
    e(f"s_add_u32 s{sT0}, s{sT0}, {KVFL}")
    assert ACC + 12 == 28
    e(f"v_mov_b32 v30, 0")
    e("s_waitcnt vmcnt(0)")
    e(f"v_add_co_u32 v28, vcc, 1, v28")
    e("s_nop 1")
    e(f"v_addc_co_u32 v29, vcc, 0, v29, vcc")
    e("s_mov_b64 exec, 1")
    e(f"buffer_store_dwordx2 v[28:29], v30, {sr(sWS,4)}, s{sT0} offen sc1")
    e("s_mov_b64 exec, -1")
    e(f"ds_write_b64 v{vCT}, v[28:29] offset:{C_NON}")
    lds_signal(e, C_KVF, vT0)
    st.mark()
    Lkvj = e.label("kvj")
    e(f"s_branch {Lkvj}")
    e(f"{Lnokv}:")
    if not st.off: st.n -= 2
    st.mark(); st.mark()
    e(f"{Lkvj}:")
    st.mark()
    def filler():
        e(f"s_lshl_b32 s{sT0}, s{sRP}, 3")
        e(f"s_add_u32 s{sT0}, s{sT0}, s{sF}")
        e(f"s_lshl_b32 s{sT0}, s{sT0}, 3")
        e(f"s_add_u32 s{sT0}, s{sT0}, s{sCG}")
        e(f"s_lshl_b32 s{sT0}, s{sT0}, 10")
        e(f"s_add_u32 s{sT0}, s{sT0}, {OF}")
        e(f"s_add_u32 s{sT1}, s{sT0}, 32768")
        e(f"v_mov_b64 {vr(BF+60,2)}, -1")
        e(f"v_mov_b64 {vr(BF+62,2)}, -1")
        e(f"buffer_store_dwordx4 {vr(BF+60,4)}, v{vL16}, {sr(sWS,4)}, s{sT0} offen sc1")
        e(f"buffer_store_dwordx4 {vr(BF+60,4)}, v{vL16}, {sr(sWS,4)}, s{sT1} offen sc1")
    if not FILLATE: filler()
    e(f"s_and_b32 s{sT0}, s{sF}, 1")
    e(f"s_mul_i32 s{sT0}, s{sT0}, {XRT}")
    e(f"v_and_b32 v{vXB}, 31, v{vL}")
    e(f"v_lshlrev_b32 v{vXB}, 4, v{vXB}")
    e(f"v_mul_u32_u24 v{vT0}, {XS2}, v{vHH}")
    e(f"v_add_u32 v{vXB}, v{vXB}, v{vT0}")
    e(f"v_add_u32 v{vT2}, s{sT0}, v{vXB}")
    e(f"s_lshr_b32 s{sT1}, s{sF}, 1")
    e(f"s_lshl_b32 s{sT1}, s{sT1}, 6")
    e(f"v_lshl_add_u32 v{vTA0}, v{vHH}, 10, v{vTRC}")
    e(f"v_xor_b32 v{vTA0}, s{sT1}, v{vTA0}")
    e(f"v_add_u32 v{vTA0}, {L_WQ}, v{vTA0}")
    NS = 5
    lds_wait(e, *((C_KVS, 1) if WQAT == "s" else (C_KVF, 1)), vT0, sleep=1)
    stage_w512(e, 6, L_WQ, sF, 4, sT1)
    e("s_waitcnt vmcnt(0)")
    lds_signal(e, C_WQ, vT0)
    lds_wait(e, C_WQ, 4, vT0, sleep=1)
    lds_wait(e, C_XN, 8, vT0, sleep=1)
    if QFIRST:
        Lq = e.label("qa")
        e(f"s_cmp_lt_u32 s{sF}, 2")
        e(f"s_cbranch_scc1 {Lq}")
        lds_wait(e, C_QW, 2, vT0, sleep=2)
        e(f"{Lq}:")
    st.mark()
    def qreads(ks):
        b = BF + 8*(ks % NS)
        e(f"ds_read_b64_tr_b16 {vr(b,2)}, v{vTA0} offset:{ks*2048}")
        e(f"ds_read_b64_tr_b16 {vr(b+2,2)}, v{vTA0} offset:{ks*2048+512}")
        e(f"ds_read_b128 {vr(b+4,4)}, v{vT2} offset:{ks*XS1}")
    for ks in range(NS): qreads(ks)
    for ks in range(32):
        e(f"s_waitcnt lgkmcnt({3*min(NS-1, 31-ks)})")
        b = BF + 8*(ks % NS)
        e(f"{MFMA} {vr(ACC,16)}, {vr(b,4)}, {vr(b+4,4)}, {'0' if ks == 0 else vr(ACC,16)}")
        if ks + NS < 32: qreads(ks + NS)
    e(f"s_and_b32 s{sT0}, s{sF}, 1")
    e(f"s_lshl_b32 s{sT0}, s{sT0}, 10")
    e(f"s_lshr_b32 s{sT1}, s{sF}, 1")
    e(f"s_lshl_b32 s{sT1}, s{sT1}, 12")
    e(f"s_add_u32 s{sT0}, s{sT0}, s{sT1}")
    e(f"s_add_u32 s{sT0}, s{sT0}, {L_Q}")
    e(f"v_add_u32 v{vT0}, s{sT0}, v{vL16}")
    e(f"s_mov_b32 s{sLN}, {f32bits(QSCALE):#x}")
    e("s_nop 3")
    for i in range(0, 16, 2):
        e(f"v_pk_mul_f32 {vr(ACC+i,2)}, {vr(ACC+i,2)}, {sr(sLN,2)} op_sel_hi:[1,0]")
    for i in range(8):
        e(f"v_cvt_pk_bf16_f32 v{ACC+i}, v{ACC+2*i}, v{ACC+2*i+1}")
    e(f"ds_write_b128 v{vT0}, {vr(ACC,4)}")
    e(f"ds_write_b128 v{vT0}, {vr(ACC+4,4)} offset:2048")
    lds_signal(e, C_QW, vT0)
    if OPT.get("qst2"): st.mark()
    if FILLATE: filler()
    e(f"s_setprio {FPRIO}")
    for h in range(2):
        e(f"v_dot2_f32_bf16 v{ACC+8+h}, v{ACC+4*h}, v{ACC+4*h}, 0")
    for i in range(1, 4):
        for h in range(2):
            e(f"v_dot2_f32_bf16 v{ACC+8+h}, v{ACC+4*h+i}, v{ACC+4*h+i}, v{ACC+8+h}")
    for i in range(4):
        e(f"v_mov_b32 v{ACC+12+i}, 0")
    e(f"v_permlane32_swap_b32 v{ACC+8}, v{ACC+9}")
    e(f"s_mul_i32 s{sT0}, s{sF}, {9*1024}")
    e(f"v_add_f32 v{ACC+8}, v{ACC+8}, v{ACC+9}")
    e(f"s_add_u32 s{sT0}, s{sT0}, {L_OA}")
    dpp_max16(e, ACC+8)
    e(f"v_add_u32 v{vT1}, s{sT0}, v{vL16}")
    e(f"s_mov_b32 exec_lo, 0x00010001")
    e(f"s_mov_b32 exec_hi, 0x00010001")
    e(f"ds_max_u32 v{vCT}, v{ACC+8} offset:{C_QMAX}")
    e("s_mov_b64 exec, -1")
    lds_wait(e, C_QW, 4, vT0)
    for i in range(9):
        e(f"ds_write_b128 v{vT1}, {vr(ACC+12,4)} offset:{1024*i}")
    e("s_waitcnt vmcnt(0)")
    lds_signal(e, C_Z, vT0)
    if not OPT.get("qst2"): st.mark()
    e(f"s_setprio {FPRIO}")
    e("s_branch L_g1")
    emit_attention()
    e("L_g1:")
    if OPT.get("pure"):
        for i in range(8): st.mark()
        st.mark(True)
        st.flush(sW, sWS, vT0, vT1, 12)
        e("s_endpgm")
    abl_start = len(e.lines)
    set_srd(e, sWA, 16, 512*1792*2)
    e(f"v_lshlrev_b32 v{vTA1}, 7, v{vL}")
    lds_wait(e, C_KVL, max(1, int(OPT.get("gate", 8))), vT0, sleep=4)
    fetch_nonce(e, AF)
    st.mark()
    if PF1:
        e(f"s_lshr_b32 s{sT0}, s2, 3")
        e(f"s_mul_i32 s{sT0}, s{sT0}, {448*128}")
        e(f"s_lshl_b32 s{sT1}, s{sF}, 14")
        e(f"s_add_u32 s{sT0}, s{sT0}, s{sT1}")
        e(f"s_add_u32 s{sT1}, s{sT0}, 8192")
        e(f"buffer_load_dword v{vPF}, v{vTA1}, {sr(sWA,4)}, s{sT0} offen sc1")
        e(f"buffer_load_dword v{vPF}, v{vTA1}, {sr(sWA,4)}, s{sT1} offen sc1")
    vPO, sP2, sPO = BF + 58, 40 + 48, 40 + 49
    sPS = 44
    def prefetch(i):
        if i < 2:
            e(f"buffer_load_dword v{vPF}, v{vPO}, {sr(sPS,4)}, s{sP2} offen sc1")
            e(f"s_add_u32 s{sP2}, s{sP2}, 8192")
        else:
            set_srd(e, sPS, 12, 512*512*2)
            e("s_mov_b32 exec_hi, 0")
            e(f"buffer_load_dword v{vPF}, v{vPO}, {sr(sPS,4)}, s{sPO} offen sc1")
            e("s_mov_b64 exec, -1")
    if PF2:
        set_srd(e, sPS, 18, 512*1792*2)
        e(f"v_lshlrev_b32 v{vPO}, 7, v{vL}")
        e(f"s_lshr_b32 s{sT0}, s2, 3")
        e(f"s_mul_i32 s{sP2}, s{sT0}, {448*128}")
        e(f"s_lshl_b32 s{sT1}, s{sF}, 14")
        e(f"s_add_u32 s{sP2}, s{sP2}, s{sT1}")
        e(f"s_lshl_b32 s{sPO}, s{sT0}, 14")
        e(f"s_lshl_b32 s{sT1}, s{sF}, 12")
        e(f"s_add_u32 s{sPO}, s{sPO}, s{sT1}")
    e(f"s_lshr_b32 s85, s2, 6" if ROT else "s_mov_b32 s85, 0")
    D = 6
    Lskip1 = e.label("g1skip")
    sJ = 84
    e(f"s_lshl_b32 s{sJ}, s{sCG}, 2")
    e(f"s_add_u32 s{sJ}, s{sJ}, s{sF}")
    e(f"s_cmp_ge_u32 s{sJ}, 28")
    e(f"s_cbranch_scc1 {Lskip1}")
    e(f"s_lshl_b32 s{sSO}, s{sJ}, 7")
    sR, sSB, sSG = 85, 86, 87
    SEG = [8]
    def seg_off(dst, sidx, per_seg, base):
        out = [f"s_add_u32 s{sSG}, s{sR}, {sidx}", f"s_and_b32 s{sSG}, s{sSG}, 3", f"s_mul_i32 s{sSG}, s{sSG}, {per_seg}"]
        if base is None: return out
        return out + [f"s_add_u32 s{dst}, s{sSG}, s{base}"]
    e(f"s_mov_b32 s{sSB}, s{sSO}")
    def dma_l(k, va, vb, step):
        if k % SEG[0] == 0: adv = seg_off(sSO, k // SEG[0], SEG[0]*step, sSB)
        else: adv = [f"s_add_u32 s{sSO}, s{sSO}, {step}"]
        return [[f"s_add_u32 m0, s{sRING}, {2048*(k % D)}"] + adv + [
                 f"buffer_load_dwordx4 v{va}, {sr(sWA,4)}, s{sSO} offen lds"],
                [f"buffer_load_dwordx4 v{vb}, {sr(sWA,4)}, s{sSO} offen offset:1024 lds"]]
    def dma(k, va, vb, step):
        for g in dma_l(k, va, vb, step):
            for l in g: e(l)
    def areads_l(k, second):
        b = AF + 8*(k & 1)
        o = 2048*(k % D)
        return [f"ds_read_b64_tr_b16 {vr(b,2)}, v{vTA0} offset:{o}", f"ds_read_b64_tr_b16 {vr(b+2,2)}, v{vTA0} offset:{o+second}",
                f"ds_read_b64_tr_b16 {vr(b+4,2)}, v{vTA1} offset:{o}", f"ds_read_b64_tr_b16 {vr(b+6,2)}, v{vTA1} offset:{o+second}"]
    def mfma_l(k, bb0):
        a = AF + 8*(k & 1)
        out = []
        for (i, j) in ((0, 0), (0, 1), (1, 1), (1, 0)):
            d = ACC + 16*(2*i+j)
            out.append(f"{MFMA} {vr(d,16)}, {vr(a+4*i,4)}, {vr(bb0+4*j,4)}, {'0' if k == 0 else vr(d,16)}")
        return out
    def weave(ms, fill):
        for i in range(4):
            e(ms[i])
            for l in fill[i]: e(l)
    NK = 32
    log1 = []
    for k in range(D):
        dma(k, vD1A, vD1B, 16*3584); log1 += [k]*2
    e(f"v_lshl_add_u32 v{vTA0}, v{vHH}, 10, v{vTRC}")
    e(f"v_add_u32 v{vTA0}, s{sRING}, v{vTA0}")
    e(f"v_xor_b32 v{vTA1}, 64, v{vTA0}")
    def g1reads_l(k):
        b = BF + 8*(k & 1)
        pre = []
        if k % 8 == 0: pre = seg_off(None, k // 8, 8*XS1, None) + [f"v_add_u32 v{vT2}, s{sSG}, v{vXB}"]
        return areads_l(k, 512) + ["\n".join(pre + [f"ds_read_b128 {vr(b,4)}, v{vT2} offset:{(k%8)*XS1}"]), f"ds_read_b128 {vr(b+4,4)}, v{vT2} offset:{(k%8)*XS1 + XRT}"]
    def w1(k):
        last = max(i for i, it in enumerate(log1) if it == k)
        return f"s_waitcnt vmcnt({len(log1) - 1 - last})"
    gm()
    e(w1(0))
    for l in g1reads_l(0): e(l)
    for k in range(NK):
        if k % 4 == 0: gm()
        e("s_waitcnt lgkmcnt(0)")
        fill = [[], [], [], []]
        if k + 1 < NK:
            r = g1reads_l(k + 1)
            fill[0] = r[4:6] + [w1(k + 1)] + r[0:2]
            fill[1] = r[2:4]
        if k + D < NK:
            fill[2], fill[3] = dma_l(k + D, vD1A, vD1B, 16*3584); log1 += [k + D]*2
        weave(mfma_l(k, BF + 8*(k & 1)), fill)
        if PF2 and k in (4, 12, 20):
            prefetch((k - 4) // 8); log1.append(-1)
    e(f"s_mul_i32 s{sT0}, s{sRP}, {2*112*1024}")
    e(f"s_lshl_b32 s{sT1}, s{sJ}, 12")
    e(f"s_add_u32 s{sT0}, s{sT0}, s{sT1}")
    e(f"s_add_u32 s{sT0}, s{sT0}, {HF}")
    e(f"s_add_u32 s{sT1}, s{sT0}, {112*1024}")
    gm()
    e("s_nop 7")
    for a in range(2):
        for bb in range(2):
            d = ACC + 16*(2*a+bb)
            for i in range(8):
                e(f"v_cvt_pk_bf16_f32 v{d+i}, v{d+2*i}, v{d+2*i+1}")
            for i in range(8):
                e(f"v_pk_max_i16 v{d+i}, v{d+i}, 0")
            for half in range(2):
                e(f"buffer_store_dwordx4 {vr(d+4*half,4)}, v{vL16}, {sr(sWS,4)}, s{sT1 if bb else sT0} offen offset:{(2*a+half)*1024} sc1")
    gm()
    Lg1d = e.label("g1d")
    e(f"s_branch {Lg1d}")
    e(f"{Lskip1}:")
    if PF2:
        for i in range(3): prefetch(i)
    e(f"{Lg1d}:")
    e(f"s_lshl_b32 s{sT0}, s{sRP}, 5")
    e(f"s_add_u32 s{sT0}, s{sT0}, s{sJ}")
    e(f"s_lshl_b32 s{sT0}, s{sT0}, 7")
    e(f"s_add_u32 s{sT0}, s{sT0}, {HFL}")
    flag_set(e, AF, sT0)
    gm()
    lds_signal(e, C_G1, vT0)
    st.mark()
    NK = 28
    e(f"s_lshr_b32 s{sT1}, s{sF}, 1")
    e(f"s_lshl_b32 s{sT1}, s{sT1}, 6")
    e(f"v_lshl_add_u32 v{vTA0}, v{vHH}, 9, v{vTRC}")
    e(f"v_xor_b32 v{vXB}, s{sT1}, v{vTA0}")
    e(f"v_add_u32 v{vTA0}, s{sRING}, v{vXB}")
    e(f"v_xor_b32 v{vTA1}, 64, v{vTA0}")
    set_srd(e, sWA, 18, 512*1792*2)
    e(f"s_mul_i32 s{sSO}, s{sF}, {448*1024}")
    e(f"s_lshl_b32 s{sT0}, s{sCG}, 7")
    e(f"s_add_u32 s{sSB}, s{sSO}, s{sT0}")
    SEG[0] = 7
    for k in range(D): dma(k, vDA, vDB, 16384)
    lds_wait(e, C_G1, 4, vT0, sleep=2)
    stage_w512(e, 12, L_XN, sF, 4, sB0)
    set_srd(e, sWA, 18, 512*1792*2)
    e(f"s_mul_i32 s{sT1}, s{sF}, 7")
    e(f"s_add_u32 s{sT0}, s{sF}, 28")
    e(f"v_add_u32 v{vT0}, s{sT1}, v{vL}")
    e(f"v_mov_b32 v{vT1}, s{sT0}")
    e(f"v_cmp_gt_u32 vcc, 7, v{vL}")
    e(f"s_lshl_b32 s{sT0}, s{sRP}, 12")
    e(f"s_add_u32 s{sT0}, s{sT0}, {HFL}")
    e(f"v_cndmask_b32 v{vT0}, v{vT1}, v{vT0}, vcc")
    e(f"v_lshlrev_b32 v{vT0}, 7, v{vT0}")
    flag_poll(e, AF, vT0, sT0, sleep=8)
    st.mark()
    e(f"s_mul_i32 s{sB0}, s{sRP}, {2*112*1024}")
    e(f"s_mul_i32 s{sT1}, s{sF}, {28*1024}")
    e(f"s_add_u32 s{sB0}, s{sB0}, s{sT1}")
    sHB, sHD = 89, 84
    e(f"s_add_u32 s{sHB}, s{sB0}, {HF}")
    e(f"s_bitcmp1_b32 s{sF}, 0")
    e(f"s_cselect_b32 s{sT0}, {112*1024}, 0")
    e(f"s_add_u32 s{sHB}, s{sHB}, s{sT0}")
    e(f"s_lshl_b32 s{sT0}, s{sT0}, 1")
    e(f"s_sub_u32 s{sHD}, {112*1024}, s{sT0}")
    DB = 6
    def bload_l(k):
        out = []
        j = k % 7
        if j == 0:
            out += seg_off(sB0, k // 7, 7*1024, sHB) + [f"s_add_u32 s{sB1}, s{sB0}, s{sHD}"]
        elif j == 4:
            out += [f"s_add_u32 s{sB0}, s{sB0}, 4096", f"s_add_u32 s{sB1}, s{sB1}, 4096"]
        b = BF + 8*(k % DB)
        return out + [f"buffer_load_dwordx4 {vr(b,4)}, v{vL16}, {sr(sWS,4)}, s{sB0} offen offset:{(j%4)*1024} sc1",
                      f"buffer_load_dwordx4 {vr(b+4,4)}, v{vL16}, {sr(sWS,4)}, s{sB1} offen offset:{(j%4)*1024} sc1"]
    log = []
    for k in range(DB):
        for l in bload_l(k): e(l)
        log += [("B", k)]*2
    def wait_for(items):
        last = max(i for i, it in enumerate(log) if it in items) if any(it in items for it in log) else -1
        return f"s_waitcnt vmcnt({len(log) - 1 - last})"
    sPQ, sRT2, sP1 = 88, 94, 55
    e(f"s_mov_b32 s{sPQ}, s{sF}")
    e(f"s_mul_i32 s{sT0}, s{sF}, {OSL}")
    e(f"s_sub_u32 s{sT0}, {L_OA + 7*OSL}, s{sT0}")
    e(f"v_mov_b32 v{vT1}, s{sT0}")
    e(f"ds_read_b32 v{vT1}, v{vT1} offset:{OCNT}")
    e(f"s_mov_b32 s{sP1}, 0")
    e("s_waitcnt lgkmcnt(0)")
    e(f"v_cmp_ne_u32 vcc, 8, v{vT1}")
    Lp1 = e.label("p1")
    e(f"s_cbranch_vccnz {Lp1}")
    e(f"s_call_b64 {sr(sRT2,2)}, L_fpub")
    e(f"s_mov_b32 s{sP1}, 1")
    e(f"{Lp1}:")
    for l in areads_l(0, 1024): e(l)
    for k in range(NK):
        e(wait_for([("B", k)]) + " lgkmcnt(0)")
        fill = [[], [], [], []]
        if k + 1 < NK:
            fill[0] = [wait_for([("A", k+1)])] + areads_l(k + 1, 1024)
        if k + D < NK:
            fill[1], fill[2] = dma_l(k + D, vDA, vDB, 16384); log += [("A", k+D)]*2
        if k + DB < NK:
            fill[3] = bload_l(k + DB); log += [("B", k+DB)]*2
        weave(mfma_l(k, BF + 8*(k % DB)), fill)
    st.off = GS
    st.mark()
    if ABL:
        keep = []
        for l in e.lines[abl_start:]:
            t = l.strip()
            if "m" in ABL and t.startswith("v_mfma"): continue
            if "g" in ABL and t.startswith("buffer_load_dwordx4"): continue
            if "l" in ABL and (t.startswith("ds_read_b64_tr") or t.startswith("ds_read_b128")): continue
            if "v" in ABL and (t.startswith("v_cvt_pk") or t.startswith("v_pk_max") or t.startswith("buffer_store_dwordx4")): continue
            keep.append(l)
        e.lines[abl_start:] = keep
    XR, G = AF, ACC
    vXO = vD1A
    e(f"s_lshr_b32 s{sT0}, s{sF}, 1")
    e(f"s_lshl_b32 s{sT1}, s{sCG}, 1")
    e(f"s_add_u32 s{sT0}, s{sT0}, s{sT1}")
    e(f"s_lshl_b32 s{sSO}, s{sT0}, 6")
    e(f"s_and_b32 s{sT0}, s{sF}, 1")
    e(f"s_lshl_b32 s{sT1}, s{sRP}, 1")
    e(f"s_add_u32 s{sB1}, s{sT0}, s{sT1}")
    e(f"s_lshl_b32 s{sB0}, s{sB1}, 15")
    e(f"s_add_u32 s{sSO}, s{sSO}, s{sB0}")
    e(f"s_add_u32 s{sB0}, s{sB0}, {OF}")
    e(f"v_and_b32 v{vXO}, 31, v{vL}")
    e(f"v_lshlrev_b32 v{vXO}, 10, v{vXO}")
    e(f"v_lshl_add_u32 v{vXO}, v{vHH}, 3, v{vXO}")
    for q in range(4):
        e(f"buffer_load_dwordx2 {vr(XR+2*q,2)}, v{vXO}, {sr(sX,4)}, s{sSO} offen offset:{16*q}")
    e(f"v_add_u32 v{vT0}, s{sRING}, v{vL16}")
    for l in range(1, 4):
        for i in range(4):
            e(f"ds_write_b128 v{vT0}, {vr(ACC+16*l+4*i,4)} offset:{4096*(l-1)+1024*i}")
    lds_signal(e, C_RED, vT2)
    tm()
    RA = 88
    for l in range(1, 4):
        e(f"s_xor_b32 s{sT0}, s{sF}, {l}")
        e(f"s_mul_i32 s{sT0}, s{sT0}, {RINGB}")
        e(f"s_add_u32 s{sT0}, s{sT0}, {L_WQ + 4096*(l-1)}")
        e(f"v_add_u32 v{RA+l}, s{sT0}, v{vL16}")
    Lp2 = e.label("p2")
    e(f"s_cmp_lg_u32 s{sP1}, 0")
    e(f"s_cbranch_scc1 {Lp2}")
    e(f"s_call_b64 {sr(sRT2,2)}, L_fpub")
    e(f"{Lp2}:")
    def maybe_pub(cmp):
        L = e.label("np")
        e(cmp)
        e(f"s_cbranch_scc1 {L}")
        e(f"s_add_u32 s{sPQ}, s{sF}, 4")
        e("s_nop 1")
        e(f"s_call_b64 {sr(sRT2,2)}, L_fpub")
        e(f"{L}:")
    maybe_pub(f"s_cmp_ge_u32 s{sF}, 2")
    tm()
    lds_wait(e, C_RED, 4, vT2, sleep=2)
    tm()
    for l in range(1, 4):
        for i in range(4):
            e(f"ds_read_b128 {vr(ACC+16*l+4*i,4)}, v{RA+l} offset:{1024*i}")
    R1 = [96 + 4*n for n in range(16)]
    R2 = [72, 76, 80, 84, 88, 92, 160, 164]
    R3 = [128 + 4*n for n in range(8)]
    vFO, vCA, vWO = vD1B, vTA0, vXB
    def oloads(R, first):
        e(f"s_add_u32 s{sT0}, s{sB0}, {first*1024}")
        for n, r in enumerate(R):
            if n % 4 == 0 and n: e(f"s_add_u32 s{sT0}, s{sT0}, 4096")
            e(f"buffer_load_dwordx4 {vr(r,4)}, v{vL16}, {sr(sWS,4)}, s{sT0} offen offset:{(n%4)*1024} sc1")
    def peek(n, first, sleep):
        L, D = e.label("pk"), e.label("pkd")
        e(f"v_min_u32 v{vFO}, {n-1}, v{vL}")
        e(f"v_lshlrev_b32 v{vFO}, 10, v{vFO}")
        e(f"s_add_u32 s{sT1}, s{sB0}, {first*1024}")
        e(f"s_mov_b32 s{sSP}, {SPIN_MAX}")
        e(f"{L}:")
        e(f"buffer_load_dword v{vT1}, v{vFO}, {sr(sWS,4)}, s{sT1} offen sc1")
        e(f"s_sub_u32 s{sSP}, s{sSP}, 1")
        e("s_waitcnt vmcnt(0)")
        e(f"v_cmp_eq_u32 vcc, -1, v{vT1}")
        e(f"s_cbranch_vccz {D}")
        e(f"s_sleep {sleep}")
        e(f"s_cbranch_scc0 {L}")
        e(f"{D}:")
    def verify(R, first, younger):
        L, D = e.label("vf"), e.label("vfd")
        e(f"s_mov_b32 s{sSP}, {SPIN_MAX}")
        e(f"s_waitcnt vmcnt({younger})")
        e(f"{L}:")
        regs = [r + i for r in R for i in range(4 if FULLCHK else 1)]
        e(f"v_max_u32 v{vT1}, v{regs[0]}, v{regs[1]}")
        for i in range(2, len(regs), 2):
            e(f"v_max3_u32 v{vT1}, v{regs[i]}, v{regs[i+1]}, v{vT1}")
        e(f"v_cmp_eq_u32 vcc, -1, v{vT1}")
        e(f"s_cbranch_vccz {D}")
        e("s_sleep 4")
        oloads(R, first)
        e("s_waitcnt vmcnt(0)")
        e(f"s_sub_u32 s{sSP}, s{sSP}, 1")
        e(f"s_cbranch_scc0 {L}")
        e(f"{D}:")
    oloads(R1, 0)
    e("s_waitcnt lgkmcnt(0)")
    tm()
    for i in range(0, 16, 2):
        e(f"v_pk_add_f32 {vr(ACC+i,2)}, {vr(ACC+i,2)}, {vr(ACC+16+i,2)}")
        e(f"v_pk_add_f32 {vr(ACC+32+i,2)}, {vr(ACC+32+i,2)}, {vr(ACC+48+i,2)}")
    for i in range(0, 16, 2):
        e(f"v_pk_add_f32 {vr(ACC+i,2)}, {vr(ACC+i,2)}, {vr(ACC+32+i,2)}")
    silu(e, ACC, ACC+24)
    XP = ACC + 16
    st.mark()
    SA = ACC + 24
    AW = 56
    assert L_XN == 0
    e(f"s_and_b32 s{sT0}, s{sF}, 1")
    e(f"s_mul_i32 s{sT0}, s{sT0}, {OSL}")
    e(f"s_sub_u32 s{sT0}, {L_OA + OSL}, s{sT0}")
    e(f"v_mov_b32 v{vCA}, s{sT0}")
    def woread(dst, head):
        e(f"ds_read_b64_tr_b16 {vr(dst,2)}, v{vWO} offset:{head*2048}")
        e(f"ds_read_b64_tr_b16 {vr(dst+2,2)}, v{vWO} offset:{head*2048+1024}")
    seqA = [(i, c) for i in range(3) for c in range(8)]
    RA12 = R1 + R2
    for n in range(4): woread(AW + 4*n, 4*seqA[n][1] + seqA[n][0])
    peek(8, 16, 8)
    tm()
    for q in range(0, 8, 2):
        e(f"v_mov_b64 {vr(XP+q,2)}, {vr(XR+q,2)}")
    oloads(R2, 16)
    verify(R1, 0, 8)
    for n in range(24):
        if n == 16: verify(R2, 16, 0)
        e(f"s_waitcnt lgkmcnt({2*min(3, 23-n)})")
        e(f"{MFMA} {vr(SA,16)}, {vr(AW+4*(n%4),4)}, {vr(RA12[n],4)}, {'0' if n == 0 else vr(SA,16)}")
        if n + 4 < 24: woread(AW + 4*(n%4), 4*seqA[n+4][1] + seqA[n+4][0])
    st.mark()
    maybe_pub(f"s_cmp_lg_u32 s{sF}, 2")
    AW2 = 96
    for c in range(8):
        woread(AW2 + 4*c, 4*c + 3)
        if c == 5: e("s_waitcnt lgkmcnt(4)")
    XF = 72
    for q in range(8):
        e(f"v_lshlrev_b32 v{XF+2*q}, 16, v{XP+q}")
        e(f"v_and_b32 v{XF+2*q+1}, 0xffff0000, v{XP+q}")
    tm()
    lds_wait(e, OCNT, 8, vT1, sleep=2, vaddr=vCA)
    tm()
    e("s_setprio 3")
    e(f"s_sleep {int(OPT.get('osleep', 6))}")
    peek(8, 24, int(OPT.get('rsleep', 1)))
    tm()
    oloads(R3, 24)
    verify(R3, 24, 0)
    tm()
    for c in range(8):
        e(f"{MFMA} {vr(SA,16)}, {vr(AW2+4*c,4)}, {vr(R3[c],4)}, {vr(SA,16)}")
    e("s_nop 11")
    for i in range(0, 16, 2):
        e(f"v_pk_fma_f32 {vr(SA+i,2)}, {vr(SA+i,2)}, {vr(G+i,2)}, {vr(XF+i,2)}")
    OST = OPT.get("ost", "").replace("+", " ")
    if OPT.get("o4", "1") == "1":
        for i in range(8):
            e(f"v_cvt_pk_bf16_f32 v{SA+i}, v{SA+2*i}, v{SA+2*i+1}")
        e(f"v_lshl_add_u32 v{vXO}, v{vHH}, 3, v{vXO}")
        e("s_nop 0")
        for p in range(2):
            e(f"v_permlane32_swap_b32 v{SA+4*p}, v{SA+4*p+2}")
            e(f"v_permlane32_swap_b32 v{SA+4*p+1}, v{SA+4*p+3}")
            e(f"buffer_store_dwordx4 {vr(SA+4*p,4)}, v{vXO}, {sr(sOUT,4)}, s{sSO} offen offset:{32*p} {OST}")
    else:
        for q in range(4):
            a = SA + 4*q
            e(f"v_cvt_pk_bf16_f32 v{a}, v{a}, v{a+1}")
            e(f"v_cvt_pk_bf16_f32 v{a+1}, v{a+2}, v{a+3}")
            e(f"buffer_store_dwordx2 {vr(a,2)}, v{vXO}, {sr(sOUT,4)}, s{sSO} offen offset:{16*q} {OST}")
    OB = 96
    Lne = e.label("ne")
    e(f"s_xor_b32 s{sT0}, s{sF}, 3")
    e(f"s_or_b32 s{sT0}, s{sT0}, s2")
    e(f"s_cmp_lg_u32 s{sT0}, 0")
    e(f"s_cbranch_scc1 {Lne}")
    e(f"s_mov_b32 s{sT0}, {EPOCH}")
    flag_set(e, OB, sT0)
    e(f"{Lne}:")
    if DBGT:
        e("s_waitcnt vmcnt(0)")
        dbg_time(e, 2, False, vT0, vT1)
        e(f"v_mov_b32 v{vT0}, s98")
        e(f"v_not_b32 v{vT2}, s98")
        e(f"v_mov_b32 v{vT1}, 0")
        e("s_mov_b64 exec, 1")
        e(f"global_atomic_umax v{vT1}, v{vT2}, s[22:23]")
        e(f"global_atomic_umax v{vT1}, v{vT0}, s[22:23] offset:4")
        e("s_mov_b64 exec, -1")
    if common.STAMP: e("s_waitcnt vmcnt(0)")
    st.off = False
    st.mark(); st.mark(True)
    st.flush(sW, sWS, vT0, vT1, 12)
    e("s_endpgm")
    e("L_fpub:")
    e(f"s_mul_i32 s{sT0}, s{sPQ}, {OSL}")
    e(f"s_sub_u32 s{sT0}, {L_OA + 7*OSL}, s{sT0}")
    e(f"v_mov_b32 v166, s{sT0}")
    e(f"v_lshl_add_u32 v167, v{vL}, 3, v166")
    lds_wait(e, OCNT, 8, vT1, sleep=4, vaddr=166, exact=True)
    publish(e, 167, 0, sPQ, 148, vT1)
    e(f"s_setpc_b64 {sr(sRT2,2)}")
    attention_slow(e)

def common_setup(e):
    decode_ids(e)
    e(f"v_mov_b32 v{vCT}, {L_C}")
    e(f"s_mov_b32 s{sONES}, 0x3f803f80")
    for d, b, n in ((sX, 4, 2048*512*2), (sWS, 26, WS_BYTES), (sOUT, 22, 2048*512*2)):
        e(f"s_mov_b64 s[{d}:{d+1}], s[{b}:{b+1}]")
        e(f"s_mov_b32 s{d+2}, {n:#x}")
        e(f"s_mov_b32 s{d+3}, 0x20000")

def row_offsets(e, sbase, n):
    for j in range(n):
        r = ROWS[j]
        e(f"s_add_u32 s{r}, s{sbase}, {j}")
        e(f"s_and_b32 s{r}, s{r}, 63")
        e(f"s_lshr_b32 s{sT0}, s{r}, 5")
        e(f"s_mul_i32 s{sT0}, s{sT0}, {XRT - 512}")
        e(f"s_lshl_b32 s{r}, s{r}, 4")
        e(f"s_add_u32 s{r}, s{r}, s{sT0}")

def gen(e, name):
    kernel_begin(e, name)
    stA, stF = Stamps(e, 0), Stamps(e, 0)
    e("s_load_dwordx16 s[4:19], s[0:1], 0")
    e("s_load_dwordx8 s[20:27], s[0:1], 56")
    e(f"v_lshrrev_b32 v{vT0}, 6, v0")
    e(f"s_cmpk_ge_u32 s2, 256")
    e(f"v_readfirstlane_b32 s{sW}, v{vT0}")
    e(f"s_cbranch_scc1 L_end")
    if common.STAMP:
        e("s_memrealtime s[98:99]")
        e("s_memtime s[96:97]")
        stA.n = stF.n = 2
    e(f"s_and_b32 s{sT1}, s2, 7")
    e(f"s_lshl_b32 s{sT1}, s{sT1}, 8")
    e(f"s_and_b32 s{sT2}, s2, 0xf0")
    e(f"v_and_b32 v{vL}, 63, v0")
    e(f"s_cmp_lt_u32 s{sW}, 8")
    e(f"v_lshlrev_b32 v{vL16}, 4, v{vL}")
    e(f"s_cbranch_scc1 L_a0")
    e("s_setprio 3")
    e(f"s_sub_u32 s{sF}, s{sW}, 8")
    e(f"s_add_u32 s{sT1}, s{sT1}, s{sT2}")
    e(f"s_lshl_b32 s{sT1}, s{sT1}, 10")
    e(f"s_lshl_b32 s{sT3}, s{sF}, 12")
    e(f"s_add_u32 s{sT1}, s{sT1}, s{sT3}")
    e(f"v_add_u32 v{vT1}, s{sT1}, v{vL16}")
    e(f"v_add_u32 v{vT2}, s{sT3}, v{vL16}")
    e(f"s_add_u32 m0, s{sT3}, {L_R}")
    e(f"s_bitcmp1_b32 s2, 3")
    e("s_waitcnt lgkmcnt(0)")
    for j in range(4):
        e(f"global_load_dwordx4 {vr(96+4*j,4)}, v{vT1}, s[4:5] offset:{1024*j}")
    e(f"s_cselect_b64 s[8:9], s[10:11], s[8:9]")
    for j in range(4):
        e(f"global_load_lds_dwordx4 v{vT2}, s[8:9] offset:{1024*j}")
    e(f"v_mov_b32 v{vT1}, {EPOCH}")
    e(f"global_load_dwordx2 v[28:29], v{vT1}, s[26:27]")
    e("s_barrier")
    e("s_branch L_ffn")
    e("L_a0:")
    e(f"s_cmp_lg_u32 s{sW}, 0")
    e(f"s_cbranch_scc1 L_nopf")
    e("s_getpc_b64 s[44:45]")
    e(f"s_lshr_b32 s{sT0}, s2, 3")
    e(f"s_lshl_b32 s{sT0}, s{sT0}, 10")
    e(f"v_lshl_add_u32 v{vT1}, v0, 7, s{sT0}")
    e(f"v_min_u32 v{vT1}, CODE_BYTES, v{vT1}")
    e(f"s_mov_b64 exec, 0xff")
    e(f"global_load_dword v{vT2}, v{vT1}, s[44:45]")
    e("s_mov_b64 exec, -1")
    e(f"v_lshlrev_b32 v{vT0}, 2, v{vL}")
    e(f"v_add_u32 v{vT0}, {L_C}, v{vT0}")
    e(f"v_mov_b32 v{vT1}, 0")
    e(f"ds_write_b32 v{vT0}, v{vT1}")
    e("L_nopf:")
    e(f"s_and_b32 s{sT3}, s2, 0xc0")
    e(f"s_add_u32 s{sT1}, s{sT1}, s{sT3}")
    e(f"s_mul_i32 s{sT3}, s{sW}, 6")
    e(f"s_add_u32 s{sT2}, s{sT2}, s{sT3}")
    e(f"s_add_u32 s{sT2}, s{sT2}, 16")
    for p in range(3):
        e(f"s_add_u32 s{sT3}, s{sT2}, {2*p}")
        e(f"s_and_b32 s{sT3}, s{sT3}, 63")
        e(f"s_add_u32 s{sT3}, s{sT3}, s{sT1}")
        e(f"s_lshl_b32 s{sT3}, s{sT3}, 10")
        e(f"v_add_u32 v{12+p}, s{sT3}, v{vL16}")
    e("s_waitcnt lgkmcnt(0)")
    e("s_barrier")
    for j in range(6):
        e(f"global_load_dwordx4 {vr(112+4*j,4)}, v{12+j//2}, s[4:5] offset:{1024*(j&1)}")
    e("s_branch L_attn")
    e("L_ffn:")
    ffn_role(e, stF, lambda: attention_role(e, stA))
    e("L_end:")
    e("s_endpgm")
    e("L_code_end:")
    return 168

if __name__ == "__main__":
    if "--stamp" in sys.argv:
        sys.argv.remove("--stamp"); common.STAMP = True
    out = sys.argv[1] if len(sys.argv) > 1 else "cdna_kernels/" + NAME + ".s"
    HDR = open("cdna_kernels/" + NAME + ".s.ref").read().split("; Override")[0]
    e = Asm()
    e('.amdgcn_target "amdgcn-amd-amdhsa--gfx950"')
    e(".text")
    name = NAME + "_kernel"
    nv = gen(e, name)
    hdr = HDR + f"; @launch grid=(256,1,1) block=(768,1,1) lds={LDS_BYTES}\n"
    txt = hdr + e.text() + '.section .rodata,"a"\n' + descriptor(name, nv)
    import subprocess, re as _re
    open("_p1.s", "w").write(txt.replace("CODE_BYTES", "0x12345"))
    subprocess.run(["clang", "-x", "assembler", "-target", "amdgcn-amd-amdhsa", "-mcpu=gfx950", "-c", "_p1.s", "-o", "_p1.o"], check=True)
    sym = subprocess.run(["llvm-readelf", "-s", "_p1.o"], capture_output=True, text=True).stdout
    addr = {l.split()[-1]: int(l.split()[1], 16) for l in sym.splitlines() if l.split() and l.split()[-1].startswith("L_")}
    nbytes = addr["L_code_end"] - addr["L_a0"] - 128
    assert nbytes < 32768, nbytes
    open(out, "w").write(txt.replace("CODE_BYTES", hex(nbytes)))
```

```python
import sys
from common import *
import common
import struct
def f32bits(x): return struct.unpack("<I", struct.pack("<f", x))[0]
LOG2E = 1.4426950408889634
QSCALE = 0.25 * LOG2E
BOUND2 = 40.0 * 40.0
M16 = "v_mfma_f32_16x16x32_bf16"

KF   = 0x000000
VF   = 0x010000
KMAX = 0x020000
EPOCH = 0x021000
KVFL = 0x028000
HFL  = 0x040000
OFL  = 0x080000
HF   = 0x100000
OF   = 0x800000
XS2, XS1, XRT = 528, 1056, 33792
L_XN  = 0
L_WQ  = 67584
L_R   = L_WQ + 65536
OSL   = 4608
L_OA  = L_WQ + 49152
RINGB = 12288
L_Q   = L_R + 20480
L_C   = L_Q + 8192
C_KVX, C_QRDY, C_QMAX, C_REDO, C_ADONE, C_G1, C_RED, C_WO, C_S1, C_S2, C_Z, C_KVD, C_KVL, C_TICK, C_S0, C_XN = [4*i for i in range(16)]
C_QW = 72
C_CHK = 76
C_KVF = 80
C_WQ = 84
C_KVS = 88
C_NON = 64
assert L_OA + 8*OSL == L_Q
L_RM  = L_C + 256
LDS_BYTES = L_RM + 1024
assert LDS_BYTES <= 163840
SPIN_MAX = 1 << 18
import os
OPT = dict(kv.split("=") for kv in os.environ.get("FOPT", "").split(",") if kv)
FPRIO = int(OPT.get("fprio", 2))
NOLD = int(OPT.get("nold", 6))
BOOST = int(OPT.get("boost", 1))
KVD_ACK = int(OPT.get("kvdack", 0))
PF1 = int(OPT.get("pf1", 0))
ABL = OPT.get("abl", "")
DBGT = int(OPT.get("dbgt", 0))
def dbg_time(e, idx, inv, va, vb):
    if not DBGT: return
    e("s_memrealtime s[96:97]")
    e("s_waitcnt lgkmcnt(0)")
    if inv: e("s_not_b32 s96, s96")
    e(f"v_mov_b32 v{va}, s96")
    e(f"v_mov_b32 v{vb}, {4*idx}")
    e("s_mov_b64 exec, 1")
    e(f"global_atomic_umax v{vb}, v{va}, s[22:23]")
    e("s_mov_b64 exec, -1")
GROUP = int(OPT.get("group", 2))
PF2 = int(OPT.get("pf2", 1))
QFIRST = int(OPT.get("qfirst", 0))
CSWAP = int(OPT.get("cswap", 1))
JIT = int(OPT.get("jit", 0))
PEEL = int(OPT.get("peel", 1))
EARLYP = int(OPT.get("earlyp", 1))
PFQ = int(OPT.get("pfq", 0))
FULLCHK = int(OPT.get("fullchk", 1))
WQLATE = int(OPT.get("wqlate", 1))
PSLEEP = int(OPT.get("psleep", 0))
PWQ = int(OPT.get("pwq", 1))
WQAT = OPT.get("wqat", "f")
LOT = OPT.get("lot", "34567")
TLBW = int(OPT.get("tlbw", 0))
ROT = int(OPT.get("rot", 0))
FILLATE = int(OPT.get("fillate", 1))
XEARLY = int(OPT.get("xearly", 0))
YDELAY = int(OPT.get("ydelay", 2))
SENT = int(OPT.get("sent", 1))

sX, sWS, sWA, sOUT, sDBG = 28, 32, 36, 40, 44
sW, sRP, sCG, sT0, sT1, sT2, sT3, sCNT, sF = 48, 49, 50, 51, 52, 53, 54, 55, 56
sONES = 57
sNON = 58
sMASK = 60
sLN = 62
sSP = 3
vL, vL16, vT0, vT1, vT2, vCT = 1, 2, 3, 4, 5, 6
vDA, vDB = 7, 8

def decode_ids(e):
    e(f"s_and_b32 s{sRP}, s2, 7")
    e(f"s_lshl_b32 s{sRP}, s{sRP}, 2")
    e(f"s_lshr_b32 s{sCG}, s2, 6")
    e(f"s_add_u32 s{sRP}, s{sRP}, s{sCG}")
    e(f"s_lshr_b32 s{sCG}, s2, 3")
    e(f"s_and_b32 s{sCG}, s{sCG}, 7")

def lds_signal(e, off, vtmp):
    e("s_waitcnt lgkmcnt(0)")
    e(f"v_mov_b32 v{vtmp}, 1")
    e("s_mov_b64 exec, 1")
    e(f"ds_add_u32 v{vCT}, v{vtmp} offset:{off}")
    e("s_mov_b64 exec, -1")

def lds_wait(e, off, n, vtmp, sleep=1, vaddr=None, exact=False):
    L, D = e.label("lw"), e.label("lwd")
    vaddr = vCT if vaddr is None else vaddr
    e(f"s_mov_b32 s{sSP}, {SPIN_MAX*8}")
    e(f"{L}:")
    e(f"ds_read_b32 v{vtmp}, v{vaddr} offset:{off}")
    e(f"s_sub_u32 s{sSP}, s{sSP}, 1")
    e("s_waitcnt lgkmcnt(0)")
    e(f"v_cmp_{'ne' if exact else 'gt'}_u32 vcc, {n}, v{vtmp}")
    e(f"s_cbranch_vccz {D}")
    e(f"s_sleep {sleep}")
    e(f"s_cbranch_scc0 {L}")
    e(f"{D}:")

def fetch_nonce(e, vt):
    e(f"ds_read_b64 {vr(vt,2)}, v{vCT} offset:{C_NON}")
    e("s_waitcnt lgkmcnt(0)")
    e(f"v_readfirstlane_b32 s{sNON}, v{vt}")
    e(f"v_readfirstlane_b32 s{sNON+1}, v{vt+1}")

def flag_poll(e, vt, voff, soff, sleep=1):
    L, D = e.label("fp"), e.label("fpd")
    e(f"s_mov_b32 s{sSP}, {SPIN_MAX}")
    e(f"{L}:")
    e(f"buffer_load_dwordx2 {vr(vt,2)}, v{voff}, {sr(sWS,4)}, s{soff} offen sc1")
    e(f"s_sub_u32 s{sSP}, s{sSP}, 1")
    e("s_waitcnt vmcnt(0)")
    e(f"v_cmp_ne_u64 vcc, {sr(sNON,2)}, {vr(vt,2)}")
    e(f"s_cbranch_vccz {D}")
    e(f"s_sleep {sleep}")
    e(f"s_cbranch_scc0 {L}")
    e(f"{D}:")

def flag_set(e, vt, soff):
    e(f"v_mov_b32 v{vt}, s{sNON}")
    e(f"v_mov_b32 v{vt+1}, s{sNON+1}")
    e(f"v_mov_b32 v{vt+2}, 0")
    e("s_waitcnt vmcnt(0)")
    e("s_mov_b64 exec, 1")
    e(f"buffer_store_dwordx2 {vr(vt,2)}, v{vt+2}, {sr(sWS,4)}, s{soff} offen sc1")
    e("s_mov_b64 exec, -1")

def set_srd(e, d, base, nbytes):
    srd(e, d, base, nbytes)

def layernorm_rows(e, n, X, T, U, srow, vm_after, mid=None, st=None):
    S1, S2 = T, T + n
    def dots(js):
        for i in range(4):
            for j in js:
                x = X + 4*j + i
                e(f"v_dot2_f32_bf16 v{S1+j}, v{x}, s{sONES}, {'0' if i == 0 else 'v' + str(S1+j)}")
                e(f"v_dot2_f32_bf16 v{S2+j}, v{x}, v{x}, {'0' if i == 0 else 'v' + str(S2+j)}")
    for j in range(0, n, 2):
        if vm_after is not None: e(f"s_waitcnt vmcnt({vm_after + n - 2 - j})")
        dots([j, j+1])
    e("s_nop 2")
    if st: st.mark()
    A = T + 2*n
    p32 = [(0, 2), (1, 3)] + ([(4, 5)] if n == 6 else [])
    for base in (S1, S2):
        for (a, b) in p32:
            e(f"v_permlane32_swap_b32 v{base+a}, v{base+b}")
    for base in (S1, S2):
        for (a, b) in p32:
            e(f"v_add_f32 v{base+a}, v{base+a}, v{base+b}")
    if n == 6:
        e(f"v_mov_b32 v{S1+5}, v{S1+4}")
        e(f"v_mov_b32 v{S2+5}, v{S2+4}")
    e("s_nop 1")
    p16 = [(0, 1)] + ([(4, 5)] if n == 6 else [])
    for base in (S1, S2):
        for (a, b) in p16:
            e(f"v_permlane16_swap_b32 v{base+a}, v{base+b}")
    e("s_nop 0")
    for base in (S1, S2):
        for (a, b) in p16:
            e(f"v_add_f32 v{base+a}, v{base+a}, v{base+b}")
    G = [0] + ([4] if n == 6 else [])
    for rot in (8, 4, 2, 1):
        e("s_nop 1" if len(G) == 1 else "s_nop 0")
        for g in G:
            for base in (S1, S2):
                e(f"v_add_f32_dpp v{base+g}, v{base+g}, v{base+g} row_ror:{rot} row_mask:0xf bank_mask:0xf")
    def each(fmt):
        for gi, g in enumerate(G):
            e(fmt.format(m=S1+g, v=S2+g, t=A+gi))
    each(f"v_mul_f32 v{{m}}, {f32bits(1/512):#x}, v{{m}}")
    each(f"v_mul_f32 v{{v}}, {f32bits(1/512):#x}, v{{v}}")
    each("v_fma_f32 v{v}, -v{m}, v{m}, v{v}")
    each("v_max_f32 v{v}, 0, v{v}")
    each("v_cvt_pk_bf16_f32 v{t}, v{m}, v{v}")
    each("v_lshlrev_b32 v{m}, 16, v{t}")
    each("v_and_b32 v{v}, 0xffff0000, v{t}")
    each(f"v_add_f32 v{{v}}, {f32bits(1e-5):#x}, v{{v}}")
    each("v_cvt_pk_bf16_f32 v{v}, v{v}, v{v}")
    each("v_lshlrev_b32 v{v}, 16, v{v}")
    each("v_sqrt_f32 v{v}, v{v}")
    e("s_nop 0")
    each("v_cvt_pk_bf16_f32 v{v}, v{v}, v{v}")
    each("v_lshlrev_b32 v{v}, 16, v{v}")
    each("v_rcp_f32 v{v}, v{v}")
    e("s_nop 0")
    each("v_mul_f32 v{m}, -v{m}, v{v}")
    e("s_nop 0")
    if mid: mid()
    if st: st.mark()
    lane_of = [0, 16, 32, 48, 0, 32]
    grp_of = [0, 0, 0, 0, 4, 4]
    vA = A + 2
    e(f"v_mul_u32_u24 v{vA}, {XS2}, v{vL}")
    AD, CC = A + 3, A + 4
    assert CC % 2 == 0 and U % 2 == 0
    def head(j):
        e(f"v_readlane_b32 s{sLN + 2*(j & 1)}, v{S2+grp_of[j]}, {lane_of[j]}")
        e(f"v_readlane_b32 s{sLN+4}, v{S1+grp_of[j]}, {lane_of[j]}")
        x, P = X + 4*j, U + 8*(j & 1)
        for i in range(4):
            e(f"v_lshlrev_b32 v{P+2*i}, 16, v{x+i}")
            e(f"v_and_b32 v{P+2*i+1}, 0xffff0000, v{x+i}")
            if i == 1: e(f"v_mov_b32 v{CC + 2*(j & 1)}, s{sLN+4}")
    def fma(j):
        P = U + 8*(j & 1)
        for i in range(4):
            e(f"v_pk_fma_f32 {vr(P+2*i,2)}, {vr(P+2*i,2)}, {sr(sLN + 2*(j & 1),2)}, {vr(CC + 2*(j & 1),2)} op_sel_hi:[1,0,0]")
    def tail(j):
        x, P = X + 4*j, U + 8*(j & 1)
        e(f"v_add_u32 v{AD}, s{srow[j]}, v{vA}")
        for i in range(4):
            e(f"v_cvt_pk_bf16_f32 v{x+i}, v{P+2*i}, v{P+2*i+1}")
        e(f"ds_write_b128 v{AD}, {vr(x,4)}")
    head(0)
    for j in range(n):
        fma(j)
        if j + 1 < n: head(j + 1)
        tail(j)

def tr_common(e, vd, t0, t1):
    e(f"v_and_b32 v{t0}, 12, v{vL}")
    e(f"v_lshlrev_b32 v{vd}, 5, v{t0}")
    e(f"v_lshrrev_b32 v{t0}, 3, v{vL}")
    e(f"v_and_b32 v{t0}, 2, v{t0}")
    e(f"v_bfe_u32 v{t1}, v{vL}, 1, 1")
    e(f"v_or_b32 v{t0}, v{t0}, v{t1}")
    e(f"v_lshrrev_b32 v{t1}, 1, v{vL}")
    e(f"v_and_b32 v{t1}, 4, v{t1}")
    e(f"v_xor_b32 v{t0}, v{t0}, v{t1}")
    e(f"v_lshl_add_u32 v{vd}, v{t0}, 4, v{vd}")
    e(f"v_and_b32 v{t0}, 1, v{vL}")
    e(f"v_lshl_add_u32 v{vd}, v{t0}, 3, v{vd}")

def dpp_max16(e, v):
    for ctl in ("row_ror:8", "row_ror:4", "row_ror:2", "row_ror:1"):
        e("s_nop 1")
        e(f"v_max_f32_dpp v{v}, v{v}, v{v} {ctl} row_mask:0xf bank_mask:0xf")

def swap_op(e, op, kind, v, t):
    e(f"v_mov_b32 v{t}, v{v}")
    e("s_nop 1")
    e(f"v_permlane{kind}_swap_b32 v{v}, v{t}")
    e("s_nop 0")
    e(f"{op} v{v}, v{v}, v{t}")


OCNT = 4096 + 256
def stage_w512(e, base_sreg, lbase, sIDX, nparts, sSO):
    rows = 512 // nparts
    set_srd(e, sWA, base_sreg, 512*512*2)
    e(f"s_mul_i32 s{sSO}, s{sIDX}, {rows*1024}")
    e(f"s_lshl_b32 s{sT0}, s{sCG}, 7")
    e(f"s_add_u32 s{sSO}, s{sSO}, s{sT0}")
    e(f"s_mul_i32 s{sT0}, s{sIDX}, {rows*128}")
    for i in range(rows // 16):
        e(f"s_add_u32 m0, s{sT0}, {lbase + 2048*i}")
        if i: e(f"s_add_u32 s{sSO}, s{sSO}, 16384")
        else: e("s_nop 0")
        e(f"buffer_load_dwordx4 v{vDA}, {sr(sWA,4)}, s{sSO} offen lds")
        e(f"buffer_load_dwordx4 v{vDB}, {sr(sWA,4)}, s{sSO} offen offset:1024 lds")

A_Q, A_KR, A_VR, A_S0, A_S1, A_O = 12, 16, 48, 112, 128, 144
vOA, vQA, vVO = 7, 8, 9
vONE = 9
def a_flush(e):
    O = A_O
    dst = {8: O+10, 7: O+12, 6: O+14, 5: O+8, 4: O+6, 3: O+4, 2: 10, 1: O+2, 0: O}
    prev = None
    for r in range(8, -1, -1):
        e(f"v_cvt_f64_f32 {vr(dst[r],2)}, v{O+r}")
        if prev is not None and prev != 8:
            e(f"ds_add_f64 v{vOA}, {vr(dst[prev],2)} offset:{512*prev}")
        prev = r
    e(f"ds_add_f64 v{vOA}, {vr(dst[0],2)}")
    e("s_mov_b32 exec_hi, 0")
    e(f"ds_add_f64 v{vOA}, {vr(dst[8],2)} offset:4096")
    e("s_mov_b32 exec_lo, 1")
    e(f"ds_add_rtn_u32 v{vT0}, v{vOA}, v{vONE} offset:{OCNT}")
    e("s_mov_b64 exec, -1")
    publish_reads(e, vOA, 0, A_S0, vT1)
    e(f"v_subrev_u32 v{vOA}, {OSL}, v{vOA}")
    e("s_waitcnt lgkmcnt(9)")
    e(f"v_readfirstlane_b32 s{sT0}, v{vT0}")
    e("s_nop 0")
    last_arriver(e)

sQT, sLAST, sRET = 84, 85, 86
ROWS = [84, 85, 86, 87, 88, 89]
XOFF = [90, 91, 92, 93, 94, 95]
def last_arriver(e):
    L = e.label("nl")
    e(f"s_cmp_lg_u32 s{sT0}, s{sLAST}")
    e(f"s_cbranch_scc1 {L}")
    e(f"s_cmp_lg_u32 s{sQT}, 7")
    e(f"s_cbranch_scc1 {L}")
    e(f"s_call_b64 {sr(sRET,2)}, L_pub")
    e(f"{L}:")
    e("s_waitcnt lgkmcnt(0)")
    e(f"s_add_u32 s{sQT}, s{sQT}, 1")

def attention_role(e, st):
    Q, KR, VR, S0, S1, O = A_Q, A_KR, A_VR, A_S0, A_S1, A_O
    X, T = 112, 136
    e("L_attn:")
    rows = ROWS
    if common.STAMP:
        e(f"s_mov_b32 s{common.S_ST}, s98")
        e(f"s_mov_b32 s{common.S_ST+1}, s96")
    row_offsets(e, sT2, 6)
    PQW = int(OPT.get("pqw", 6))
    Lnq = e.label("nopq")
    e(f"s_cmp_lt_u32 s{sW}, {PQW}")
    e(f"s_cbranch_scc1 {Lnq}")
    e(f"s_lshr_b32 s{sT1}, s2, 3")
    e(f"s_lshl_b32 s{sT1}, s{sT1}, 1")
    e(f"s_add_u32 s{sT0}, s{sW}, s{sT1}")
    e(f"s_sub_u32 s{sT0}, s{sT0}, 6")
    e(f"s_lshl_b32 s{sT0}, s{sT0}, 13")
    e(f"v_lshl_add_u32 v10, v{vL}, 7, s{sT0}")
    e(f"global_load_dword v10, v10, s[6:7]")
    e(f"{Lnq}:")
    vPO_, vKM = 160, 161
    e(f"v_and_b32 v{vT0}, 15, v{vL}")
    e(f"v_cmp_eq_u32 vcc, 0, v{vT0}")
    e(f"v_mov_b32 v{vT1}, 0x3f803f80")
    e(f"v_and_b32 v{vT0}, 31, v{vL}")
    e(f"v_cndmask_b32 v{VR+4}, 0, v{vT1}, vcc")
    e(f"v_cndmask_b32 v{VR+5}, 0, v{vT1}, vcc")
    for t in range(8):
        for i in (4, 6):
            if (t, i) != (0, 4): e(f"v_mov_b64 {vr(VR+8*t+i,2)}, {vr(VR+4,2)}")
    e(f"v_lshlrev_b32 v{vOA}, 3, v{vL}")
    e(f"v_add_u32 v{vOA}, {L_OA + 7*OSL}, v{vOA}")
    e(f"v_add_u32 v{vQA}, {L_Q}, v{vL16}")
    e(f"v_lshlrev_b32 v{vPO_}, 7, v{vT0}")
    sK0, sK1, sV0, sV1, sKM, sFLG = 90, 91, 92, 93, 94, 95
    e(f"s_lshr_b32 s{sK1}, s2, 1")
    e(f"s_and_b32 s{sK1}, s{sK1}, {4 if CSWAP else 0}")
    e(f"s_xor_b32 s{sK1}, s{sK1}, s{sW}")
    e(f"s_lshl_b32 s{sFLG}, s{sK1}, 12")
    e(f"s_add_u32 s{sFLG}, s{sFLG}, {KVFL}")
    e(f"s_lshl_b32 s{sK0}, s{sK1}, 13")
    e(f"s_add_u32 s{sK1}, s{sK0}, {KF + 4096}")
    e(f"s_add_u32 s{sV0}, s{sK0}, {VF}")
    e(f"s_add_u32 s{sV1}, s{sK0}, {VF + 4096}")
    assert KF == 0
    common_setup(e)
    Lw1, Lw2 = e.label("xw"), e.label("xw2")
    e(f"s_cmp_lt_u32 s{sW}, {PQW}")
    e(f"s_cbranch_scc1 {Lw1}")
    e("s_waitcnt vmcnt(1)")
    e(f"s_branch {Lw2}")
    e(f"{Lw1}:")
    e("s_waitcnt vmcnt(0)")
    e(f"{Lw2}:")
    if OPT.get("tlbs"): e("s_waitcnt lgkmcnt(0)")
    st.mark()
    layernorm_rows(e, 6, X, T, 16, rows, None, st=st if OPT.get("lnst") else None)
    if OPT.get("lnst"): st.mark()
    lds_signal(e, C_XN, vT0)
    st.mark()
    lds_wait(e, *((C_WQ, 4) if PWQ else (C_KVF, 1)), vT1)
    if PWQ == 2: lds_wait(e, C_XN, 8, vT1)
    fetch_nonce(e, S0)
    st.mark()
    if PSLEEP: e(f"s_sleep {PSLEEP}")
    Lp, Lpd = e.label("kp"), e.label("kpd")
    e(f"s_mov_b32 s{sSP}, {SPIN_MAX}")
    e(f"{Lp}:")
    e(f"buffer_load_dwordx4 {vr(S0,4)}, v{vPO_}, {sr(sWS,4)}, s{sFLG} offen sc1")
    e("s_waitcnt vmcnt(0)")
    e(f"v_cmp_ne_u64 vcc, {sr(sNON,2)}, {vr(S0,2)}")
    e(f"v_cmp_ne_u32 {sr(sLN,2)}, v{S0}, v{S0+3}")
    e(f"s_or_b64 vcc, vcc, {sr(sLN,2)}")
    e(f"s_cbranch_vccz {Lpd}")
    e(f"s_sub_u32 s{sSP}, s{sSP}, 1")
    e(f"s_sleep {int(OPT.get('kvsleep', 1))}")
    e(f"s_cbranch_scc0 {Lp}")
    e(f"{Lpd}:")
    e(f"v_mov_b32 v{vT2}, v{S0+2}")
    st.mark()
    if YDELAY == 2:
        Ly = e.label("old")
        e(f"s_cmp_lt_u32 s{sW}, 4")
        e(f"s_cbranch_scc1 {Ly}")
        lds_wait(e, C_KVL, 4, vT1, sleep=1)
        e(f"{Ly}:")
    log = []
    def ldk(t):
        log.append(("K", t))
        return [f"buffer_load_dwordx4 {vr(KR+4*t,4)}, v{vL16}, {sr(sWS,4)}, s{sK0 if t < 4 else sK1} offen offset:{(t%4)*1024} sc1"]
    def ldv(t):
        log.append(("V", t))
        return [f"buffer_load_dwordx4 {vr(VR+8*t,4)}, v{vL16}, {sr(sWS,4)}, s{sV0 if t < 4 else sV1} offen offset:{(t%4)*1024} sc1"]
    def wait_for(items):
        last = max(i for i, it in enumerate(log) if it in items)
        return f"s_waitcnt vmcnt({len(log) - 1 - last})"
    order = [("K", 0), ("K", 1), ("V", 0), ("K", 2), ("V", 1), ("K", 3), ("V", 2), ("K", 4), ("V", 3), ("K", 5), ("V", 4), ("K", 6), ("V", 5), ("K", 7), ("V", 6), ("V", 7)]
    ld = lambda it: ldk(it[1]) if it[0] == "K" else ldv(it[1])
    NPRE = int(OPT.get("npre", 6)) if JIT else 16
    for it in order[:NPRE]:
        for l in ld(it): e(l)
    rest = order[NPRE:]
    if JIT:
        Lo = e.label("jo")
        e(f"s_cmp_lt_u32 s{sW}, 4")
        e(f"s_cbranch_scc1 {Lo}")
        keep = list(log)
        for it in rest:
            for l in ld(it): e(l)
        log[:] = keep
        lds_signal(e, C_KVL, vONE)
        e("s_waitcnt vmcnt(0)")
        e(f"{Lo}:")
    else:
        lds_signal(e, C_KVL, vONE)
    lds_wait(e, C_QW, 2 if QFIRST else 4, vT0)
    e(f"ds_read_b128 {vr(Q,4)}, v{vQA}")
    e(wait_for([("K", 0)]))
    e("s_waitcnt lgkmcnt(0)")
    e(f"{MFMA} {vr(S0,16)}, {vr(KR,4)}, {vr(Q,4)}, 0")
    e(f"s_cmp_ge_u32 s{sW}, 4")
    def jit_group(n):
        out = []
        if rest:
            L = e.label("js")
            out.append(f"s_cbranch_scc1 {L}")
            for it in rest[:n]: out += ld(it)
            del rest[:n]
            if not rest:
                out += [f"v_mov_b32 v{vONE}, 1", "s_mov_b64 exec, 1", f"ds_add_u32 v{vCT}, v{vONE} offset:{C_KVL}", "s_mov_b64 exec, -1"]
            out.append(f"{L}:")
        return out
    for l in jit_group(int(OPT.get("jn", 4))): e(l)
    e("s_nop 9")
    st.mark()
    def qtile(first, base, plain=False):
        for t in range(8):
            a = S0 if (t & 1) == 0 else S1
            b = S1 if (t & 1) == 0 else S0
            tp = (t - 1) % 8
            tn = (t + 1) % 8
            ex = [f"v_exp_f32 v{a+i}, v{a+i}" for i in range(16)]
            pk = [f"v_cvt_pk_bf16_f32 v{a+i}, v{a+2*i}, v{a+2*i+1}" for i in range(8)]
            if OPT.get("perm"): pk = [f"v_perm_b32 v{a+i}, v{a+2*i+1}, v{a+2*i}, s88" for i in range(8)]
            c0 = "0" if t == 1 else vr(O,16)
            pv0 = [f"{MFMA} {vr(O,16)}, {vr(VR+8*tp,4)}, {vr(b,4)}, {c0}"]
            pv1 = [f"{MFMA} {vr(O,16)}, {vr(VR+8*tp+4,4)}, {vr(b+4,4)}, {vr(O,16)}"]
            qk = [f"{MFMA} {vr(b,16)}, {vr(KR+4*tn,4)}, {vr(Q,4)}, 0"]
            wait, extra = [], []
            if first:
                if t == 0: pv0 = pv1 = []
                wait = [wait_for([("K", t+1)])] if t < 7 else []
                extra += jit_group(int(OPT.get("jn", 4)))
            if plain:
                if t == 7: qk = []
            else:
                if t == 7: wait += ["s_waitcnt lgkmcnt(0)"]
                if t == 6: extra += [f"ds_read_b128 {vr(Q,4)}, v{vQA} offset:1024"]
            bs = base if isinstance(base, int) else (0 if str(t) in base else 1)
            hi, lo = ["s_setprio 3"], [f"s_setprio {bs}"]
            if not BOOST: hi = []
            if OPT.get("nb") and not isinstance(base, int) and bs == 0 and str((t-1) % 8) in base: hi, lo = [], (["s_nop 0"] if t == 0 else [])
            SP = OPT.get("sp", "33")
            n1, n2 = int(SP[0]), int(SP[0]) + int(SP[1])
            if plain: hi, lo = [], (["s_nop 0"] if t == 0 else [])
            seq = wait + hi + pv0 + ex[0:n1] + pv1 + ex[n1:n2] + qk + lo + extra + ex[n2:6]
            if OPT.get("ord") == "q":
                seq = wait + hi + pv0 + lo + ex[0:3] + hi + pv1 + lo + ex[3:6] + hi + qk + lo + extra
            if t == 0 and not first:
                dst = {8: O+10, 7: O+12, 6: O+14, 5: O+8, 4: O+6, 3: O+4, 2: 10, 1: O+2, 0: O}
                cv = {r: f"v_cvt_f64_f32 {vr(dst[r],2)}, v{O+r}" for r in range(9)}
                da = {r: f"ds_add_f64 v{vOA}, {vr(dst[r],2)} offset:{512*r}" for r in range(9)}
                seq += [pk[0], pk[1]] + ex[6:8] + [pk[2]] + ex[8:10]
                seq += [cv[8], pk[3], cv[7], ex[10], da[7], cv[6], ex[11], da[6], cv[5], pk[4], da[5], cv[4], ex[12], da[4], cv[3], ex[13], da[3],
                        cv[2], pk[5], da[2], cv[1], ex[14], da[1], cv[0], ex[15], da[0], pk[6],
                        "s_mov_b32 exec_hi, 0", da[8], "s_mov_b32 exec_lo, 1", f"ds_add_u32 v{vOA}, v{vONE} offset:{OCNT}", "s_mov_b64 exec, -1", pk[7],
                        f"v_subrev_u32 v{vOA}, {OSL}, v{vOA}"]
            else:
                seq += [pk[0], pk[1]] + ex[6:8] + [pk[2]] + ex[8:10] + [pk[3]] + ex[10:12] + [pk[4]] + ex[12:14] + [pk[5]]
                if first:
                    seq += [wait_for([("V", t)])] + [f"v_permlane16_swap_b32 v{VR+8*t+i}, v{VR+8*t+4+i}" for i in range(4)]
                seq += ex[14:16] + [pk[6], pk[7]]
            for x in seq: e(x)
        if not plain: e(f"v_add_u32 v{vQA}, 1024, v{vQA}")
        if not first: e(f"s_add_u32 s{sQT}, s{sQT}, 1")
    if OPT.get("perm"): e("s_mov_b32 s88, 0x07060302")
    BASE = 1 if NOLD < 8 else 0
    qtile(True, BASE)
    lds_wait(e, C_Z, 4, vT0)
    e(f"ds_read_b32 v{vT1}, v{vCT} offset:{C_QMAX}")
    e(f"s_mov_b32 s{sLAST}, 7")
    e("s_waitcnt vmcnt(0) lgkmcnt(0)")
    e(f"v_mul_f32 v{vT2}, v{vT2}, v{vT1}")
    e(f"v_cmp_nge_f32 vcc, {f32bits(BOUND2):#x}, v{vT2}")
    Lok = e.label("bok")
    e(f"s_cbranch_vccz {Lok}")
    lds_signal(e, C_REDO, vT0)
    e(f"v_mov_b32 v{vONE}, 0x101")
    e(f"s_mov_b32 s{sLAST}, -1")
    e(f"{Lok}:")
    lds_signal(e, C_CHK, vT0)
    e(f"s_mov_b32 s{sQT}, 0")
    if LOT != "x":
        LA, LB, LE = e.label("aloopa"), e.label("aloopb"), e.label("aloope")
        e(f"s_cmp_lt_u32 s{sW}, 4")
        e(f"s_cbranch_scc1 {LB}")
        e(".p2align 6")
        e(f"{LA}:")
        NL = 6 if PEEL else 7
        qtile(False, 1)
        e(f"s_cmp_lt_u32 s{sQT}, {NL}")
        e(f"s_cbranch_scc1 {LA}")
        e(f"s_branch {LE}")
        e(".p2align 6")
        e(f"{LB}:")
        qtile(False, LOT)
        e(f"s_cmp_lt_u32 s{sQT}, {NL}")
        e(f"s_cbranch_scc1 {LB}")
        e(f"{LE}:")
        if PEEL:
            e(f"s_setprio {OPT.get('lastp', 0)}")
            qtile(False, 0, plain=True)
    else:
        e(f"s_cmp_lt_u32 s{sW}, 4")
        e(f"s_cselect_b32 s{sCNT}, {NOLD - 1}, 7")
        LA, LB, LE = e.label("aloopa"), e.label("aloopb"), e.label("aloope")
        e(".p2align 6")
        e(f"{LA}:")
        qtile(False, BASE)
        e(f"s_cmp_lt_u32 s{sQT}, s{sCNT}")
        e(f"s_cbranch_scc1 {LA}")
        if NOLD < 8:
            e(f"s_cmp_eq_u32 s{sQT}, 7")
            e(f"s_cbranch_scc1 {LE}")
            e(f"{LB}:")
            qtile(False, 0)
            e(f"s_cmp_lt_u32 s{sQT}, 7")
            e(f"s_cbranch_scc1 {LB}")
            e(f"{LE}:")
    e("s_setprio 3")
    e(f"{MFMA} {vr(O,16)}, {vr(VR+56,4)}, {vr(S1,4)}, {vr(O,16)}")
    e(f"{MFMA} {vr(O,16)}, {vr(VR+60,4)}, {vr(S1+4,4)}, {vr(O,16)}")
    e("s_nop 11")
    a_flush(e)
    st.mark()
    lds_wait(e, C_CHK, 8, vT0)
    e(f"ds_read_b32 v{vT0}, v{vCT} offset:{C_REDO}")
    e("s_waitcnt lgkmcnt(0)")
    e(f"v_cmp_ne_u32 vcc, 0, v{vT0}")
    e(f"s_cbranch_vccnz L_slow")
    e("L_aend:")
    st.mark(); st.mark(True)
    st.flush(sW, sWS, vT0, vT1, 12)
    e("s_endpgm")
    e("L_pub:")
    publish(e, None, 0, sQT, S0, vT1)
    e(f"s_setpc_b64 {sr(sRET,2)}")

def publish_reads(e, va, off, F, vt):
    e(f"v_and_b32 v{vt}, 32, v{vL}")
    e(f"v_lshlrev_b32 v{vt}, 3, v{vt}")
    e(f"v_sub_u32 v{vt}, v{va}, v{vt}")
    e(f"ds_read_b64 {vr(F+16,2)}, v{vt} offset:{off + 4096}")
    for r in range(8):
        e(f"ds_read_b64 {vr(F+2*r,2)}, v{va} offset:{off + 512*r}")

def publish(e, va, off, sq, F, vt):
    if va is not None: publish_reads(e, va, off, F, vt)
    e(f"s_lshl_b32 s{sT0}, s{sRP}, 3")
    e(f"s_and_b32 s{sT1}, s{sq}, 1")
    e(f"s_lshl_b32 s{sT1}, s{sT1}, 2")
    e(f"s_add_u32 s{sT0}, s{sT0}, s{sT1}")
    e(f"s_lshr_b32 s{sT1}, s{sq}, 1")
    e(f"s_add_u32 s{sT0}, s{sT0}, s{sT1}")
    e(f"s_lshl_b32 s{sT0}, s{sT0}, 3")
    e(f"s_add_u32 s{sT0}, s{sT0}, s{sCG}")
    e(f"s_lshl_b32 s{sT1}, s{sT0}, 10")
    e(f"s_add_u32 s{sT1}, s{sT1}, {OF}")
    e("s_waitcnt lgkmcnt(8)")
    e(f"v_cvt_f32_f64 v{F+16}, {vr(F+16,2)}")
    e(f"v_rcp_f32 v{F+16}, v{F+16}")
    e("s_waitcnt lgkmcnt(4)")
    for i in range(8):
        if i == 4: e("s_waitcnt lgkmcnt(0)")
        e(f"v_cvt_f32_f64 v{F+i}, {vr(F+2*i,2)}")
    for i in range(0, 8, 2):
        e(f"v_pk_mul_f32 {vr(F+i,2)}, {vr(F+i,2)}, {vr(F+16,2)} op_sel_hi:[1,0]")
    for i in range(4):
        e(f"v_cvt_pk_bf16_f32 v{F+i}, v{F+2*i}, v{F+2*i+1}")
    for i in range(4 if FULLCHK else 1):
        e(f"v_min_u32 v{F+i}, -2, v{F+i}")
    e(f"buffer_store_dwordx4 {vr(F,4)}, v{vL16}, {sr(sWS,4)}, s{sT1} offen sc1")

def attention_slow(e):
    Q, KR, VR, S0, S1, O = A_Q, A_KR, A_VR, A_S0, A_S1, A_O
    vRM = 0
    e("L_slow:")
    e("s_setprio 0")
    e(f"v_mov_b32 v{vONE}, 1")
    e(f"s_mov_b32 s{sLAST}, 7")
    e(f"s_mov_b32 s{sQT}, 0")
    e(f"s_mul_i32 s{sT0}, s{sW}, {OSL}")
    e(f"v_lshlrev_b32 v{vOA}, 3, v{vL}")
    e(f"v_add_u32 v{vOA}, {L_OA + 7*OSL}, v{vOA}")
    e(f"v_subrev_u32 v{vT1}, s{sT0}, v{vOA}")
    e(f"v_mov_b32 v10, 0")
    e(f"v_mov_b32 v11, 0")
    lds_signal(e, C_S0, vT0)
    lds_wait(e, C_S0, 8, vT0)
    for r in range(9):
        e(f"ds_write_b64 v{vT1}, v[10:11] offset:{512*r}")
    e(f"v_and_b32 v{vRM}, 31, v{vL}")
    e(f"v_lshlrev_b32 v{vRM}, 2, v{vRM}")
    e(f"v_add_u32 v{vRM}, {L_RM}, v{vRM}")
    e(f"s_lshl_b32 s{sT0}, s{sW}, 7")
    e(f"v_add_u32 v{vT1}, s{sT0}, v{vRM}")
    e(f"v_mov_b32 v{vT0}, 0xff800000")
    e(f"ds_write_b32 v{vT1}, v{vT0}")
    lds_signal(e, C_S1, vT0)
    lds_wait(e, C_S1, 8, vT0)
    e(f"v_add_u32 v{vQA}, {L_Q}, v{vL16}")
    e(f"v_mov_b32 v{vT2}, v{vRM}")
    e(f"s_mov_b32 s{sCNT}, 8")
    L1 = e.label("sp1")
    e(f"{L1}:")
    e(f"ds_read_b128 {vr(Q,4)}, v{vQA}")
    e(f"v_mov_b32 v{vT0}, 0xff800000")
    e("s_waitcnt lgkmcnt(0)")
    for t in range(8):
        e(f"{MFMA} {vr(S0,16)}, {vr(KR+4*t,4)}, {vr(Q,4)}, 0")
        e("s_nop 11")
        for i in range(0, 16, 2):
            e(f"v_max3_f32 v{vT0}, v{S0+i}, v{S0+i+1}, v{vT0}")
    e(f"ds_max_f32 v{vT2}, v{vT0}")
    e(f"v_add_u32 v{vQA}, 1024, v{vQA}")
    e(f"v_add_u32 v{vT2}, 128, v{vT2}")
    e(f"s_sub_u32 s{sCNT}, s{sCNT}, 1")
    e(f"s_cmp_lg_u32 s{sCNT}, 0")
    e(f"s_cbranch_scc1 {L1}")
    lds_signal(e, C_S2, vT0)
    lds_wait(e, C_S2, 8, vT0)
    e(f"v_add_u32 v{vQA}, {L_Q}, v{vL16}")
    e(f"s_mov_b32 s{sCNT}, 8")
    L2 = e.label("sp2")
    e(f"{L2}:")
    e(f"ds_read_b128 {vr(Q,4)}, v{vQA}")
    e(f"ds_read_b32 v{vT0}, v{vRM}")
    e("s_waitcnt lgkmcnt(0)")
    for i in range(16):
        e(f"v_sub_f32 v{S1+i}, 0, v{vT0}")
    e("s_nop 1")
    for t in range(8):
        e(f"{MFMA} {vr(S0,16)}, {vr(KR+4*t,4)}, {vr(Q,4)}, {vr(S1,16)}")
        e("s_nop 11")
        for i in range(16):
            e(f"v_exp_f32 v{S0+i}, v{S0+i}")
        for i in range(8):
            e(f"v_cvt_pk_bf16_f32 v{S0+i}, v{S0+2*i}, v{S0+2*i+1}")
        e("s_nop 1")
        e(f"{MFMA} {vr(O,16)}, {vr(VR+8*t,4)}, {vr(S0,4)}, {'0' if t == 0 else vr(O,16)}")
        e(f"{MFMA} {vr(O,16)}, {vr(VR+8*t+4,4)}, {vr(S0+4,4)}, {vr(O,16)}")
    e("s_nop 11")
    a_flush(e)
    e(f"v_add_u32 v{vQA}, 1024, v{vQA}")
    e(f"v_add_u32 v{vRM}, 128, v{vRM}")
    e(f"s_sub_u32 s{sCNT}, s{sCNT}, 1")
    e(f"s_cmp_lg_u32 s{sCNT}, 0")
    e(f"s_cbranch_scc1 {L2}")
    e("s_branch L_aend")

def silu(e, d, t):
    e(f"s_mov_b32 s{sLN}, {f32bits(-LOG2E):#x}")
    for i in range(0, 16, 2):
        e(f"v_pk_mul_f32 {vr(t+i,2)}, {vr(d+i,2)}, {sr(sLN,2)} op_sel_hi:[1,0]")
    for i in range(16):
        e(f"v_exp_f32 v{t+i}, v{t+i}")
    for i in range(0, 16, 2):
        e(f"v_pk_add_f32 {vr(t+i,2)}, {vr(t+i,2)}, 1.0 op_sel_hi:[1,0]")
    for i in range(16):
        e(f"v_rcp_f32 v{t+i}, v{t+i}")
    for i in range(0, 16, 2):
        e(f"v_pk_mul_f32 {vr(d+i,2)}, {vr(d+i,2)}, {vr(t+i,2)}")

def ffn_role(e, st, emit_attention):
    vD1A, vD1B = 9, 10
    vTRC, vTA0, vTA1, vXB, vHH = 11, 12, 13, 14, 15
    ACC, AF, BF = 16, 80, 96
    sRING, sSO, sB0, sB1, sGRP = 90, 91, 92, 93, 89
    vPF = BF + 59
    TS = bool(OPT.get("tailst"))
    GS = bool(OPT.get("g1st"))
    st.off = TS or GS
    def tm():
        if TS: st.mark()
    def gm():
        if GS:
            st.off = False; st.mark(); st.off = True
    if DBGT:
        e("s_memrealtime s[98:99]")
    X, T = 96, 112
    rows = ROWS[:4]
    if common.STAMP:
        e(f"s_mov_b32 s{common.S_ST}, s98")
        e(f"s_mov_b32 s{common.S_ST+1}, s96")
    e(f"s_lshl_b32 s{sT3}, s{sF}, 2")
    e(f"s_add_u32 s{sT2}, s{sT2}, s{sT3}")
    row_offsets(e, sT2, 4)
    e(f"v_lshrrev_b32 v{vT0}, 2, v{vL}")
    e(f"v_and_b32 v{vT0}, 4, v{vT0}")
    e(f"v_and_b32 v{vT1}, 7, v{vL}")
    e(f"v_xor_b32 v{vT1}, v{vT1}, v{vT0}")
    e(f"v_lshlrev_b32 v{vT1}, 4, v{vT1}")
    e(f"v_lshrrev_b32 v{vT0}, 3, v{vL}")
    e(f"v_lshl_add_u32 v{vDA}, v{vT0}, 10, v{vT1}")
    e(f"v_add_u32 v{vDB}, {8192-1024}, v{vDA}")
    common_setup(e)
    e(f"s_lshr_b32 s{sGRP}, s{sCG}, 1")
    e(f"v_mul_u32_u24 v{vD1A}, 3584, v{vT0}")
    e(f"v_add_u32 v{vD1A}, v{vD1A}, v{vT1}")
    e(f"v_add_u32 v{vD1B}, {8*3584-1024}, v{vD1A}")
    e(f"s_mul_i32 s{sRING}, s{sF}, {RINGB}")
    e(f"s_add_u32 s{sRING}, s{sRING}, {L_WQ}")
    tr_common(e, vTRC, vT0, vT1)
    e(f"v_lshrrev_b32 v{vHH}, 5, v{vL}")
    vWA, vXA, vG, vI, vSA = ACC+8, ACC+9, ACC+10, ACC+11, ACC+7
    e(f"v_lshrrev_b32 v{vG}, 4, v{vL}")
    e(f"v_and_b32 v{vI}, 15, v{vL}")
    e(f"v_lshlrev_b32 v{vWA}, 3, v{vI}")
    e(f"v_lshl_add_u32 v{vWA}, v{vG}, 8, v{vWA}")
    e(f"v_add_u32 v{vWA}, {L_R}, v{vWA}")
    e(f"v_mul_u32_u24 v{vXA}, {XS2}, v{vG}")
    e(f"v_lshl_add_u32 v{vXA}, v{vI}, 4, v{vXA}")
    e(f"v_add_u32 v{vXA}, s{rows[0]}, v{vXA}")
    e(f"s_lshr_b32 s{sB0}, s{sGRP}, 1")
    e(f"s_lshl_b32 s{sT1}, s{sRP}, 1")
    e(f"s_add_u32 s{sB0}, s{sB0}, s{sT1}")
    e(f"s_and_b32 s{sB1}, s{sGRP}, 1")
    e(f"s_and_b32 s{sT3}, s{sCG}, 1")
    e(f"v_and_b32 v{vT0}, 1, v{vG}")
    e(f"v_lshlrev_b32 v{vT0}, 9, v{vT0}")
    e(f"v_lshrrev_b32 v{vT1}, 1, v{vG}")
    e(f"v_lshl_add_u32 v{vT0}, v{vT1}, 3, v{vT0}")
    e(f"v_lshl_add_u32 v{vSA}, v{vI}, 4, v{vT0}")
    e(f"s_lshl_b32 s{sSO}, s{sB1}, 8")
    e(f"s_lshl_b32 s{sT0}, s{sB0}, 10")
    e(f"s_add_u32 s{sSO}, s{sSO}, s{sT0}")
    e(f"s_lshl_b32 s{sT0}, s{sT3}, 16")
    assert VF == 0x10000
    e(f"s_add_u32 s{sSO}, s{sSO}, s{sT0}")
    layernorm_rows(e, 4, X, T, 136, rows, 5)
    e("s_waitcnt vmcnt(1)")
    lds_signal(e, C_KVX, vT0)
    st.mark()
    Lnokv = e.label("nokv")
    e(f"s_cmp_lg_u32 s{sF}, 0")
    e(f"s_cbranch_scc1 {Lnokv}")
    lds_wait(e, C_KVX, 4, vT0, sleep=0)
    FRG = 96
    def kvreads(kk):
        b = FRG + 8*(kk % 4)
        e(f"ds_read_b64_tr_b16 {vr(b,2)}, v{vWA} offset:{kk*1024}")
        e(f"ds_read_b64_tr_b16 {vr(b+2,2)}, v{vWA} offset:{kk*1024+128}")
        e(f"ds_read_b128 {vr(b+4,4)}, v{vXA} offset:{kk*4*XS2}")
    def kvchain(isv):
        for kk in range(16):
            e(f"s_waitcnt lgkmcnt({3*min(3, 15-kk)})")
            b = FRG + 8*(kk % 4)
            c = "0" if kk == 0 else vr(ACC,4)
            if isv: e(f"{M16} {vr(ACC,4)}, {vr(b+4,4)}, {vr(b,4)}, {c}")
            else:   e(f"{M16} {vr(ACC,4)}, {vr(b,4)}, {vr(b+4,4)}, {c}")
            if kk + 4 < 16: kvreads(kk + 4)
    Lv, Lkvs = e.label("kvv"), e.label("kvs")
    for kk in range(4): kvreads(kk)
    e(f"s_bitcmp1_b32 s{sCG}, 0")
    e(f"s_cbranch_scc1 {Lv}")
    kvchain(False)
    e(f"s_branch {Lkvs}")
    e(f"{Lv}:")
    kvchain(True)
    e(f"{Lkvs}:")
    e("s_nop 7")
    e(f"v_cvt_pk_bf16_f32 v{ACC}, v{ACC}, v{ACC+1}")
    e(f"v_cvt_pk_bf16_f32 v{ACC+1}, v{ACC+2}, v{ACC+3}")
    e(f"buffer_store_dwordx2 {vr(ACC,2)}, v{vSA}, {sr(sWS,4)}, s{sSO} offen sc1")
    if WQAT == "s" or len(WQAT) == 3: lds_signal(e, C_KVS, vT0)
    st.mark()
    assert ACC + 12 == 28
    e(f"v_dot2_f32_bf16 v30, v{ACC}, v{ACC}, 0")
    e(f"v_dot2_f32_bf16 v30, v{ACC+1}, v{ACC+1}, v30")
    e(f"s_lshl_b32 s{sT0}, s{sB0}, 2")
    e(f"s_lshl_b32 s{sT1}, s{sB1}, 1")
    e(f"s_add_u32 s{sT0}, s{sT0}, s{sT1}")
    e(f"s_add_u32 s{sT0}, s{sT0}, s{sT3}")
    e(f"s_lshl_b32 s{sT0}, s{sT0}, 7")
    e(f"s_add_u32 s{sT0}, s{sT0}, {KVFL}")
    swap_op(e, "v_add_f32", 16, 30, ACC+3)
    swap_op(e, "v_add_f32", 32, 30, ACC+3)
    dpp_max16(e, 30)
    e(f"s_sub_u32 s{sT1}, s{sT3}, 1")
    e(f"v_and_b32 v30, s{sT1}, v30")
    e(f"v_mov_b32 v{vT1}, 0")
    e("s_waitcnt vmcnt(1)")
    e(f"v_add_co_u32 v28, vcc, 1, v28")
    e("s_nop 1")
    e(f"v_addc_co_u32 v29, vcc, 0, v29, vcc")
    e(f"v_mov_b32 v31, v28")
    e("s_mov_b64 exec, 1")
    e("s_waitcnt vmcnt(0)")
    e(f"buffer_store_dwordx4 v[28:31], v{vT1}, {sr(sWS,4)}, s{sT0} offen sc1")
    e("s_mov_b64 exec, -1")
    e(f"ds_write_b64 v{vCT}, v[28:29] offset:{C_NON}")
    lds_signal(e, C_KVF, vT0)
    st.mark()
    Lkvj = e.label("kvj")
    e(f"s_branch {Lkvj}")
    e(f"{Lnokv}:")
    if not st.off: st.n -= 2
    st.mark(); st.mark()
    e(f"{Lkvj}:")
    st.mark()
    def filler():
        e(f"s_lshl_b32 s{sT0}, s{sRP}, 3")
        e(f"s_add_u32 s{sT0}, s{sT0}, s{sF}")
        e(f"s_lshl_b32 s{sT0}, s{sT0}, 3")
        e(f"s_add_u32 s{sT0}, s{sT0}, s{sCG}")
        e(f"s_lshl_b32 s{sT0}, s{sT0}, 10")
        e(f"s_add_u32 s{sT0}, s{sT0}, {OF}")
        e(f"s_add_u32 s{sT1}, s{sT0}, 32768")
        e(f"v_mov_b64 {vr(BF+60,2)}, -1")
        e(f"v_mov_b64 {vr(BF+62,2)}, -1")
        e(f"buffer_store_dwordx4 {vr(BF+60,4)}, v{vL16}, {sr(sWS,4)}, s{sT0} offen sc1")
        e(f"buffer_store_dwordx4 {vr(BF+60,4)}, v{vL16}, {sr(sWS,4)}, s{sT1} offen sc1")
    if not FILLATE: filler()
    e(f"s_and_b32 s{sT0}, s{sF}, 1")
    e(f"s_mul_i32 s{sT0}, s{sT0}, {XRT}")
    e(f"v_and_b32 v{vXB}, 31, v{vL}")
    e(f"v_lshlrev_b32 v{vXB}, 4, v{vXB}")
    e(f"v_mul_u32_u24 v{vT0}, {XS2}, v{vHH}")
    e(f"v_add_u32 v{vXB}, v{vXB}, v{vT0}")
    e(f"v_add_u32 v{vT2}, s{sT0}, v{vXB}")
    e(f"s_lshr_b32 s{sT1}, s{sF}, 1")
    e(f"s_lshl_b32 s{sT1}, s{sT1}, 6")
    e(f"v_lshl_add_u32 v{vTA0}, v{vHH}, 10, v{vTRC}")
    e(f"v_xor_b32 v{vTA0}, s{sT1}, v{vTA0}")
    e(f"v_add_u32 v{vTA0}, {L_WQ}, v{vTA0}")
    NS = 5
    if len(WQAT) == 3:
        Lgo = e.label("wqgo")
        for f in range(1, 4):
            if WQAT[f-1] == "l":
                e(f"s_cmp_eq_u32 s{sF}, {f}")
                e(f"s_cbranch_scc1 {Lgo}")
        lds_wait(e, C_KVS, 1, vT0, sleep=1)
        for f in range(1, 4):
            if WQAT[f-1] == "s":
                e(f"s_cmp_eq_u32 s{sF}, {f}")
                e(f"s_cbranch_scc1 {Lgo}")
        lds_wait(e, C_KVF, 1, vT0, sleep=1)
        e(f"{Lgo}:")
    elif WQAT != "l": lds_wait(e, *((C_KVS, 1) if WQAT == "s" else (C_KVF, 1)), vT0, sleep=1)
    stage_w512(e, 6, L_WQ, sF, 4, sT1)
    e("s_waitcnt vmcnt(0)")
    lds_signal(e, C_WQ, vT0)
    lds_wait(e, C_WQ, 4, vT0, sleep=1)
    lds_wait(e, C_XN, 8, vT0, sleep=1)
    if QFIRST:
        Lq = e.label("qa")
        e(f"s_cmp_lt_u32 s{sF}, 2")
        e(f"s_cbranch_scc1 {Lq}")
        lds_wait(e, C_QW, 2, vT0, sleep=2)
        e(f"{Lq}:")
    st.mark()
    def qreads(ks):
        b = BF + 8*(ks % NS)
        e(f"ds_read_b64_tr_b16 {vr(b,2)}, v{vTA0} offset:{ks*2048}")
        e(f"ds_read_b64_tr_b16 {vr(b+2,2)}, v{vTA0} offset:{ks*2048+512}")
        e(f"ds_read_b128 {vr(b+4,4)}, v{vT2} offset:{ks*XS1}")
    for ks in range(NS): qreads(ks)
    for ks in range(32):
        e(f"s_waitcnt lgkmcnt({3*min(NS-1, 31-ks)})")
        b = BF + 8*(ks % NS)
        e(f"{MFMA} {vr(ACC,16)}, {vr(b,4)}, {vr(b+4,4)}, {'0' if ks == 0 else vr(ACC,16)}")
        if ks + NS < 32: qreads(ks + NS)
    e(f"s_and_b32 s{sT0}, s{sF}, 1")
    e(f"s_lshl_b32 s{sT0}, s{sT0}, 10")
    e(f"s_lshr_b32 s{sT1}, s{sF}, 1")
    e(f"s_lshl_b32 s{sT1}, s{sT1}, 12")
    e(f"s_add_u32 s{sT0}, s{sT0}, s{sT1}")
    e(f"s_add_u32 s{sT0}, s{sT0}, {L_Q}")
    e(f"v_add_u32 v{vT0}, s{sT0}, v{vL16}")
    e(f"s_mov_b32 s{sLN}, {f32bits(QSCALE):#x}")
    e("s_nop 3")
    for i in range(0, 16, 2):
        e(f"v_pk_mul_f32 {vr(ACC+i,2)}, {vr(ACC+i,2)}, {sr(sLN,2)} op_sel_hi:[1,0]")
    for i in range(8):
        e(f"v_cvt_pk_bf16_f32 v{ACC+i}, v{ACC+2*i}, v{ACC+2*i+1}")
    e(f"ds_write_b128 v{vT0}, {vr(ACC,4)}")
    e(f"ds_write_b128 v{vT0}, {vr(ACC+4,4)} offset:2048")
    lds_signal(e, C_QW, vT0)
    if OPT.get("qst2"): st.mark()
    if FILLATE: filler()
    e(f"s_setprio {FPRIO}")
    for h in range(2):
        e(f"v_dot2_f32_bf16 v{ACC+8+h}, v{ACC+4*h}, v{ACC+4*h}, 0")
    for i in range(1, 4):
        for h in range(2):
            e(f"v_dot2_f32_bf16 v{ACC+8+h}, v{ACC+4*h+i}, v{ACC+4*h+i}, v{ACC+8+h}")
    for i in range(4):
        e(f"v_mov_b32 v{ACC+12+i}, 0")
    e(f"v_permlane32_swap_b32 v{ACC+8}, v{ACC+9}")
    e(f"s_mul_i32 s{sT0}, s{sF}, {9*1024}")
    e(f"v_add_f32 v{ACC+8}, v{ACC+8}, v{ACC+9}")
    e(f"s_add_u32 s{sT0}, s{sT0}, {L_OA}")
    dpp_max16(e, ACC+8)
    e(f"v_add_u32 v{vT1}, s{sT0}, v{vL16}")
    e(f"s_mov_b32 exec_lo, 0x00010001")
    e(f"s_mov_b32 exec_hi, 0x00010001")
    e(f"ds_max_u32 v{vCT}, v{ACC+8} offset:{C_QMAX}")
    e("s_mov_b64 exec, -1")
    lds_wait(e, C_QW, 4, vT0)
    for i in range(9):
        e(f"ds_write_b128 v{vT1}, {vr(ACC+12,4)} offset:{1024*i}")
    e("s_waitcnt vmcnt(0)")
    lds_signal(e, C_Z, vT0)
    if not OPT.get("qst2"): st.mark()
    e(f"s_setprio {FPRIO}")
    e("s_branch L_g1")
    emit_attention()
    e("L_g1:")
    if OPT.get("pure"):
        for i in range(8): st.mark()
        st.mark(True)
        st.flush(sW, sWS, vT0, vT1, 12)
        e("s_endpgm")
    abl_start = len(e.lines)
    set_srd(e, sWA, 16, 512*1792*2)
    e(f"v_lshlrev_b32 v{vTA1}, 7, v{vL}")
    lds_wait(e, C_KVL, max(1, int(OPT.get("gate", 8))), vT0, sleep=4)
    fetch_nonce(e, AF)
    st.mark()
    if PF1:
        e(f"s_lshr_b32 s{sT0}, s2, 3")
        e(f"s_mul_i32 s{sT0}, s{sT0}, {448*128}")
        e(f"s_lshl_b32 s{sT1}, s{sF}, 14")
        e(f"s_add_u32 s{sT0}, s{sT0}, s{sT1}")
        e(f"s_add_u32 s{sT1}, s{sT0}, 8192")
        e(f"buffer_load_dword v{vPF}, v{vTA1}, {sr(sWA,4)}, s{sT0} offen sc1")
        e(f"buffer_load_dword v{vPF}, v{vTA1}, {sr(sWA,4)}, s{sT1} offen sc1")
    vPO, sP2, sPO = BF + 58, 40 + 48, 40 + 49
    sPS = 44
    def prefetch(i):
        if i < 2:
            e(f"buffer_load_dword v{vPF}, v{vPO}, {sr(sPS,4)}, s{sP2} offen sc1")
            e(f"s_add_u32 s{sP2}, s{sP2}, 8192")
        else:
            set_srd(e, sPS, 12, 512*512*2)
            e("s_mov_b32 exec_hi, 0")
            e(f"buffer_load_dword v{vPF}, v{vPO}, {sr(sPS,4)}, s{sPO} offen sc1")
            e("s_mov_b64 exec, -1")
    if PF2:
        set_srd(e, sPS, 18, 512*1792*2)
        e(f"v_lshlrev_b32 v{vPO}, 7, v{vL}")
        e(f"s_lshr_b32 s{sT0}, s2, 3")
        e(f"s_mul_i32 s{sP2}, s{sT0}, {448*128}")
        e(f"s_lshl_b32 s{sT1}, s{sF}, 14")
        e(f"s_add_u32 s{sP2}, s{sP2}, s{sT1}")
        e(f"s_lshl_b32 s{sPO}, s{sT0}, 14")
        e(f"s_lshl_b32 s{sT1}, s{sF}, 12")
        e(f"s_add_u32 s{sPO}, s{sPO}, s{sT1}")
    e(f"s_lshr_b32 s85, s2, 6" if ROT else "s_mov_b32 s85, 0")
    D = 6
    Lskip1 = e.label("g1skip")
    sJ = 84
    e(f"s_lshl_b32 s{sJ}, s{sCG}, 2")
    e(f"s_add_u32 s{sJ}, s{sJ}, s{sF}")
    e(f"s_cmp_ge_u32 s{sJ}, 28")
    e(f"s_cbranch_scc1 {Lskip1}")
    e(f"s_lshl_b32 s{sSO}, s{sJ}, 7")
    sR, sSB, sSG = 85, 86, 87
    SEG = [8]
    def seg_off(dst, sidx, per_seg, base):
        out = [f"s_add_u32 s{sSG}, s{sR}, {sidx}", f"s_and_b32 s{sSG}, s{sSG}, 3", f"s_mul_i32 s{sSG}, s{sSG}, {per_seg}"]
        if base is None: return out
        return out + [f"s_add_u32 s{dst}, s{sSG}, s{base}"]
    e(f"s_mov_b32 s{sSB}, s{sSO}")
    def dma_l(k, va, vb, step):
        if k % SEG[0] == 0: adv = seg_off(sSO, k // SEG[0], SEG[0]*step, sSB)
        else: adv = [f"s_add_u32 s{sSO}, s{sSO}, {step}"]
        return [[f"s_add_u32 m0, s{sRING}, {2048*(k % D)}"] + adv + [
                 f"buffer_load_dwordx4 v{va}, {sr(sWA,4)}, s{sSO} offen lds"],
                [f"buffer_load_dwordx4 v{vb}, {sr(sWA,4)}, s{sSO} offen offset:1024 lds"]]
    def dma(k, va, vb, step):
        for g in dma_l(k, va, vb, step):
            for l in g: e(l)
    def areads_l(k, second):
        b = AF + 8*(k & 1)
        o = 2048*(k % D)
        return [f"ds_read_b64_tr_b16 {vr(b,2)}, v{vTA0} offset:{o}", f"ds_read_b64_tr_b16 {vr(b+2,2)}, v{vTA0} offset:{o+second}",
                f"ds_read_b64_tr_b16 {vr(b+4,2)}, v{vTA1} offset:{o}", f"ds_read_b64_tr_b16 {vr(b+6,2)}, v{vTA1} offset:{o+second}"]
    def mfma_l(k, bb0):
        a = AF + 8*(k & 1)
        out = []
        for (i, j) in ((0, 0), (0, 1), (1, 1), (1, 0)):
            d = ACC + 16*(2*i+j)
            out.append(f"{MFMA} {vr(d,16)}, {vr(a+4*i,4)}, {vr(bb0+4*j,4)}, {'0' if k == 0 else vr(d,16)}")
        return out
    def weave(ms, fill):
        for i in range(4):
            e(ms[i])
            for l in fill[i]: e(l)
    NK = 32
    log1 = []
    for k in range(D):
        dma(k, vD1A, vD1B, 16*3584); log1 += [k]*2
    e(f"v_lshl_add_u32 v{vTA0}, v{vHH}, 10, v{vTRC}")
    e(f"v_add_u32 v{vTA0}, s{sRING}, v{vTA0}")
    e(f"v_xor_b32 v{vTA1}, 64, v{vTA0}")
    def g1reads_l(k):
        b = BF + 8*(k & 1)
        pre = []
        if k % 8 == 0: pre = seg_off(None, k // 8, 8*XS1, None) + [f"v_add_u32 v{vT2}, s{sSG}, v{vXB}"]
        return areads_l(k, 512) + ["\n".join(pre + [f"ds_read_b128 {vr(b,4)}, v{vT2} offset:{(k%8)*XS1}"]), f"ds_read_b128 {vr(b+4,4)}, v{vT2} offset:{(k%8)*XS1 + XRT}"]
    def w1(k):
        last = max(i for i, it in enumerate(log1) if it == k)
        return f"s_waitcnt vmcnt({len(log1) - 1 - last})"
    gm()
    e(w1(0))
    for l in g1reads_l(0): e(l)
    for k in range(NK):
        if k % 4 == 0: gm()
        e("s_waitcnt lgkmcnt(0)")
        fill = [[], [], [], []]
        if k + 1 < NK:
            r = g1reads_l(k + 1)
            fill[0] = r[4:6] + [w1(k + 1)] + r[0:2]
            fill[1] = r[2:4]
        if k + D < NK:
            fill[2], fill[3] = dma_l(k + D, vD1A, vD1B, 16*3584); log1 += [k + D]*2
        weave(mfma_l(k, BF + 8*(k & 1)), fill)
        if PF2 and k in (4, 12, 20):
            prefetch((k - 4) // 8); log1.append(-1)
    e(f"s_mul_i32 s{sT0}, s{sRP}, {2*112*1024}")
    e(f"s_lshl_b32 s{sT1}, s{sJ}, 12")
    e(f"s_add_u32 s{sT0}, s{sT0}, s{sT1}")
    e(f"s_add_u32 s{sT0}, s{sT0}, {HF}")
    e(f"s_add_u32 s{sT1}, s{sT0}, {112*1024}")
    gm()
    e("s_nop 7")
    for a in range(2):
        for bb in range(2):
            d = ACC + 16*(2*a+bb)
            for i in range(8):
                e(f"v_cvt_pk_bf16_f32 v{d+i}, v{d+2*i}, v{d+2*i+1}")
            for i in range(8):
                e(f"v_pk_max_i16 v{d+i}, v{d+i}, 0")
            for half in range(2):
                e(f"buffer_store_dwordx4 {vr(d+4*half,4)}, v{vL16}, {sr(sWS,4)}, s{sT1 if bb else sT0} offen offset:{(2*a+half)*1024} sc1")
    gm()
    Lg1d = e.label("g1d")
    e(f"s_branch {Lg1d}")
    e(f"{Lskip1}:")
    if PF2:
        for i in range(3): prefetch(i)
    e(f"{Lg1d}:")
    e(f"s_lshl_b32 s{sT0}, s{sRP}, 5")
    e(f"s_add_u32 s{sT0}, s{sT0}, s{sJ}")
    e(f"s_lshl_b32 s{sT0}, s{sT0}, 7")
    e(f"s_add_u32 s{sT0}, s{sT0}, {HFL}")
    flag_set(e, AF, sT0)
    gm()
    lds_signal(e, C_G1, vT0)
    st.mark()
    NK = 28
    e(f"s_lshr_b32 s{sT1}, s{sF}, 1")
    e(f"s_lshl_b32 s{sT1}, s{sT1}, 6")
    e(f"v_lshl_add_u32 v{vTA0}, v{vHH}, 9, v{vTRC}")
    e(f"v_xor_b32 v{vXB}, s{sT1}, v{vTA0}")
    e(f"v_add_u32 v{vTA0}, s{sRING}, v{vXB}")
    e(f"v_xor_b32 v{vTA1}, 64, v{vTA0}")
    set_srd(e, sWA, 18, 512*1792*2)
    e(f"s_mul_i32 s{sSO}, s{sF}, {448*1024}")
    e(f"s_lshl_b32 s{sT0}, s{sCG}, 7")
    e(f"s_add_u32 s{sSB}, s{sSO}, s{sT0}")
    SEG[0] = 7
    for k in range(D): dma(k, vDA, vDB, 16384)
    lds_wait(e, C_G1, 4, vT0, sleep=2)
    stage_w512(e, 12, L_XN, sF, 4, sB0)
    set_srd(e, sWA, 18, 512*1792*2)
    e(f"s_mul_i32 s{sT1}, s{sF}, 7")
    e(f"s_add_u32 s{sT0}, s{sF}, 28")
    e(f"v_add_u32 v{vT0}, s{sT1}, v{vL}")
    e(f"v_mov_b32 v{vT1}, s{sT0}")
    e(f"v_cmp_gt_u32 vcc, 7, v{vL}")
    e(f"s_lshl_b32 s{sT0}, s{sRP}, 12")
    e(f"s_add_u32 s{sT0}, s{sT0}, {HFL}")
    e(f"v_cndmask_b32 v{vT0}, v{vT1}, v{vT0}, vcc")
    e(f"v_lshlrev_b32 v{vT0}, 7, v{vT0}")
    flag_poll(e, AF, vT0, sT0, sleep=8)
    st.mark()
    e(f"s_mul_i32 s{sB0}, s{sRP}, {2*112*1024}")
    e(f"s_mul_i32 s{sT1}, s{sF}, {28*1024}")
    e(f"s_add_u32 s{sB0}, s{sB0}, s{sT1}")
    sHB, sHD = 89, 84
    e(f"s_add_u32 s{sHB}, s{sB0}, {HF}")
    e(f"s_bitcmp1_b32 s{sF}, 0")
    e(f"s_cselect_b32 s{sT0}, {112*1024}, 0")
    e(f"s_add_u32 s{sHB}, s{sHB}, s{sT0}")
    e(f"s_lshl_b32 s{sT0}, s{sT0}, 1")
    e(f"s_sub_u32 s{sHD}, {112*1024}, s{sT0}")
    DB = 6
    def bload_l(k):
        out = []
        j = k % 7
        if j == 0:
            out += seg_off(sB0, k // 7, 7*1024, sHB) + [f"s_add_u32 s{sB1}, s{sB0}, s{sHD}"]
        elif j == 4:
            out += [f"s_add_u32 s{sB0}, s{sB0}, 4096", f"s_add_u32 s{sB1}, s{sB1}, 4096"]
        b = BF + 8*(k % DB)
        return out + [f"buffer_load_dwordx4 {vr(b,4)}, v{vL16}, {sr(sWS,4)}, s{sB0} offen offset:{(j%4)*1024} sc1",
                      f"buffer_load_dwordx4 {vr(b+4,4)}, v{vL16}, {sr(sWS,4)}, s{sB1} offen offset:{(j%4)*1024} sc1"]
    log = []
    for k in range(DB):
        for l in bload_l(k): e(l)
        log += [("B", k)]*2
    def wait_for(items):
        last = max(i for i, it in enumerate(log) if it in items) if any(it in items for it in log) else -1
        return f"s_waitcnt vmcnt({len(log) - 1 - last})"
    sPQ, sRT2, sP1 = 88, 94, 55
    e(f"s_mov_b32 s{sPQ}, s{sF}")
    TRY = [int(x) for x in OPT.get("try", "0+10+20").split("+")]
    for l in areads_l(0, 1024): e(l)
    for k in range(NK):
        if k in TRY: e(f"s_call_b64 {sr(sRT2,2)}, L_ftry")
        e(wait_for([("B", k)]) + " lgkmcnt(0)")
        fill = [[], [], [], []]
        if k + 1 < NK:
            fill[0] = [wait_for([("A", k+1)])] + areads_l(k + 1, 1024)
        if k + D < NK:
            fill[1], fill[2] = dma_l(k + D, vDA, vDB, 16384); log += [("A", k+D)]*2
        if k + DB < NK:
            fill[3] = bload_l(k + DB); log += [("B", k+DB)]*2
        weave(mfma_l(k, BF + 8*(k % DB)), fill)
    st.off = GS
    st.mark()
    if ABL:
        keep = []
        for l in e.lines[abl_start:]:
            t = l.strip()
            if "m" in ABL and t.startswith("v_mfma"): continue
            if "g" in ABL and t.startswith("buffer_load_dwordx4"): continue
            if "l" in ABL and (t.startswith("ds_read_b64_tr") or t.startswith("ds_read_b128")): continue
            if "v" in ABL and (t.startswith("v_cvt_pk") or t.startswith("v_pk_max") or t.startswith("buffer_store_dwordx4")): continue
            keep.append(l)
        e.lines[abl_start:] = keep
    XR, G = AF, ACC
    vXO = vD1A
    e(f"s_lshr_b32 s{sT0}, s{sF}, 1")
    e(f"s_lshl_b32 s{sT1}, s{sCG}, 1")
    e(f"s_add_u32 s{sT0}, s{sT0}, s{sT1}")
    e(f"s_lshl_b32 s{sSO}, s{sT0}, 6")
    e(f"s_and_b32 s{sT0}, s{sF}, 1")
    e(f"s_lshl_b32 s{sT1}, s{sRP}, 1")
    e(f"s_add_u32 s{sB1}, s{sT0}, s{sT1}")
    e(f"s_lshl_b32 s{sB0}, s{sB1}, 15")
    e(f"s_add_u32 s{sSO}, s{sSO}, s{sB0}")
    e(f"s_add_u32 s{sB0}, s{sB0}, {OF}")
    e(f"v_and_b32 v{vXO}, 31, v{vL}")
    e(f"v_lshlrev_b32 v{vXO}, 10, v{vXO}")
    e(f"v_lshl_add_u32 v{vXO}, v{vHH}, 3, v{vXO}")
    for q in range(4):
        e(f"buffer_load_dwordx2 {vr(XR+2*q,2)}, v{vXO}, {sr(sX,4)}, s{sSO} offen offset:{16*q}")
    e(f"v_add_u32 v{vT0}, s{sRING}, v{vL16}")
    for l in range(1, 4):
        for i in range(4):
            e(f"ds_write_b128 v{vT0}, {vr(ACC+16*l+4*i,4)} offset:{4096*(l-1)+1024*i}")
    lds_signal(e, C_RED, vT2)
    tm()
    RA = 88
    for l in range(1, 4):
        e(f"s_xor_b32 s{sT0}, s{sF}, {l}")
        e(f"s_mul_i32 s{sT0}, s{sT0}, {RINGB}")
        e(f"s_add_u32 s{sT0}, s{sT0}, {L_WQ + 4096*(l-1)}")
        e(f"v_add_u32 v{RA+l}, s{sT0}, v{vL16}")
    LOWP = OPT.get("lowp", "0")
    Lp2, Lp3 = e.label("p2"), e.label("p3")
    e(f"{Lp2}:")
    e(f"s_cmp_ge_u32 s{sPQ}, 7")
    e(f"s_cbranch_scc1 {Lp3}")
    e(f"s_call_b64 {sr(sRT2,2)}, L_fpub")
    e(f"s_branch {Lp2}")
    e(f"{Lp3}:")
    tm()
    lds_wait(e, C_RED, 4, vT2, sleep=2)
    tm()
    for l in range(1, 4):
        for i in range(4):
            e(f"ds_read_b128 {vr(ACC+16*l+4*i,4)}, v{RA+l} offset:{1024*i}")
    R1 = [96 + 4*n for n in range(16)]
    R2 = [64, 68, 72, 76, 88, 92, 160, 164]
    R3 = R1[:8]
    vFO, vCA, vWO = vD1B, vTA0, vXB
    def oloads(R, first):
        e(f"s_add_u32 s{sT0}, s{sB0}, {first*1024}")
        for n, r in enumerate(R):
            if n % 4 == 0 and n: e(f"s_add_u32 s{sT0}, s{sT0}, 4096")
            e(f"buffer_load_dwordx4 {vr(r,4)}, v{vL16}, {sr(sWS,4)}, s{sT0} offen offset:{(n%4)*1024} sc1")
    def peek(n, first, sleep):
        L, D = e.label("pk"), e.label("pkd")
        e(f"v_min_u32 v{vFO}, {n-1}, v{vL}")
        e(f"v_lshlrev_b32 v{vFO}, 10, v{vFO}")
        e(f"s_add_u32 s{sT1}, s{sB0}, {first*1024}")
        e(f"s_mov_b32 s{sSP}, {SPIN_MAX}")
        e(f"{L}:")
        e(f"buffer_load_dword v{vT1}, v{vFO}, {sr(sWS,4)}, s{sT1} offen sc1")
        e(f"s_sub_u32 s{sSP}, s{sSP}, 1")
        e("s_waitcnt vmcnt(0)")
        e(f"v_cmp_eq_u32 vcc, -1, v{vT1}")
        e(f"s_cbranch_vccz {D}")
        e(f"s_sleep {sleep}")
        e(f"s_cbranch_scc0 {L}")
        e(f"{D}:")
    def verify(R, first, younger):
        L, D = e.label("vf"), e.label("vfd")
        e(f"s_mov_b32 s{sSP}, {SPIN_MAX}")
        e(f"s_waitcnt vmcnt({younger})")
        e(f"{L}:")
        regs = [r + i for r in R for i in range(4 if FULLCHK else 1)]
        e(f"v_max_u32 v{vT1}, v{regs[0]}, v{regs[1]}")
        for i in range(2, len(regs), 2):
            e(f"v_max3_u32 v{vT1}, v{regs[i]}, v{regs[i+1]}, v{vT1}")
        e(f"v_cmp_eq_u32 vcc, -1, v{vT1}")
        e(f"s_cbranch_vccz {D}")
        e("s_sleep 4")
        oloads(R, first)
        e("s_waitcnt vmcnt(0)")
        e(f"s_sub_u32 s{sSP}, s{sSP}, 1")
        e(f"s_cbranch_scc0 {L}")
        e(f"{D}:")
    oloads(R1, 0)
    e("s_waitcnt lgkmcnt(0)")
    tm()
    for i in range(0, 16, 2):
        e(f"v_pk_add_f32 {vr(ACC+i,2)}, {vr(ACC+i,2)}, {vr(ACC+16+i,2)}")
        e(f"v_pk_add_f32 {vr(ACC+32+i,2)}, {vr(ACC+32+i,2)}, {vr(ACC+48+i,2)}")
    for i in range(0, 16, 2):
        e(f"v_pk_add_f32 {vr(ACC+i,2)}, {vr(ACC+i,2)}, {vr(ACC+32+i,2)}")
    SA, AW = 32, 48
    assert L_XN == 0
    e(f"s_and_b32 s{sT0}, s{sF}, 1")
    e(f"s_mul_i32 s{sT0}, s{sT0}, {OSL}")
    e(f"s_sub_u32 s{sT0}, {L_OA + OSL}, s{sT0}")
    e(f"v_mov_b32 v{vCA}, s{sT0}")
    def woread(dst, head):
        e(f"ds_read_b64_tr_b16 {vr(dst,2)}, v{vWO} offset:{head*2048}")
        e(f"ds_read_b64_tr_b16 {vr(dst+2,2)}, v{vWO} offset:{head*2048+1024}")
    seqA = [(i, c) for i in range(4) for c in range(8)]
    RALL = R1 + R2 + R3
    for n in range(4): woread(AW + 4*n, 4*seqA[n][1] + seqA[n][0])
    peek(8, 16, 8)
    tm()
    oloads(R2, 16)
    e(f"s_setprio {LOWP}")
    silu(e, ACC, SA)
    st.mark()
    verify(R1, 0, 8)
    verify(R2, 16, 0)
    def mm(n0, n1):
        for n in range(n0, n1):
            e(f"s_waitcnt lgkmcnt({2*min(3, 31-n)})")
            e(f"{MFMA} {vr(SA,16)}, {vr(AW+4*(n%4),4)}, {vr(RALL[n],4)}, {'0' if n == 0 else vr(SA,16)}")
            if n + 4 < 32: woread(AW + 4*(n%4), 4*seqA[n+4][1] + seqA[n+4][0])
    sE = sP1
    vPK = vT2
    Ln1, Ln2, Ln3 = e.label("e1"), e.label("e2"), e.label("e3")
    e(f"ds_read_b32 v{vT1}, v{vCA} offset:{OCNT}")
    e(f"s_mov_b32 s{sE}, 0")
    e(f"s_add_u32 s{sT1}, s{sB0}, {24*1024}")
    e("s_waitcnt lgkmcnt(0)")
    e(f"v_cmp_gt_u32 vcc, 8, v{vT1}")
    e(f"s_cbranch_vccnz {Ln1}")
    e("s_setprio 3")
    e(f"buffer_load_dword v{vPK}, v{vFO}, {sr(sWS,4)}, s{sT1} offen sc1")
    e(f"s_mov_b32 s{sE}, 1")
    e(f"{Ln1}:")
    NE = int(OPT.get("ne", 12))
    mm(0, NE)
    e(f"s_cmp_eq_u32 s{sE}, 0")
    e(f"s_cbranch_scc1 {Ln2}")
    e(f"s_mov_b32 s{sE}, 0")
    e("s_waitcnt vmcnt(0)")
    e(f"v_cmp_eq_u32 vcc, -1, v{vPK}")
    e(f"s_cbranch_vccnz {Ln2}")
    oloads(R3, 24)
    e(f"s_mov_b32 s{sE}, 1")
    e(f"{Ln2}:")
    mm(NE, 24)
    st.mark()
    XF = 64
    for q in range(8):
        e(f"v_lshlrev_b32 v{XF+2*q}, 16, v{XR+q}")
        e(f"v_and_b32 v{XF+2*q+1}, 0xffff0000, v{XR+q}")
    tm()
    e(f"s_cmp_lg_u32 s{sE}, 0")
    e(f"s_cbranch_scc1 {Ln3}")
    lds_wait(e, OCNT, 8, vT1, sleep=2, vaddr=vCA)
    e("s_setprio 3")
    e(f"s_sleep {int(OPT.get('osleep', 4))}")
    peek(8, 24, int(OPT.get('rsleep', 1)))
    oloads(R3, 24)
    e(f"{Ln3}:")
    tm(); tm()
    verify(R3, 24, 0)
    tm()
    mm(24, 32)
    e("s_nop 11")
    for i in range(0, 16, 2):
        e(f"v_pk_fma_f32 {vr(SA+i,2)}, {vr(SA+i,2)}, {vr(G+i,2)}, {vr(XF+i,2)}")
    OST = OPT.get("ost", "").replace("+", " ")
    if OPT.get("o4", "1") == "1":
        for i in range(8):
            e(f"v_cvt_pk_bf16_f32 v{SA+i}, v{SA+2*i}, v{SA+2*i+1}")
        e(f"v_lshl_add_u32 v{vXO}, v{vHH}, 3, v{vXO}")
        e("s_nop 0")
        for p in range(2):
            e(f"v_permlane32_swap_b32 v{SA+4*p}, v{SA+4*p+2}")
            e(f"v_permlane32_swap_b32 v{SA+4*p+1}, v{SA+4*p+3}")
            e(f"buffer_store_dwordx4 {vr(SA+4*p,4)}, v{vXO}, {sr(sOUT,4)}, s{sSO} offen offset:{32*p} {OST}")
    else:
        for q in range(4):
            a = SA + 4*q
            e(f"v_cvt_pk_bf16_f32 v{a}, v{a}, v{a+1}")
            e(f"v_cvt_pk_bf16_f32 v{a+1}, v{a+2}, v{a+3}")
            e(f"buffer_store_dwordx2 {vr(a,2)}, v{vXO}, {sr(sOUT,4)}, s{sSO} offen offset:{16*q} {OST}")
    OB = 96
    Lne = e.label("ne")
    e(f"s_xor_b32 s{sT0}, s{sF}, 3")
    e(f"s_or_b32 s{sT0}, s{sT0}, s2")
    e(f"s_cmp_lg_u32 s{sT0}, 0")
    e(f"s_cbranch_scc1 {Lne}")
    e(f"s_mov_b32 s{sT0}, {EPOCH}")
    flag_set(e, OB, sT0)
    e(f"{Lne}:")
    if DBGT:
        e("s_waitcnt vmcnt(0)")
        dbg_time(e, 2, False, vT0, vT1)
        e(f"v_mov_b32 v{vT0}, s98")
        e(f"v_not_b32 v{vT2}, s98")
        e(f"v_mov_b32 v{vT1}, 0")
        e("s_mov_b64 exec, 1")
        e(f"global_atomic_umax v{vT1}, v{vT2}, s[22:23]")
        e(f"global_atomic_umax v{vT1}, v{vT0}, s[22:23] offset:4")
        e("s_mov_b64 exec, -1")
    if common.STAMP: e("s_waitcnt vmcnt(0)")
    st.off = False
    st.mark(); st.mark(True)
    st.flush(sW, sWS, vT0, vT1, 12)
    e("s_endpgm")
    e("L_ftry:")
    e(f"s_cmp_ge_u32 s{sPQ}, 7")
    e(f"s_cbranch_scc1 L_fret")
    e(f"s_mul_i32 s{sT0}, s{sPQ}, {OSL}")
    e(f"s_sub_u32 s{sT0}, {L_OA + 7*OSL}, s{sT0}")
    e(f"v_mov_b32 v166, s{sT0}")
    e(f"ds_read_b32 v{vT1}, v166 offset:{OCNT}")
    e("s_waitcnt lgkmcnt(0)")
    e(f"v_cmp_ne_u32 vcc, 8, v{vT1}")
    e(f"s_cbranch_vccz L_fgo")
    e("L_fret:")
    e(f"s_setpc_b64 {sr(sRT2,2)}")
    e("L_fpub:")
    e(f"s_mul_i32 s{sT0}, s{sPQ}, {OSL}")
    e(f"s_sub_u32 s{sT0}, {L_OA + 7*OSL}, s{sT0}")
    e(f"v_mov_b32 v166, s{sT0}")
    lds_wait(e, OCNT, 8, vT1, sleep=4, vaddr=166, exact=True)
    e("L_fgo:")
    e(f"v_lshl_add_u32 v167, v{vL}, 3, v166")
    publish(e, 167, 0, sPQ, 148, vT1)
    e(f"s_add_u32 s{sPQ}, s{sPQ}, 4")
    e(f"s_setpc_b64 {sr(sRT2,2)}")
    attention_slow(e)

def common_setup(e):
    decode_ids(e)
    e(f"v_mov_b32 v{vCT}, {L_C}")
    e(f"s_mov_b32 s{sONES}, 0x3f803f80")
    for d, b, n in ((sX, 4, 2048*512*2), (sWS, 26, WS_BYTES), (sOUT, 22, 2048*512*2)):
        e(f"s_mov_b64 s[{d}:{d+1}], s[{b}:{b+1}]")
        e(f"s_mov_b32 s{d+2}, {n:#x}")
        e(f"s_mov_b32 s{d+3}, 0x20000")

def row_offsets(e, sbase, n):
    for j in range(n):
        r = ROWS[j]
        e(f"s_add_u32 s{r}, s{sbase}, {j}")
        e(f"s_and_b32 s{r}, s{r}, 63")
        e(f"s_lshr_b32 s{sT0}, s{r}, 5")
        e(f"s_mul_i32 s{sT0}, s{sT0}, {XRT - 512}")
        e(f"s_lshl_b32 s{r}, s{r}, 4")
        e(f"s_add_u32 s{r}, s{r}, s{sT0}")

def gen(e, name):
    kernel_begin(e, name)
    stA, stF = Stamps(e, 0), Stamps(e, 0)
    e("s_load_dwordx16 s[4:19], s[0:1], 0")
    e("s_load_dwordx8 s[20:27], s[0:1], 56")
    PFTOP = int(OPT.get("pftop", 0))
    if PFTOP:
        e("L_pf:")
        e("s_getpc_b64 s[44:45]")
        e(f"s_and_b32 s{sT0}, s2, 0xf8")
        e(f"v_add_lshl_u32 v{vT1}, v0, s{sT0}, 7")
        e(f"v_cmp_gt_u32 vcc, 8, v0")
        e(f"v_min_u32 v{vT1}, CODE_BYTES, v{vT1}")
        e(f"s_and_saveexec_b64 s[46:47], vcc")
        e("s_cbranch_execz L_pfd")
        e(f"global_load_dword v11, v{vT1}, s[44:45]")
        e("L_pfd:")
        e("s_mov_b64 exec, -1")
    e(f"v_lshrrev_b32 v{vT0}, 6, v0")
    e(f"s_cmpk_ge_u32 s2, 256")
    e(f"v_readfirstlane_b32 s{sW}, v{vT0}")
    e(f"s_cbranch_scc1 L_end")
    if common.STAMP:
        e("s_memrealtime s[98:99]")
        e("s_memtime s[96:97]")
        stA.n = stF.n = 2
    e(f"s_and_b32 s{sT1}, s2, 7")
    e(f"s_lshl_b32 s{sT1}, s{sT1}, 8")
    e(f"s_and_b32 s{sT2}, s2, 0xf0")
    e(f"v_and_b32 v{vL}, 63, v0")
    e(f"s_cmp_lt_u32 s{sW}, 8")
    e(f"v_lshlrev_b32 v{vL16}, 4, v{vL}")
    e(f"s_cbranch_scc1 L_a0")
    e("s_setprio 3")
    e(f"s_sub_u32 s{sF}, s{sW}, 8")
    e(f"s_add_u32 s{sT1}, s{sT1}, s{sT2}")
    e(f"s_lshl_b32 s{sT1}, s{sT1}, 10")
    e(f"s_lshl_b32 s{sT3}, s{sF}, 12")
    e(f"s_add_u32 s{sT1}, s{sT1}, s{sT3}")
    e(f"v_add_u32 v{vT1}, s{sT1}, v{vL16}")
    e(f"v_add_u32 v{vT2}, s{sT3}, v{vL16}")
    e(f"s_add_u32 m0, s{sT3}, {L_R}")
    e(f"s_bitcmp1_b32 s2, 3")
    e("s_waitcnt lgkmcnt(0)")
    for j in range(4):
        e(f"global_load_dwordx4 {vr(96+4*j,4)}, v{vT1}, s[4:5] offset:{1024*j}")
    e(f"s_cselect_b64 s[8:9], s[10:11], s[8:9]")
    for j in range(4):
        e(f"global_load_lds_dwordx4 v{vT2}, s[8:9] offset:{1024*j}")
    e(f"v_mov_b32 v{vT1}, {EPOCH}")
    e(f"global_load_dwordx2 v[28:29], v{vT1}, s[26:27]")
    e("s_barrier")
    e("s_branch L_ffn")
    e("L_a0:")
    e(f"s_cmp_lg_u32 s{sW}, 0")
    e(f"s_cbranch_scc1 L_nopf")
    if not PFTOP:
        e("s_getpc_b64 s[44:45]")
        e(f"s_lshr_b32 s{sT0}, s2, 3")
        e(f"s_lshl_b32 s{sT0}, s{sT0}, 10")
        e(f"v_lshl_add_u32 v{vT1}, v0, 7, s{sT0}")
        e(f"v_min_u32 v{vT1}, CODE_BYTES, v{vT1}")
        e(f"s_mov_b64 exec, 0xff")
        e(f"global_load_dword v{vT2}, v{vT1}, s[44:45]")
        e("s_mov_b64 exec, -1")
    e(f"v_lshlrev_b32 v{vT0}, 2, v{vL}")
    e(f"v_add_u32 v{vT0}, {L_C}, v{vT0}")
    e(f"v_mov_b32 v{vT1}, 0")
    e(f"ds_write_b32 v{vT0}, v{vT1}")
    e("L_nopf:")
    e(f"s_and_b32 s{sT3}, s2, 0xc0")
    e(f"s_add_u32 s{sT1}, s{sT1}, s{sT3}")
    e(f"s_mul_i32 s{sT3}, s{sW}, 6")
    e(f"s_add_u32 s{sT2}, s{sT2}, s{sT3}")
    e(f"s_add_u32 s{sT2}, s{sT2}, 16")
    for p in range(3):
        e(f"s_add_u32 s{sT3}, s{sT2}, {2*p}")
        e(f"s_and_b32 s{sT3}, s{sT3}, 63")
        e(f"s_add_u32 s{sT3}, s{sT3}, s{sT1}")
        e(f"s_lshl_b32 s{sT3}, s{sT3}, 10")
        e(f"v_add_u32 v{12+p}, s{sT3}, v{vL16}")
    e("s_waitcnt lgkmcnt(0)")
    TL = int(OPT.get("tlbs", 0))
    if TL == 1:
        e("s_load_dword s62, s[6:7], 0x0")
        e("s_load_dword s63, s[26:27], 0x22000")
    e("s_barrier")
    for j in range(6):
        e(f"global_load_dwordx4 {vr(112+4*j,4)}, v{12+j//2}, s[4:5] offset:{1024*(j&1)}")
    if TL == 2:
        e("s_load_dword s62, s[6:7], 0x0")
        e("s_load_dword s63, s[26:27], 0x22000")
    if TL:
        e("s_load_dword s64, s[16:17], 0x0")
        e("s_load_dword s65, s[18:19], 0x0")
        e("s_load_dword s66, s[12:13], 0x0")
        e("s_load_dword s60, s[22:23], 0x0")
    e("s_branch L_attn")
    if OPT.get("alf"): e(f".p2align {OPT.get('alf')}")
    e("L_ffn:")
    ffn_role(e, stF, lambda: attention_role(e, stA))
    e("L_end:")
    e("s_endpgm")
    e("L_code_end:")
    return 168

if __name__ == "__main__":
    if "--stamp" in sys.argv:
        sys.argv.remove("--stamp"); common.STAMP = True
    out = sys.argv[1] if len(sys.argv) > 1 else "cdna_kernels/" + NAME + ".s"
    HDR = open("cdna_kernels/" + NAME + ".s.ref").read().split("; Override")[0]
    e = Asm()
    e('.amdgcn_target "amdgcn-amd-amdhsa--gfx950"')
    e(".text")
    name = NAME + "_kernel"
    nv = gen(e, name)
    hdr = HDR + f"; @launch grid=(256,1,1) block=(768,1,1) lds={LDS_BYTES}\n"
    txt = hdr + e.text() + '.section .rodata,"a"\n' + descriptor(name, nv)
    import subprocess, re as _re
    open("_p1.s", "w").write(txt.replace("CODE_BYTES", "0x12345"))
    subprocess.run(["clang", "-x", "assembler", "-target", "amdgcn-amd-amdhsa", "-mcpu=gfx950", "-c", "_p1.s", "-o", "_p1.o"], check=True)
    sym = subprocess.run(["llvm-readelf", "-s", "_p1.o"], capture_output=True, text=True).stdout
    addr = {l.split()[-1]: int(l.split()[1], 16) for l in sym.splitlines() if l.split() and l.split()[-1].startswith("L_")}
    nbytes = addr["L_code_end"] - addr["L_a0"] - 128
    assert nbytes < 32768 + 2600, nbytes
    open(out, "w").write(txt.replace("CODE_BYTES", hex(nbytes)))
```

```python
import sys
from common import *
import common
import struct
def f32bits(x): return struct.unpack("<I", struct.pack("<f", x))[0]
LOG2E = 1.4426950408889634
QSCALE = 0.25 * LOG2E
BOUND2 = 40.0 * 40.0
M16 = "v_mfma_f32_16x16x32_bf16"

KF   = 0x000000
VF   = 0x010000
KMAX = 0x020000
EPOCH = 0x021000
KVFL = 0x028000
HFL  = 0x040000
OFL  = 0x080000
HF   = 0x100000
OF   = 0x800000
OF2  = 0xA00000
XS2, XS1, XRT = 528, 1056, 33792
L_XN  = 0
L_WQ  = 67584
L_R   = L_WQ + 65536
L_OA  = L_WQ + 49152
L_L   = L_OA + 32768
CNT8, CNT7 = 0x40200000, 0x401c0000
RINGB = 12288
L_Q   = L_R + 20480
L_C   = L_Q + 8192
C_KVX, C_QRDY, C_QMAX, C_REDO, C_ADONE, C_G1, C_RED, C_WO, C_S1, C_S2, C_Z, C_KVD, C_KVL, C_TICK, C_S0, C_XN = [4*i for i in range(16)]
C_QW = 72
C_CHK = 76
C_KVF = 80
C_WQ = 84
C_KVS = 88
C_VOID = 92
C_HP = 96
C_NON = 64
assert L_L + 8*512 == L_Q
L_RM  = L_C + 256
LDS_BYTES = L_RM + 1024
assert LDS_BYTES <= 163840
SPIN_MAX = 1 << 18
import os
OPT = dict(kv.split("=") for kv in os.environ.get("FOPT", "").split(",") if kv)
FPRIO = int(OPT.get("fprio", 2))
NOLD = int(OPT.get("nold", 6))
BOOST = int(OPT.get("boost", 1))
KVD_ACK = int(OPT.get("kvdack", 0))
PF1 = int(OPT.get("pf1", 0))
ABL = OPT.get("abl", "")
DBGT = int(OPT.get("dbgt", 0))
def dbg_time(e, idx, inv, va, vb):
    if not DBGT: return
    e("s_memrealtime s[96:97]")
    e("s_waitcnt lgkmcnt(0)")
    if inv: e("s_not_b32 s96, s96")
    e(f"v_mov_b32 v{va}, s96")
    e(f"v_mov_b32 v{vb}, {4*idx}")
    e("s_mov_b64 exec, 1")
    e(f"global_atomic_umax v{vb}, v{va}, s[22:23]")
    e("s_mov_b64 exec, -1")
GROUP = int(OPT.get("group", 2))
PF2 = int(OPT.get("pf2", 1))
QFIRST = int(OPT.get("qfirst", 0))
CSWAP = int(OPT.get("cswap", 1))
JIT = int(OPT.get("jit", 0))
PEEL = int(OPT.get("peel", 1))
FAST = int(OPT.get("fast", 1))
CONT = int(OPT.get("cont", 1))
EARLYP = int(OPT.get("earlyp", 1))
PFQ = int(OPT.get("pfq", 0))
FULLCHK = int(OPT.get("fullchk", 1))
WQLATE = int(OPT.get("wqlate", 1))
PSLEEP = int(OPT.get("psleep", 0))
PWQ = int(OPT.get("pwq", 1))
WQAT = OPT.get("wqat", "f")
LOT = OPT.get("lot", "34567")
TLBW = int(OPT.get("tlbw", 0))
ROT = int(OPT.get("rot", 0))
FILLATE = int(OPT.get("fillate", 1))
XEARLY = int(OPT.get("xearly", 0))
YDELAY = int(OPT.get("ydelay", 2))
SENT = int(OPT.get("sent", 1))

sX, sWS, sWA, sOUT, sDBG = 28, 32, 36, 40, 44
sW, sRP, sCG, sT0, sT1, sT2, sT3, sCNT, sF = 48, 49, 50, 51, 52, 53, 54, 55, 56
sONES = 57
sNON = 58
sMASK = 60
sLN = 62
sSP = 3
vL, vL16, vT0, vT1, vT2, vCT = 1, 2, 3, 4, 5, 6
vDA, vDB = 7, 8

def decode_ids(e):
    e(f"s_and_b32 s{sRP}, s2, 7")
    e(f"s_lshl_b32 s{sRP}, s{sRP}, 2")
    e(f"s_lshr_b32 s{sCG}, s2, 6")
    e(f"s_add_u32 s{sRP}, s{sRP}, s{sCG}")
    e(f"s_lshr_b32 s{sCG}, s2, 3")
    e(f"s_and_b32 s{sCG}, s{sCG}, 7")

def lds_signal(e, off, vtmp):
    e("s_waitcnt lgkmcnt(0)")
    e(f"v_mov_b32 v{vtmp}, 1")
    e("s_mov_b64 exec, 1")
    e(f"ds_add_u32 v{vCT}, v{vtmp} offset:{off}")
    e("s_mov_b64 exec, -1")

def lds_wait(e, off, n, vtmp, sleep=1, vaddr=None, exact=False):
    L, D = e.label("lw"), e.label("lwd")
    vaddr = vCT if vaddr is None else vaddr
    e(f"s_mov_b32 s{sSP}, {SPIN_MAX*8}")
    e(f"{L}:")
    e(f"ds_read_b32 v{vtmp}, v{vaddr} offset:{off}")
    e(f"s_sub_u32 s{sSP}, s{sSP}, 1")
    e("s_waitcnt lgkmcnt(0)")
    e(f"v_cmp_{'ne' if exact else 'gt'}_u32 vcc, {n}, v{vtmp}")
    e(f"s_cbranch_vccz {D}")
    e(f"s_sleep {sleep}")
    e(f"s_cbranch_scc0 {L}")
    e(f"{D}:")

def fetch_nonce(e, vt):
    e(f"ds_read_b64 {vr(vt,2)}, v{vCT} offset:{C_NON}")
    e("s_waitcnt lgkmcnt(0)")
    e(f"v_readfirstlane_b32 s{sNON}, v{vt}")
    e(f"v_readfirstlane_b32 s{sNON+1}, v{vt+1}")

def flag_poll(e, vt, voff, soff, sleep=1):
    L, D = e.label("fp"), e.label("fpd")
    e(f"s_mov_b32 s{sSP}, {SPIN_MAX}")
    e(f"{L}:")
    e(f"buffer_load_dwordx2 {vr(vt,2)}, v{voff}, {sr(sWS,4)}, s{soff} offen sc1")
    e(f"s_sub_u32 s{sSP}, s{sSP}, 1")
    e("s_waitcnt vmcnt(0)")
    e(f"v_cmp_ne_u64 vcc, {sr(sNON,2)}, {vr(vt,2)}")
    e(f"s_cbranch_vccz {D}")
    e(f"s_sleep {sleep}")
    e(f"s_cbranch_scc0 {L}")
    e(f"{D}:")

def flag_set(e, vt, soff):
    e(f"v_mov_b32 v{vt}, s{sNON}")
    e(f"v_mov_b32 v{vt+1}, s{sNON+1}")
    e(f"v_mov_b32 v{vt+2}, 0")
    e("s_waitcnt vmcnt(0)")
    e("s_mov_b64 exec, 1")
    e(f"buffer_store_dwordx2 {vr(vt,2)}, v{vt+2}, {sr(sWS,4)}, s{soff} offen sc1")
    e("s_mov_b64 exec, -1")

def set_srd(e, d, base, nbytes):
    srd(e, d, base, nbytes)

def layernorm_rows(e, n, X, T, U, srow, vm_after, mid=None, st=None):
    S1, S2 = T, T + n
    def dots(js):
        for i in range(4):
            for j in js:
                x = X + 4*j + i
                e(f"v_dot2_f32_bf16 v{S1+j}, v{x}, s{sONES}, {'0' if i == 0 else 'v' + str(S1+j)}")
                e(f"v_dot2_f32_bf16 v{S2+j}, v{x}, v{x}, {'0' if i == 0 else 'v' + str(S2+j)}")
    for j in range(0, n, 2):
        if vm_after is not None: e(f"s_waitcnt vmcnt({vm_after + n - 2 - j})")
        dots([j, j+1])
    e("s_nop 2")
    if st: st.mark()
    A = T + 2*n
    p32 = [(0, 2), (1, 3)] + ([(4, 5)] if n == 6 else [])
    for base in (S1, S2):
        for (a, b) in p32:
            e(f"v_permlane32_swap_b32 v{base+a}, v{base+b}")
    for base in (S1, S2):
        for (a, b) in p32:
            e(f"v_add_f32 v{base+a}, v{base+a}, v{base+b}")
    if n == 6:
        e(f"v_mov_b32 v{S1+5}, v{S1+4}")
        e(f"v_mov_b32 v{S2+5}, v{S2+4}")
    e("s_nop 1")
    p16 = [(0, 1)] + ([(4, 5)] if n == 6 else [])
    for base in (S1, S2):
        for (a, b) in p16:
            e(f"v_permlane16_swap_b32 v{base+a}, v{base+b}")
    e("s_nop 0")
    for base in (S1, S2):
        for (a, b) in p16:
            e(f"v_add_f32 v{base+a}, v{base+a}, v{base+b}")
    G = [0] + ([4] if n == 6 else [])
    for rot in (8, 4, 2, 1):
        e("s_nop 1" if len(G) == 1 else "s_nop 0")
        for g in G:
            for base in (S1, S2):
                e(f"v_add_f32_dpp v{base+g}, v{base+g}, v{base+g} row_ror:{rot} row_mask:0xf bank_mask:0xf")
    def each(fmt):
        for gi, g in enumerate(G):
            e(fmt.format(m=S1+g, v=S2+g, t=A+gi))
    each(f"v_mul_f32 v{{m}}, {f32bits(1/512):#x}, v{{m}}")
    each(f"v_mul_f32 v{{v}}, {f32bits(1/512):#x}, v{{v}}")
    each("v_fma_f32 v{v}, -v{m}, v{m}, v{v}")
    each("v_max_f32 v{v}, 0, v{v}")
    each("v_cvt_pk_bf16_f32 v{t}, v{m}, v{v}")
    each("v_lshlrev_b32 v{m}, 16, v{t}")
    each("v_and_b32 v{v}, 0xffff0000, v{t}")
    each(f"v_add_f32 v{{v}}, {f32bits(1e-5):#x}, v{{v}}")
    each("v_cvt_pk_bf16_f32 v{v}, v{v}, v{v}")
    each("v_lshlrev_b32 v{v}, 16, v{v}")
    each("v_sqrt_f32 v{v}, v{v}")
    e("s_nop 0")
    each("v_cvt_pk_bf16_f32 v{v}, v{v}, v{v}")
    each("v_lshlrev_b32 v{v}, 16, v{v}")
    each("v_rcp_f32 v{v}, v{v}")
    e("s_nop 0")
    each("v_mul_f32 v{m}, -v{m}, v{v}")
    e("s_nop 0")
    if mid: mid()
    if st: st.mark()
    lane_of = [0, 16, 32, 48, 0, 32]
    grp_of = [0, 0, 0, 0, 4, 4]
    vA = A + 2
    e(f"v_mul_u32_u24 v{vA}, {XS2}, v{vL}")
    AD, CC = A + 3, A + 4
    assert CC % 2 == 0 and U % 2 == 0
    def head(j):
        e(f"v_readlane_b32 s{sLN + 2*(j & 1)}, v{S2+grp_of[j]}, {lane_of[j]}")
        e(f"v_readlane_b32 s{sLN+4}, v{S1+grp_of[j]}, {lane_of[j]}")
        x, P = X + 4*j, U + 8*(j & 1)
        for i in range(4):
            e(f"v_lshlrev_b32 v{P+2*i}, 16, v{x+i}")
            e(f"v_and_b32 v{P+2*i+1}, 0xffff0000, v{x+i}")
            if i == 1: e(f"v_mov_b32 v{CC + 2*(j & 1)}, s{sLN+4}")
    def fma(j):
        P = U + 8*(j & 1)
        for i in range(4):
            e(f"v_pk_fma_f32 {vr(P+2*i,2)}, {vr(P+2*i,2)}, {sr(sLN + 2*(j & 1),2)}, {vr(CC + 2*(j & 1),2)} op_sel_hi:[1,0,0]")
    def tail(j):
        x, P = X + 4*j, U + 8*(j & 1)
        e(f"v_add_u32 v{AD}, s{srow[j]}, v{vA}")
        for i in range(4):
            e(f"v_cvt_pk_bf16_f32 v{x+i}, v{P+2*i}, v{P+2*i+1}")
        e(f"ds_write_b128 v{AD}, {vr(x,4)}")
    head(0)
    for j in range(n):
        fma(j)
        if j + 1 < n: head(j + 1)
        tail(j)

def tr_common(e, vd, t0, t1):
    e(f"v_and_b32 v{t0}, 12, v{vL}")
    e(f"v_lshlrev_b32 v{vd}, 5, v{t0}")
    e(f"v_lshrrev_b32 v{t0}, 3, v{vL}")
    e(f"v_and_b32 v{t0}, 2, v{t0}")
    e(f"v_bfe_u32 v{t1}, v{vL}, 1, 1")
    e(f"v_or_b32 v{t0}, v{t0}, v{t1}")
    e(f"v_lshrrev_b32 v{t1}, 1, v{vL}")
    e(f"v_and_b32 v{t1}, 4, v{t1}")
    e(f"v_xor_b32 v{t0}, v{t0}, v{t1}")
    e(f"v_lshl_add_u32 v{vd}, v{t0}, 4, v{vd}")
    e(f"v_and_b32 v{t0}, 1, v{vL}")
    e(f"v_lshl_add_u32 v{vd}, v{t0}, 3, v{vd}")

def dpp_max16(e, v):
    for ctl in ("row_ror:8", "row_ror:4", "row_ror:2", "row_ror:1"):
        e("s_nop 1")
        e(f"v_max_f32_dpp v{v}, v{v}, v{v} {ctl} row_mask:0xf bank_mask:0xf")

def swap_op(e, op, kind, v, t):
    e(f"v_mov_b32 v{t}, v{v}")
    e("s_nop 1")
    e(f"v_permlane{kind}_swap_b32 v{v}, v{t}")
    e("s_nop 0")
    e(f"{op} v{v}, v{v}, v{t}")


OCNT, OMRK = 260, 264
def stage_w512(e, base_sreg, lbase, sIDX, nparts, sSO, srd_=None):
    rows = 512 // nparts
    if srd_ is None:
        srd_ = sWA
        set_srd(e, sWA, base_sreg, 512*512*2)
    e(f"s_mul_i32 s{sSO}, s{sIDX}, {rows*1024}")
    e(f"s_lshl_b32 s{sT0}, s{sCG}, 7")
    e(f"s_add_u32 s{sSO}, s{sSO}, s{sT0}")
    e(f"s_mul_i32 s{sT0}, s{sIDX}, {rows*128}")
    for i in range(rows // 16):
        e(f"s_add_u32 m0, s{sT0}, {lbase + 2048*i}")
        if i: e(f"s_add_u32 s{sSO}, s{sSO}, 16384")
        else: e("s_nop 0")
        e(f"buffer_load_dwordx4 v{vDA}, {sr(srd_,4)}, s{sSO} offen lds")
        e(f"buffer_load_dwordx4 v{vDB}, {sr(srd_,4)}, s{sSO} offen offset:1024 lds")

A_Q, A_KR, A_VR, A_S0, A_S1, A_O = 12, 16, 48, 112, 128, 144
vLA, vQA, vWB = 7, 8, 9
A_ID = 160
sQT, sLAST, sRET, sPO = 84, 85, 86, 88
ROWS = [84, 85, 86, 87, 88, 89]
def flush_parts(e, rtn=False):
    O = A_O
    L = e.label("sf")
    pre = [f"ds_read_b32 v{vT0}, v{vLA} offset:{OMRK}"]
    pk = [f"v_cvt_pk_bf16_f32 v{O+12+i}, v{O+2*i}, v{O+2*i+1}" for i in range(4)]
    adr = [f"v_add_u32 v{vT1}, s{sPO}, v{vWB}"]
    chk1 = ["s_waitcnt lgkmcnt(0)", f"v_readfirstlane_b32 s{sT0}, v{vT0}"]
    chk2 = [f"s_cmp_lt_u32 s{sQT}, 4", f"s_cselect_b32 s{sT0}, 1, s{sT0}", f"s_cmp_lg_u32 s{sT0}, 0", f"s_cbranch_scc1 {L}",
            f"s_call_b64 {sr(sRET,2)}, L_wslot", f"{L}:"]
    add = f"ds_add_rtn_f64 v[4:5], v{vLA}, v[10:11] offset:2048" if rtn else f"ds_add_f64 v{vLA}, v[10:11] offset:2048"
    out = [f"ds_write_b128 v{vT1}, {vr(O+12,4)}", "s_mov_b32 exec_hi, 0", f"v_cvt_f64_f32 v[10:11], v{O+8}",
           "s_mov_b32 exec_hi, 1", add, "s_mov_b32 exec_hi, -1"]
    nxt = [f"v_add_u32 v{vLA}, 512, v{vLA}", f"s_add_u32 s{sPO}, s{sPO}, 8192", f"s_and_b32 s{sPO}, s{sPO}, 0x6000"]
    return pre, pk, adr, chk1, chk2, out, nxt

def a_flush(e):
    pre, pk, adr, chk1, chk2, out, nxt = flush_parts(e, rtn=True)
    for x in pre + pk + adr + chk1 + ["s_nop 0"] + chk2 + out: e(x)
    e(f"v_add_u32 v{vT0}, {L_OA + 3*8192}, v{vL16}")
    e(f"v_and_b32 v{A_Q}, 31, v{vL}")
    e(f"v_lshlrev_b32 v{A_Q}, 3, v{A_Q}")
    e(f"v_add_u32 v{A_Q}, {L_L + 7*512}, v{A_Q}")
    e(f"ds_read_b64 {vr(A_Q,2)}, v{A_Q}")
    for w in range(8):
        e(f"ds_read_b128 {vr(A_S0+4*w,4)}, v{vT0} offset:{1024*w}")
    for x in nxt: e(x)
    e("s_waitcnt lgkmcnt(9)")
    e(f"v_readlane_b32 s{sT0}, v5, 32")
    e("s_nop 0")
    L = e.label("nl")
    e(f"s_cmp_lg_u32 s{sT0}, s{sLAST}")
    e(f"s_cbranch_scc1 {L}")
    e(f"s_cmp_lg_u32 s{sQT}, 7")
    e(f"s_cbranch_scc1 {L}")
    e(f"s_call_b64 {sr(sRET,2)}, L_pub")
    e(f"{L}:")
    e("s_waitcnt lgkmcnt(0)")
    e(f"s_add_u32 s{sQT}, s{sQT}, 1")

def make_identity(e, d, t0, t1):
    e(f"v_and_b32 v{t0}, 1, v{vL}")
    e(f"v_lshlrev_b32 v{t0}, 4, v{t0}")
    e(f"v_mov_b32 v{t1}, 0x3f80")
    e(f"v_lshlrev_b32 v{t1}, v{t0}, v{t1}")
    e(f"v_lshrrev_b32 v{t0}, 3, v{vL}")
    e(f"v_and_b32 v{t0}, 4, v{t0}")
    e(f"v_xor_b32 v{t0}, v{t0}, v{vL}")
    e(f"v_and_b32 v{t0}, 0x1e, v{t0}")
    for i, key in enumerate((0, 2, 8, 10)):
        e(f"v_cmp_eq_u32 vcc, {key}, v{t0}")
        e("s_nop 1")
        e(f"v_cndmask_b32 v{d+i}, 0, v{t1}, vcc")

def publish_tail(e, D, LP, sq):
    e(f"s_lshl_b32 s{sT0}, s{sRP}, 3")
    e(f"s_and_b32 s{sT1}, s{sq}, 1")
    e(f"s_lshl_b32 s{sT1}, s{sT1}, 2")
    e(f"s_add_u32 s{sT0}, s{sT0}, s{sT1}")
    e(f"s_lshr_b32 s{sT1}, s{sq}, 1")
    e(f"s_add_u32 s{sT0}, s{sT0}, s{sT1}")
    e(f"s_lshl_b32 s{sT0}, s{sT0}, 3")
    e(f"s_add_u32 s{sT0}, s{sT0}, s{sCG}")
    e(f"s_lshl_b32 s{sT1}, s{sT0}, 10")
    e(f"s_add_u32 s{sT1}, s{sT1}, {OF}")
    e(f"v_cvt_f32_f64 v{LP}, {vr(LP,2)}")
    e(f"v_rcp_f32 v{LP}, v{LP}")
    e("s_nop 0")
    for i in range(0, 8, 2):
        e(f"v_pk_mul_f32 {vr(D+i,2)}, {vr(D+i,2)}, {vr(LP,2)} op_sel_hi:[1,0]")
    for i in range(4):
        e(f"v_cvt_pk_bf16_f32 v{D+i}, v{D+2*i}, v{D+2*i+1}")
    for i in range(4):
        e(f"v_min_u32 v{D+i}, -2, v{D+i}")
    L = e.label("nf")
    e(f"s_cmp_lt_u32 s{sq}, 6")
    e(f"s_cbranch_scc1 {L}")
    e(f"s_add_u32 s{sT0}, s{sT1}, {OF2 - OF}")
    e(f"buffer_store_dwordx4 {vr(D,4)}, v{vL16}, {sr(sWS,4)}, s{sT0} offen")
    e(f"{L}:")
    e(f"buffer_store_dwordx4 {vr(D,4)}, v{vL16}, {sr(sWS,4)}, s{sT1} offen sc1")

def flush_init(e):
    e(f"v_lshlrev_b32 v{vLA}, 3, v{vL}")
    e(f"v_add_u32 v{vLA}, {L_L - 2048}, v{vLA}")
    e(f"v_mov_b32 v10, 0")
    e(f"v_mov_b32 v11, 0x3ff00000")
    e(f"s_mov_b32 s{sLAST}, {CNT7}")
    e(f"s_mov_b32 s{sQT}, 0")
    e(f"s_mov_b32 s{sPO}, 0")

def attention_role(e, st):
    Q, KR, VR, S0, S1, O = A_Q, A_KR, A_VR, A_S0, A_S1, A_O
    X, T = 112, 136
    e("L_attn:")
    rows = ROWS
    if common.STAMP:
        e(f"s_mov_b32 s{common.S_ST}, s98")
        e(f"s_mov_b32 s{common.S_ST+1}, s96")
    row_offsets(e, sT2, 6)
    PQW = int(OPT.get("pqw", 6))
    Lnq = e.label("nopq")
    e(f"s_cmp_lt_u32 s{sW}, {PQW}")
    e(f"s_cbranch_scc1 {Lnq}")
    e(f"s_lshr_b32 s{sT1}, s2, 3")
    e(f"s_lshl_b32 s{sT1}, s{sT1}, 1")
    e(f"s_add_u32 s{sT0}, s{sW}, s{sT1}")
    e(f"s_sub_u32 s{sT0}, s{sT0}, 6")
    e(f"s_lshl_b32 s{sT0}, s{sT0}, 13")
    e(f"v_lshl_add_u32 v10, v{vL}, 7, s{sT0}")
    e(f"global_load_dword v10, v10, s[6:7]")
    e(f"{Lnq}:")
    vPO_ = 164
    e(f"v_and_b32 v{vT0}, 15, v{vL}")
    e(f"v_cmp_eq_u32 vcc, 0, v{vT0}")
    e(f"v_mov_b32 v{vT1}, 0x3f803f80")
    e(f"v_and_b32 v{vT0}, 31, v{vL}")
    e(f"v_cndmask_b32 v{VR+4}, 0, v{vT1}, vcc")
    e(f"v_cndmask_b32 v{VR+5}, 0, v{vT1}, vcc")
    for t in range(8):
        for i in (4, 6):
            if (t, i) != (0, 4): e(f"v_mov_b64 {vr(VR+8*t+i,2)}, {vr(VR+4,2)}")
    e(f"v_add_u32 v{vQA}, {L_Q}, v{vL16}")
    e(f"v_lshlrev_b32 v{vPO_}, 7, v{vT0}")
    e(f"s_lshl_b32 s{sT0}, s{sW}, 10")
    e(f"s_add_u32 s{sT0}, s{sT0}, {L_OA}")
    e(f"v_add_u32 v{vWB}, s{sT0}, v{vL16}")
    sK0, sK1, sV0, sV1, sKM, sFLG = 90, 91, 92, 93, 94, 95
    e(f"s_lshr_b32 s{sK1}, s2, 1")
    e(f"s_and_b32 s{sK1}, s{sK1}, {4 if CSWAP else 0}")
    e(f"s_xor_b32 s{sK1}, s{sK1}, s{sW}")
    e(f"s_lshl_b32 s{sFLG}, s{sK1}, 12")
    e(f"s_add_u32 s{sFLG}, s{sFLG}, {KVFL}")
    e(f"s_lshl_b32 s{sK0}, s{sK1}, 13")
    e(f"s_add_u32 s{sK1}, s{sK0}, {KF + 4096}")
    e(f"s_add_u32 s{sV0}, s{sK0}, {VF}")
    e(f"s_add_u32 s{sV1}, s{sK0}, {VF + 4096}")
    assert KF == 0
    make_identity(e, A_ID, vT0, vT1)
    common_setup(e)
    Lw1, Lw2 = e.label("xw"), e.label("xw2")
    e(f"s_cmp_lt_u32 s{sW}, {PQW}")
    e(f"s_cbranch_scc1 {Lw1}")
    e("s_waitcnt vmcnt(1)")
    e(f"s_branch {Lw2}")
    e(f"{Lw1}:")
    e("s_waitcnt vmcnt(0)")
    e(f"{Lw2}:")
    if OPT.get("tlbs"): e("s_waitcnt lgkmcnt(0)")
    st.mark()
    layernorm_rows(e, 6, X, T, 16, rows, None, st=st if OPT.get("lnst") else None)
    if OPT.get("lnst"): st.mark()
    lds_signal(e, C_XN, vT0)
    st.mark()
    lds_wait(e, *((C_WQ, 4) if PWQ else (C_KVF, 1)), vT1)
    if PWQ == 2: lds_wait(e, C_XN, 8, vT1)
    fetch_nonce(e, S0)
    st.mark()
    if PSLEEP: e(f"s_sleep {PSLEEP}")
    Lp, Lpd = e.label("kp"), e.label("kpd")
    e(f"s_mov_b32 s{sSP}, {SPIN_MAX}")
    e(f"{Lp}:")
    e(f"buffer_load_dwordx4 {vr(S0,4)}, v{vPO_}, {sr(sWS,4)}, s{sFLG} offen sc1")
    e("s_waitcnt vmcnt(0)")
    e(f"v_cmp_ne_u64 vcc, {sr(sNON,2)}, {vr(S0,2)}")
    e(f"v_cmp_ne_u32 {sr(sLN,2)}, v{S0}, v{S0+3}")
    e(f"s_or_b64 vcc, vcc, {sr(sLN,2)}")
    e(f"s_cbranch_vccz {Lpd}")
    e(f"s_sub_u32 s{sSP}, s{sSP}, 1")
    e(f"s_sleep {int(OPT.get('kvsleep', 1))}")
    e(f"s_cbranch_scc0 {Lp}")
    e(f"{Lpd}:")
    e(f"v_mov_b32 v{vT2}, v{S0+2}")
    st.mark()
    if YDELAY == 2:
        Ly = e.label("old")
        e(f"s_cmp_lt_u32 s{sW}, 4")
        e(f"s_cbranch_scc1 {Ly}")
        lds_wait(e, C_KVL, 4, vT1, sleep=1)
        e(f"{Ly}:")
    log = []
    def ldk(t):
        log.append(("K", t))
        return [f"buffer_load_dwordx4 {vr(KR+4*t,4)}, v{vL16}, {sr(sWS,4)}, s{sK0 if t < 4 else sK1} offen offset:{(t%4)*1024} sc1"]
    def ldv(t):
        log.append(("V", t))
        return [f"buffer_load_dwordx4 {vr(VR+8*t,4)}, v{vL16}, {sr(sWS,4)}, s{sV0 if t < 4 else sV1} offen offset:{(t%4)*1024} sc1"]
    def wait_for(items):
        last = max(i for i, it in enumerate(log) if it in items)
        return f"s_waitcnt vmcnt({len(log) - 1 - last})"
    order = [("K", 0), ("K", 1), ("V", 0), ("K", 2), ("V", 1), ("K", 3), ("V", 2), ("K", 4), ("V", 3), ("K", 5), ("V", 4), ("K", 6), ("V", 5), ("K", 7), ("V", 6), ("V", 7)]
    ld = lambda it: ldk(it[1]) if it[0] == "K" else ldv(it[1])
    NPRE = 16
    for it in order[:NPRE]:
        for l in ld(it): e(l)
    lds_signal(e, C_KVL, vT0)
    lds_wait(e, C_QW, 2 if QFIRST else 4, vT0)
    e(f"ds_read_b128 {vr(Q,4)}, v{vQA}")
    e(wait_for([("K", 0)]))
    e("s_waitcnt lgkmcnt(0)")
    e(f"{MFMA} {vr(S0,16)}, {vr(KR,4)}, {vr(Q,4)}, 0")
    e("s_nop 11")
    st.mark()
    def qtile(first, base, plain=False):
        for t in range(8):
            a = S0 if (t & 1) == 0 else S1
            b = S1 if (t & 1) == 0 else S0
            tp = (t - 1) % 8
            tn = (t + 1) % 8
            ex = [f"v_exp_f32 v{a+i}, v{a+i}" for i in range(16)]
            pk = [f"v_cvt_pk_bf16_f32 v{a+i}, v{a+2*i}, v{a+2*i+1}" for i in range(8)]
            if OPT.get("perm"): pk = [f"v_perm_b32 v{a+i}, v{a+2*i+1}, v{a+2*i}, s88" for i in range(8)]
            c0 = "0" if t == 1 else vr(O,16)
            pv0 = [f"{MFMA} {vr(O,16)}, {vr(VR+8*tp,4)}, {vr(b,4)}, {c0}"]
            pv1 = [f"{MFMA} {vr(O,16)}, {vr(VR+8*tp+4,4)}, {vr(b+4,4)}, {vr(O,16)}"]
            qk = [f"{MFMA} {vr(b,16)}, {vr(KR+4*tn,4)}, {vr(Q,4)}, 0"]
            wait, extra = [], []
            if first:
                if t == 0: pv0 = pv1 = []
                wait = [wait_for([("K", t+1)])] if t < 7 else []
            if plain:
                if t == 7: qk = []
            else:
                if t == 7: wait += [f"s_waitcnt lgkmcnt(0)"]
                if t == 6: extra += [f"ds_read_b128 {vr(Q,4)}, v{vQA} offset:1024"]
            bs = base if isinstance(base, int) else (0 if str(t) in base else 1)
            hi, lo = ["s_setprio 3"], [f"s_setprio {bs}"]
            if not BOOST:
                hi = []
                prevb = base if isinstance(base, int) else (0 if str((t-1) % 8) in base else 1)
                if prevb == bs and not (first and t == 0): lo = ["s_nop 0"] if t == 0 else []
            if OPT.get("nb") and not isinstance(base, int) and bs == 0 and str((t-1) % 8) in base: hi, lo = [], (["s_nop 0"] if t == 0 else [])
            SP = OPT.get("sp", "33")
            n1, n2 = int(SP[0]), int(SP[0]) + int(SP[1])
            if plain: hi, lo = [], (["s_nop 0"] if t == 0 else [])
            seq = wait + hi + pv0 + ex[0:n1] + pv1 + ex[n1:n2] + qk + lo + extra + ex[n2:6]
            if OPT.get("ord") == "q":
                seq = wait + hi + pv0 + lo + ex[0:3] + hi + pv1 + lo + ex[3:6] + hi + qk + lo + extra
            if t == 0 and not first:
                fpre, fpk, fadr, fc1, fc2, fout, fnxt = flush_parts(e)
                seq += fpre + [pk[0], pk[1]] + ex[6:8] + [pk[2]] + fadr + ex[8:10]
                seq += [fpk[0], pk[3], fpk[1], ex[10], fpk[2], ex[11], fpk[3], pk[4]] + fc1 + ex[12:14] + fc2 + fout + [pk[5]] + ex[14:16] + [pk[6], pk[7]] + fnxt
            else:
                seq += [pk[0], pk[1]] + ex[6:8] + [pk[2]] + ex[8:10] + [pk[3]] + ex[10:12] + [pk[4]] + ex[12:14] + [pk[5]]
                if first:
                    seq += [wait_for([("V", t)])] + [f"v_permlane16_swap_b32 v{VR+8*t+i}, v{VR+8*t+4+i}" for i in range(4)]
                seq += ex[14:16] + [pk[6], pk[7]]
            if OPT.get("noda"): seq = [x for x in seq if not x.startswith("ds_add_f64")]
            for x in seq: e(x)
        if not plain: e(f"v_add_u32 v{vQA}, 1024, v{vQA}")
        if not first: e(f"s_add_u32 s{sQT}, s{sQT}, 1")
    if OPT.get("perm"): e("s_mov_b32 s88, 0x07060302")
    BASE = 1 if NOLD < 8 else 0
    qtile(True, BASE)
    lds_wait(e, C_Z, 4, vT0)
    e(f"ds_read_b32 v{vT1}, v{vCT} offset:{C_QMAX}")
    e("s_waitcnt vmcnt(0) lgkmcnt(0)")
    flush_init(e)
    e(f"v_mul_f32 v{vT2}, v{vT2}, v{vT1}")
    e(f"v_cmp_nge_f32 vcc, {f32bits(BOUND2):#x}, v{vT2}")
    Lok = e.label("bok")
    e(f"s_cbranch_vccz {Lok}")
    lds_signal(e, C_REDO, vT0)
    lds_signal(e, C_VOID, vT0)
    e(f"v_mov_b32 v11, 0x40700000")
    e(f"s_mov_b32 s{sLAST}, -1")
    e(f"{Lok}:")
    lds_signal(e, C_CHK, vT0)
    if LOT != "x":
        LA, LB, LE = e.label("aloopa"), e.label("aloopb"), e.label("aloope")
        e(f"s_cmp_lt_u32 s{sW}, 4")
        e(f"s_cbranch_scc1 {LB}")
        e(".p2align 6")
        e(f"{LA}:")
        NL = 6 if PEEL else 7
        qtile(False, 1)
        e(f"s_cmp_lt_u32 s{sQT}, {NL}")
        e(f"s_cbranch_scc1 {LA}")
        e(f"s_branch {LE}")
        e(".p2align 6")
        e(f"{LB}:")
        qtile(False, LOT)
        e(f"s_cmp_lt_u32 s{sQT}, {NL}")
        e(f"s_cbranch_scc1 {LB}")
        e(f"{LE}:")
        if PEEL:
            e(f"s_setprio {OPT.get('lastp', 0)}")
            qtile(False, 0, plain=True)
    else:
        e(f"s_cmp_lt_u32 s{sW}, 4")
        e(f"s_cselect_b32 s{sCNT}, {NOLD - 1}, 7")
        LA, LB, LE = e.label("aloopa"), e.label("aloopb"), e.label("aloope")
        e(".p2align 6")
        e(f"{LA}:")
        qtile(False, BASE)
        e(f"s_cmp_lt_u32 s{sQT}, s{sCNT}")
        e(f"s_cbranch_scc1 {LA}")
        if NOLD < 8:
            e(f"s_cmp_eq_u32 s{sQT}, 7")
            e(f"s_cbranch_scc1 {LE}")
            e(f"{LB}:")
            qtile(False, 0)
            e(f"s_cmp_lt_u32 s{sQT}, 7")
            e(f"s_cbranch_scc1 {LB}")
            e(f"{LE}:")
    e("s_setprio 3")
    e(f"{MFMA} {vr(O,16)}, {vr(VR+56,4)}, {vr(S1,4)}, {vr(O,16)}")
    e(f"{MFMA} {vr(O,16)}, {vr(VR+60,4)}, {vr(S1+4,4)}, {vr(O,16)}")
    e("s_nop 11")
    a_flush(e)
    st.mark()
    lds_wait(e, C_CHK, 8, vT0)
    e(f"ds_read_b32 v{vT0}, v{vCT} offset:{C_REDO}")
    e("s_waitcnt lgkmcnt(0)")
    e(f"v_cmp_ne_u32 vcc, 0, v{vT0}")
    e(f"s_cbranch_vccnz L_slow")
    e("L_aend:")
    st.mark(); st.mark(True)
    st.flush(sW, sWS, vT0, vT1, 12)
    e("s_endpgm")
    e("L_pub:")
    for w in range(8):
        e(f"s_waitcnt lgkmcnt({7-w})")
        e(f"{MFMA} {vr(O,16)}, {vr(A_ID,4)}, {vr(S0+4*w,4)}, {'0' if w == 0 else vr(O,16)}")
    publish_tail(e, O, Q, sQT)
    e(f"s_setpc_b64 {sr(sRET,2)}")
    e("L_wslot:")
    e(f"s_mov_b32 s{sSP}, {SPIN_MAX*8}")
    e("L_wslot1:")
    e("s_sleep 2")
    e(f"ds_read_b32 v{vT0}, v{vLA} offset:{OMRK}")
    e(f"ds_read_b32 v{vT2}, v{vCT} offset:{C_VOID}")
    e("s_waitcnt lgkmcnt(0)")
    e(f"v_or_b32 v{vT0}, v{vT0}, v{vT2}")
    e("s_nop 0")
    e(f"v_readfirstlane_b32 s{sT0}, v{vT0}")
    e("s_nop 0")
    e(f"s_cmp_lg_u32 s{sT0}, 0")
    e("s_cbranch_scc1 L_wslot2")
    e(f"s_sub_u32 s{sSP}, s{sSP}, 1")
    e("s_cbranch_scc0 L_wslot1")
    e("L_wslot2:")
    e(f"s_setpc_b64 {sr(sRET,2)}")

def attention_slow(e):
    Q, KR, VR, S0, S1, O = A_Q, A_KR, A_VR, A_S0, A_S1, A_O
    vRM = 0
    e("L_slow:")
    e("s_setprio 0")
    e(f"s_lshl_b32 s{sT0}, s{sW}, 9")
    e(f"s_add_u32 s{sT0}, s{sT0}, {L_L}")
    e(f"v_lshl_add_u32 v{vT2}, v{vL}, 3, s{sT0}")
    e(f"v_mov_b32 v10, 0")
    e(f"v_mov_b32 v11, 0")
    lds_signal(e, C_S0, vT0)
    lds_wait(e, C_S0, 8, vT0)
    e(f"ds_write_b64 v{vT2}, v[10:11]")
    e(f"ds_write_b32 v{vCT}, v10 offset:{C_VOID}")
    e("s_waitcnt lgkmcnt(0)")
    flush_init(e)
    e(f"v_and_b32 v{vRM}, 31, v{vL}")
    e(f"v_lshlrev_b32 v{vRM}, 2, v{vRM}")
    e(f"v_add_u32 v{vRM}, {L_RM}, v{vRM}")
    e(f"s_lshl_b32 s{sT0}, s{sW}, 7")
    e(f"v_add_u32 v{vT1}, s{sT0}, v{vRM}")
    e(f"v_mov_b32 v{vT0}, 0xff800000")
    e(f"ds_write_b32 v{vT1}, v{vT0}")
    lds_signal(e, C_S1, vT0)
    lds_wait(e, C_S1, 8, vT0)
    e(f"v_add_u32 v{vQA}, {L_Q}, v{vL16}")
    e(f"v_mov_b32 v{vT2}, v{vRM}")
    e(f"s_mov_b32 s{sCNT}, 8")
    L1 = e.label("sp1")
    e(f"{L1}:")
    e(f"ds_read_b128 {vr(Q,4)}, v{vQA}")
    e(f"v_mov_b32 v{vT0}, 0xff800000")
    e("s_waitcnt lgkmcnt(0)")
    for t in range(8):
        e(f"{MFMA} {vr(S0,16)}, {vr(KR+4*t,4)}, {vr(Q,4)}, 0")
        e("s_nop 11")
        for i in range(0, 16, 2):
            e(f"v_max3_f32 v{vT0}, v{S0+i}, v{S0+i+1}, v{vT0}")
    e(f"ds_max_f32 v{vT2}, v{vT0}")
    e(f"v_add_u32 v{vQA}, 1024, v{vQA}")
    e(f"v_add_u32 v{vT2}, 128, v{vT2}")
    e(f"s_sub_u32 s{sCNT}, s{sCNT}, 1")
    e(f"s_cmp_lg_u32 s{sCNT}, 0")
    e(f"s_cbranch_scc1 {L1}")
    lds_signal(e, C_S2, vT0)
    lds_wait(e, C_S2, 8, vT0)
    e(f"v_add_u32 v{vQA}, {L_Q}, v{vL16}")
    e(f"s_mov_b32 s{sCNT}, 8")
    L2 = e.label("sp2")
    e(f"{L2}:")
    e(f"ds_read_b128 {vr(Q,4)}, v{vQA}")
    e(f"ds_read_b32 v{vT0}, v{vRM}")
    e("s_waitcnt lgkmcnt(0)")
    for i in range(16):
        e(f"v_sub_f32 v{S1+i}, 0, v{vT0}")
    e("s_nop 1")
    for t in range(8):
        e(f"{MFMA} {vr(S0,16)}, {vr(KR+4*t,4)}, {vr(Q,4)}, {vr(S1,16)}")
        e("s_nop 11")
        for i in range(16):
            e(f"v_exp_f32 v{S0+i}, v{S0+i}")
        for i in range(8):
            e(f"v_cvt_pk_bf16_f32 v{S0+i}, v{S0+2*i}, v{S0+2*i+1}")
        e("s_nop 1")
        e(f"{MFMA} {vr(O,16)}, {vr(VR+8*t,4)}, {vr(S0,4)}, {'0' if t == 0 else vr(O,16)}")
        e(f"{MFMA} {vr(O,16)}, {vr(VR+8*t+4,4)}, {vr(S0+4,4)}, {vr(O,16)}")
    e("s_nop 11")
    a_flush(e)
    e(f"v_add_u32 v{vQA}, 1024, v{vQA}")
    e(f"v_add_u32 v{vRM}, 128, v{vRM}")
    e(f"s_sub_u32 s{sCNT}, s{sCNT}, 1")
    e(f"s_cmp_lg_u32 s{sCNT}, 0")
    e(f"s_cbranch_scc1 {L2}")
    e("s_branch L_aend")

def silu(e, d, t):
    e(f"s_mov_b32 s{sLN}, {f32bits(-LOG2E):#x}")
    for i in range(0, 16, 2):
        e(f"v_pk_mul_f32 {vr(t+i,2)}, {vr(d+i,2)}, {sr(sLN,2)} op_sel_hi:[1,0]")
    for i in range(16):
        e(f"v_exp_f32 v{t+i}, v{t+i}")
    for i in range(0, 16, 2):
        e(f"v_pk_add_f32 {vr(t+i,2)}, {vr(t+i,2)}, 1.0 op_sel_hi:[1,0]")
    for i in range(16):
        e(f"v_rcp_f32 v{t+i}, v{t+i}")
    for i in range(0, 16, 2):
        e(f"v_pk_mul_f32 {vr(d+i,2)}, {vr(d+i,2)}, {vr(t+i,2)}")

def ffn_role(e, st, emit_attention):
    vD1A, vD1B = 9, 10
    vTRC, vTA0, vTA1, vXB, vHH = 11, 12, 13, 14, 15
    ACC, AF, BF = 16, 80, 96
    sRING, sSO, sB0, sB1, sGRP = 90, 91, 92, 93, 89
    vPF = BF + 17
    TS = bool(OPT.get("tailst"))
    GS = bool(OPT.get("g1st"))
    st.off = TS or GS
    def tm():
        if TS: st.mark()
    def gm():
        if GS:
            st.off = False; st.mark(); st.off = True
    if DBGT:
        e("s_memrealtime s[98:99]")
    X, T = 96, 112
    rows = ROWS[:4]
    if common.STAMP:
        e(f"s_mov_b32 s{common.S_ST}, s98")
        e(f"s_mov_b32 s{common.S_ST+1}, s96")
    e(f"s_lshl_b32 s{sT3}, s{sF}, 2")
    e(f"s_add_u32 s{sT2}, s{sT2}, s{sT3}")
    row_offsets(e, sT2, 4)
    e(f"v_lshrrev_b32 v{vT0}, 2, v{vL}")
    e(f"v_and_b32 v{vT0}, 4, v{vT0}")
    e(f"v_and_b32 v{vT1}, 7, v{vL}")
    e(f"v_xor_b32 v{vT1}, v{vT1}, v{vT0}")
    e(f"v_lshlrev_b32 v{vT1}, 4, v{vT1}")
    e(f"v_lshrrev_b32 v{vT0}, 3, v{vL}")
    e(f"v_lshl_add_u32 v{vDA}, v{vT0}, 10, v{vT1}")
    e(f"v_add_u32 v{vDB}, {8192-1024}, v{vDA}")
    common_setup(e)
    e(f"s_lshr_b32 s{sGRP}, s{sCG}, 1")
    e(f"v_mul_u32_u24 v{vD1A}, 3584, v{vT0}")
    e(f"v_add_u32 v{vD1A}, v{vD1A}, v{vT1}")
    e(f"v_add_u32 v{vD1B}, {8*3584-1024}, v{vD1A}")
    e(f"s_mul_i32 s{sRING}, s{sF}, {RINGB}")
    e(f"s_add_u32 s{sRING}, s{sRING}, {L_WQ}")
    tr_common(e, vTRC, vT0, vT1)
    e(f"v_lshrrev_b32 v{vHH}, 5, v{vL}")
    vWA, vXA, vG, vI, vSA = ACC+8, ACC+9, ACC+10, ACC+11, ACC+7
    e(f"v_lshrrev_b32 v{vG}, 4, v{vL}")
    e(f"v_and_b32 v{vI}, 15, v{vL}")
    e(f"v_lshlrev_b32 v{vWA}, 3, v{vI}")
    e(f"v_lshl_add_u32 v{vWA}, v{vG}, 8, v{vWA}")
    e(f"v_add_u32 v{vWA}, {L_R}, v{vWA}")
    e(f"v_mul_u32_u24 v{vXA}, {XS2}, v{vG}")
    e(f"v_lshl_add_u32 v{vXA}, v{vI}, 4, v{vXA}")
    e(f"v_add_u32 v{vXA}, s{rows[0]}, v{vXA}")
    e(f"s_lshr_b32 s{sB0}, s{sGRP}, 1")
    e(f"s_lshl_b32 s{sT1}, s{sRP}, 1")
    e(f"s_add_u32 s{sB0}, s{sB0}, s{sT1}")
    e(f"s_and_b32 s{sB1}, s{sGRP}, 1")
    e(f"s_and_b32 s{sT3}, s{sCG}, 1")
    e(f"v_and_b32 v{vT0}, 1, v{vG}")
    e(f"v_lshlrev_b32 v{vT0}, 9, v{vT0}")
    e(f"v_lshrrev_b32 v{vT1}, 1, v{vG}")
    e(f"v_lshl_add_u32 v{vT0}, v{vT1}, 3, v{vT0}")
    e(f"v_lshl_add_u32 v{vSA}, v{vI}, 4, v{vT0}")
    e(f"s_lshl_b32 s{sSO}, s{sB1}, 8")
    e(f"s_lshl_b32 s{sT0}, s{sB0}, 10")
    e(f"s_add_u32 s{sSO}, s{sSO}, s{sT0}")
    e(f"s_lshl_b32 s{sT0}, s{sT3}, 16")
    assert VF == 0x10000
    e(f"s_add_u32 s{sSO}, s{sSO}, s{sT0}")
    layernorm_rows(e, 4, X, T, 136, rows, 5)
    e("s_waitcnt vmcnt(1)")
    lds_signal(e, C_KVX, vT0)
    st.mark()
    Lnokv = e.label("nokv")
    e(f"s_cmp_lg_u32 s{sF}, 0")
    e(f"s_cbranch_scc1 {Lnokv}")
    lds_wait(e, C_KVX, 4, vT0, sleep=0)
    FRG = 96
    def kvreads(kk):
        b = FRG + 8*(kk % 4)
        e(f"ds_read_b64_tr_b16 {vr(b,2)}, v{vWA} offset:{kk*1024}")
        e(f"ds_read_b64_tr_b16 {vr(b+2,2)}, v{vWA} offset:{kk*1024+128}")
        e(f"ds_read_b128 {vr(b+4,4)}, v{vXA} offset:{kk*4*XS2}")
    def kvchain(isv):
        for kk in range(16):
            e(f"s_waitcnt lgkmcnt({3*min(3, 15-kk)})")
            b = FRG + 8*(kk % 4)
            c = "0" if kk == 0 else vr(ACC,4)
            if isv: e(f"{M16} {vr(ACC,4)}, {vr(b+4,4)}, {vr(b,4)}, {c}")
            else:   e(f"{M16} {vr(ACC,4)}, {vr(b,4)}, {vr(b+4,4)}, {c}")
            if kk + 4 < 16: kvreads(kk + 4)
    Lv, Lkvs = e.label("kvv"), e.label("kvs")
    for kk in range(4): kvreads(kk)
    e(f"s_bitcmp1_b32 s{sCG}, 0")
    e(f"s_cbranch_scc1 {Lv}")
    kvchain(False)
    e(f"s_branch {Lkvs}")
    e(f"{Lv}:")
    kvchain(True)
    e(f"{Lkvs}:")
    e("s_nop 7")
    e(f"v_cvt_pk_bf16_f32 v{ACC}, v{ACC}, v{ACC+1}")
    e(f"v_cvt_pk_bf16_f32 v{ACC+1}, v{ACC+2}, v{ACC+3}")
    e(f"buffer_store_dwordx2 {vr(ACC,2)}, v{vSA}, {sr(sWS,4)}, s{sSO} offen sc1")
    if WQAT == "s" or len(WQAT) == 3: lds_signal(e, C_KVS, vT0)
    st.mark()
    assert ACC + 12 == 28
    e(f"v_dot2_f32_bf16 v30, v{ACC}, v{ACC}, 0")
    e(f"v_dot2_f32_bf16 v30, v{ACC+1}, v{ACC+1}, v30")
    e(f"s_lshl_b32 s{sT0}, s{sB0}, 2")
    e(f"s_lshl_b32 s{sT1}, s{sB1}, 1")
    e(f"s_add_u32 s{sT0}, s{sT0}, s{sT1}")
    e(f"s_add_u32 s{sT0}, s{sT0}, s{sT3}")
    e(f"s_lshl_b32 s{sT0}, s{sT0}, 7")
    e(f"s_add_u32 s{sT0}, s{sT0}, {KVFL}")
    swap_op(e, "v_add_f32", 16, 30, ACC+3)
    swap_op(e, "v_add_f32", 32, 30, ACC+3)
    dpp_max16(e, 30)
    e(f"s_sub_u32 s{sT1}, s{sT3}, 1")
    e(f"v_and_b32 v30, s{sT1}, v30")
    e(f"v_mov_b32 v{vT1}, 0")
    e("s_waitcnt vmcnt(1)")
    e(f"v_add_co_u32 v28, vcc, 1, v28")
    e("s_nop 1")
    e(f"v_addc_co_u32 v29, vcc, 0, v29, vcc")
    e(f"v_mov_b32 v31, v28")
    e("s_mov_b64 exec, 1")
    e("s_waitcnt vmcnt(0)")
    e(f"buffer_store_dwordx4 v[28:31], v{vT1}, {sr(sWS,4)}, s{sT0} offen sc1")
    e("s_mov_b64 exec, -1")
    e(f"ds_write_b64 v{vCT}, v[28:29] offset:{C_NON}")
    lds_signal(e, C_KVF, vT0)
    st.mark()
    Lkvj = e.label("kvj")
    e(f"s_branch {Lkvj}")
    e(f"{Lnokv}:")
    if not st.off: st.n -= 2
    st.mark(); st.mark()
    e(f"{Lkvj}:")
    st.mark()
    def filler():
        e(f"s_lshl_b32 s{sT0}, s{sRP}, 3")
        e(f"s_add_u32 s{sT0}, s{sT0}, s{sF}")
        e(f"s_lshl_b32 s{sT0}, s{sT0}, 3")
        e(f"s_add_u32 s{sT0}, s{sT0}, s{sCG}")
        e(f"s_lshl_b32 s{sT0}, s{sT0}, 10")
        e(f"s_add_u32 s{sT0}, s{sT0}, {OF}")
        e(f"s_add_u32 s{sT1}, s{sT0}, 32768")
        e(f"v_mov_b64 {vr(BF+60,2)}, -1")
        e(f"v_mov_b64 {vr(BF+62,2)}, -1")
        e(f"buffer_store_dwordx4 {vr(BF+60,4)}, v{vL16}, {sr(sWS,4)}, s{sT0} offen sc1")
        e(f"buffer_store_dwordx4 {vr(BF+60,4)}, v{vL16}, {sr(sWS,4)}, s{sT1} offen sc1")
        if FAST:
            Lf = e.label("nf2")
            e(f"s_cmp_lg_u32 s{sF}, 3")
            e(f"s_cbranch_scc1 {Lf}")
            e(f"s_add_u32 s{sT0}, s{sT0}, {OF2 - OF}")
            e(f"s_add_u32 s{sT1}, s{sT1}, {OF2 - OF}")
            e(f"buffer_store_dwordx4 {vr(BF+60,4)}, v{vL16}, {sr(sWS,4)}, s{sT0} offen sc1")
            e(f"buffer_store_dwordx4 {vr(BF+60,4)}, v{vL16}, {sr(sWS,4)}, s{sT1} offen sc1")
            e(f"{Lf}:")
    if not FILLATE: filler()
    e(f"s_and_b32 s{sT0}, s{sF}, 1")
    e(f"s_mul_i32 s{sT0}, s{sT0}, {XRT}")
    e(f"v_and_b32 v{vXB}, 31, v{vL}")
    e(f"v_lshlrev_b32 v{vXB}, 4, v{vXB}")
    e(f"v_mul_u32_u24 v{vT0}, {XS2}, v{vHH}")
    e(f"v_add_u32 v{vXB}, v{vXB}, v{vT0}")
    e(f"v_add_u32 v{vT2}, s{sT0}, v{vXB}")
    e(f"s_lshr_b32 s{sT1}, s{sF}, 1")
    e(f"s_lshl_b32 s{sT1}, s{sT1}, 6")
    e(f"v_lshl_add_u32 v{vTA0}, v{vHH}, 10, v{vTRC}")
    e(f"v_xor_b32 v{vTA0}, s{sT1}, v{vTA0}")
    e(f"v_add_u32 v{vTA0}, {L_WQ}, v{vTA0}")
    NS = 5
    if len(WQAT) == 3:
        Lgo = e.label("wqgo")
        for f in range(1, 4):
            if WQAT[f-1] == "l":
                e(f"s_cmp_eq_u32 s{sF}, {f}")
                e(f"s_cbranch_scc1 {Lgo}")
        lds_wait(e, C_KVS, 1, vT0, sleep=1)
        for f in range(1, 4):
            if WQAT[f-1] == "s":
                e(f"s_cmp_eq_u32 s{sF}, {f}")
                e(f"s_cbranch_scc1 {Lgo}")
        lds_wait(e, C_KVF, 1, vT0, sleep=1)
        e(f"{Lgo}:")
    elif WQAT != "l": lds_wait(e, *((C_KVS, 1) if WQAT == "s" else (C_KVF, 1)), vT0, sleep=1)
    stage_w512(e, 6, L_WQ, sF, 4, sT1)
    e("s_waitcnt vmcnt(0)")
    lds_signal(e, C_WQ, vT0)
    lds_wait(e, C_WQ, 4, vT0, sleep=1)
    lds_wait(e, C_XN, 8, vT0, sleep=1)
    if QFIRST:
        Lq = e.label("qa")
        e(f"s_cmp_lt_u32 s{sF}, 2")
        e(f"s_cbranch_scc1 {Lq}")
        lds_wait(e, C_QW, 2, vT0, sleep=2)
        e(f"{Lq}:")
    st.mark()
    def qreads(ks):
        b = BF + 8*(ks % NS)
        e(f"ds_read_b64_tr_b16 {vr(b,2)}, v{vTA0} offset:{ks*2048}")
        e(f"ds_read_b64_tr_b16 {vr(b+2,2)}, v{vTA0} offset:{ks*2048+512}")
        e(f"ds_read_b128 {vr(b+4,4)}, v{vT2} offset:{ks*XS1}")
    for ks in range(NS): qreads(ks)
    for ks in range(32):
        e(f"s_waitcnt lgkmcnt({3*min(NS-1, 31-ks)})")
        b = BF + 8*(ks % NS)
        e(f"{MFMA} {vr(ACC,16)}, {vr(b,4)}, {vr(b+4,4)}, {'0' if ks == 0 else vr(ACC,16)}")
        if ks + NS < 32: qreads(ks + NS)
    e(f"s_and_b32 s{sT0}, s{sF}, 1")
    e(f"s_lshl_b32 s{sT0}, s{sT0}, 10")
    e(f"s_lshr_b32 s{sT1}, s{sF}, 1")
    e(f"s_lshl_b32 s{sT1}, s{sT1}, 12")
    e(f"s_add_u32 s{sT0}, s{sT0}, s{sT1}")
    e(f"s_add_u32 s{sT0}, s{sT0}, {L_Q}")
    e(f"v_add_u32 v{vT0}, s{sT0}, v{vL16}")
    e(f"s_mov_b32 s{sLN}, {f32bits(QSCALE):#x}")
    e("s_nop 3")
    for i in range(0, 16, 2):
        e(f"v_pk_mul_f32 {vr(ACC+i,2)}, {vr(ACC+i,2)}, {sr(sLN,2)} op_sel_hi:[1,0]")
    for i in range(8):
        e(f"v_cvt_pk_bf16_f32 v{ACC+i}, v{ACC+2*i}, v{ACC+2*i+1}")
    e(f"ds_write_b128 v{vT0}, {vr(ACC,4)}")
    e(f"ds_write_b128 v{vT0}, {vr(ACC+4,4)} offset:2048")
    lds_signal(e, C_QW, vT0)
    if OPT.get("qst2"): st.mark()
    if FILLATE: filler()
    e(f"s_setprio {FPRIO}")
    for h in range(2):
        e(f"v_dot2_f32_bf16 v{ACC+8+h}, v{ACC+4*h}, v{ACC+4*h}, 0")
    for i in range(1, 4):
        for h in range(2):
            e(f"v_dot2_f32_bf16 v{ACC+8+h}, v{ACC+4*h+i}, v{ACC+4*h+i}, v{ACC+8+h}")
    for i in range(4):
        e(f"v_mov_b32 v{ACC+12+i}, 0")
    e(f"v_permlane32_swap_b32 v{ACC+8}, v{ACC+9}")
    e(f"s_lshl_b32 s{sT0}, s{sF}, 10")
    e(f"v_add_f32 v{ACC+8}, v{ACC+8}, v{ACC+9}")
    e(f"s_add_u32 s{sT0}, s{sT0}, {L_L}")
    dpp_max16(e, ACC+8)
    e(f"v_add_u32 v{vT1}, s{sT0}, v{vL16}")
    e(f"s_mov_b32 exec_lo, 0x00010001")
    e(f"s_mov_b32 exec_hi, 0x00010001")
    e(f"ds_max_u32 v{vCT}, v{ACC+8} offset:{C_QMAX}")
    e("s_mov_b64 exec, -1")
    lds_wait(e, C_QW, 4, vT0)
    e(f"ds_write_b128 v{vT1}, {vr(ACC+12,4)}")
    e("s_waitcnt vmcnt(0)")
    lds_signal(e, C_Z, vT0)
    if not OPT.get("qst2"): st.mark()
    e(f"s_setprio {FPRIO}")
    e("s_branch L_g1")
    emit_attention()
    e("L_g1:")
    if OPT.get("pure"):
        for i in range(8): st.mark()
        st.mark(True)
        st.flush(sW, sWS, vT0, vT1, 12)
        e("s_endpgm")
    abl_start = len(e.lines)
    set_srd(e, sWA, 16, 512*1792*2)
    F_ID, F_D = 144, 148
    sPQ, sRT2, sP1 = 88, 94, 55
    e(f"s_mov_b32 s{sPQ}, s{sF}")
    make_identity(e, F_ID, vT0, vT1)
    lds_wait(e, C_KVL, max(1, int(OPT.get("gate", 8))), vT0, sleep=4)
    fetch_nonce(e, AF)
    st.mark()
    if PF1:
        e(f"s_lshr_b32 s{sT0}, s2, 3")
        e(f"s_mul_i32 s{sT0}, s{sT0}, {448*128}")
        e(f"s_lshl_b32 s{sT1}, s{sF}, 14")
        e(f"s_add_u32 s{sT0}, s{sT0}, s{sT1}")
        e(f"s_add_u32 s{sT1}, s{sT0}, 8192")
        e(f"buffer_load_dword v{vPF}, v{vTA1}, {sr(sWA,4)}, s{sT0} offen sc1")
        e(f"buffer_load_dword v{vPF}, v{vTA1}, {sr(sWA,4)}, s{sT1} offen sc1")
    vPO, sP2, sPO_ = BF + 16, 54, 89
    sW2, sWO = 44, 8
    set_srd(e, sW2, 18, 512*1792*2)
    set_srd(e, sWO, 12, 512*512*2)
    def prefetch(i):
        if i < 2:
            e(f"buffer_load_dword v{vPF}, v{vPO}, {sr(sW2,4)}, s{sP2} offen sc1")
            e(f"s_add_u32 s{sP2}, s{sP2}, 8192")
        else:
            e("s_mov_b32 exec_hi, 0")
            e(f"buffer_load_dword v{vPF}, v{vPO}, {sr(sWO,4)}, s{sPO_} offen sc1")
            e("s_mov_b64 exec, -1")
    PFL = [0, 1, 2] if PF2 else [2]
    e(f"v_lshlrev_b32 v{vPO}, 7, v{vL}")
    e(f"s_lshr_b32 s{sT0}, s2, 3")
    e(f"s_mul_i32 s{sP2}, s{sT0}, {448*128}")
    e(f"s_lshl_b32 s{sT1}, s{sF}, 14")
    e(f"s_add_u32 s{sP2}, s{sP2}, s{sT1}")
    e(f"s_lshl_b32 s{sPO_}, s{sT0}, 14")
    e(f"s_lshl_b32 s{sT1}, s{sF}, 12")
    e(f"s_add_u32 s{sPO_}, s{sPO_}, s{sT1}")
    D, DB = 6, 6
    sJ, sR, sSB, sSG = 84, 85, 86, 87
    GP = OPT.get("gp", "11")
    e(f"s_lshr_b32 s{sR}, s2, 6" if ROT else f"s_mov_b32 s{sR}, 0")
    e(f"s_lshl_b32 s{sJ}, s{sCG}, 2")
    e(f"s_add_u32 s{sJ}, s{sJ}, s{sF}")
    e(f"s_mul_i32 s{sSB}, s{sF}, {448*1024}")
    e(f"s_lshl_b32 s{sT0}, s{sCG}, 7")
    e(f"s_add_u32 s{sSB}, s{sSB}, s{sT0}")
    def seg_off(dst, sidx, per_seg, base):
        return [f"s_add_u32 s{sSG}, s{sR}, {sidx}", f"s_and_b32 s{sSG}, s{sSG}, 3", f"s_mul_i32 s{sSG}, s{sSG}, {per_seg}", f"s_add_u32 s{dst}, s{sSG}, s{base}"]
    def dma_l(u):
        if u < 32:
            adv = [f"s_add_u32 s{sSO}, s{sSO}, {16*3584}"] if u else [f"s_lshl_b32 s{sSO}, s{sJ}, 7"]
            va, vb, srd_ = vD1A, vD1B, sWA
        else:
            g = u - 32
            adv = seg_off(sSO, g // 7, 7*16384, sSB) if g % 7 == 0 else [f"s_add_u32 s{sSO}, s{sSO}, 16384"]
            va, vb, srd_ = vDA, vDB, sW2
        return [[f"s_add_u32 m0, s{sRING}, {2048*(u % D)}"] + adv + [f"buffer_load_dwordx4 v{va}, {sr(srd_,4)}, s{sSO} offen lds"],
                [f"buffer_load_dwordx4 v{vb}, {sr(srd_,4)}, s{sSO} offen offset:1024 lds"]]
    def dma(u):
        for grp in dma_l(u):
            for l in grp: e(l)
    def areads_l(u):
        b = AF + 8*(u & 1)
        o = 2048*(u % D)
        second = 512 if u < 32 else 1024
        return [f"ds_read_b64_tr_b16 {vr(b,2)}, v{vTA0} offset:{o}", f"ds_read_b64_tr_b16 {vr(b+2,2)}, v{vTA0} offset:{o+second}",
                f"ds_read_b64_tr_b16 {vr(b+4,2)}, v{vTA1} offset:{o}", f"ds_read_b64_tr_b16 {vr(b+6,2)}, v{vTA1} offset:{o+second}"]
    def mfma_l(u, bb0):
        a = AF + 8*(u & 1)
        out = []
        for (i, j) in ((0, 0), (0, 1), (1, 1), (1, 0)):
            d = ACC + 16*(2*i+j)
            out.append(f"{MFMA} {vr(d,16)}, {vr(a+4*i,4)}, {vr(bb0+4*j,4)}, {'0' if u in (0, 32) else vr(d,16)}")
        return out
    def weave(ms, fill):
        for i in range(4):
            e(ms[i])
            for l in fill[i]: e(l)
    def try_pub(p):
        e(f"s_setprio {FPRIO}")
        e(f"s_call_b64 {sr(sRT2,2)}, L_ftry")
        e(f"s_setprio {p}")
    log = []
    def wait_for(items):
        last = max(i for i, it in enumerate(log) if it in items) if any(it in items for it in log) else -1
        return f"s_waitcnt vmcnt({len(log) - 1 - last})"
    Lskip1, Lg1d = e.label("g1skip"), e.label("g1d")
    e(f"s_cmp_eq_u32 s{sCG}, 7")
    e(f"s_cbranch_scc1 {Lskip1}")
    for u in range(D):
        dma(u); log += [("A", u)]*2
    e(f"v_lshl_add_u32 v{vTA0}, v{vHH}, 10, v{vTRC}")
    e(f"v_add_u32 v{vTA0}, s{sRING}, v{vTA0}")
    e(f"v_xor_b32 v{vTA1}, 64, v{vTA0}")
    e(f"v_add_u32 v0, {XRT}, v{vXB}")
    def xreads_l(k):
        b = BF + 8*(k & 1)
        return [f"ds_read_b128 {vr(b,4)}, v{vXB} offset:{k*XS1}", f"ds_read_b128 {vr(b+4,4)}, v0 offset:{k*XS1}"]
    TRY1 = [int(x) for x in OPT.get("try1", "99").split("+")]
    e(f"s_setprio {GP[0]}")
    gm()
    e(wait_for([("A", 0)]))
    for l in areads_l(0) + xreads_l(0): e(l)
    for k in range(32):
        if k % 4 == 0: gm()
        if k in TRY1: try_pub(GP[0])
        e("s_waitcnt lgkmcnt(0)")
        fill = [[], [], [], []]
        if k + 1 < 32:
            r = areads_l(k + 1)
            fill[0] = xreads_l(k + 1) + [wait_for([("A", k + 1)])] + r[0:2]
            fill[1] = r[2:4]
        if CONT or k + D < 32:
            fill[2], fill[3] = dma_l(k + D); log += [("A", k + D)]*2
        weave(mfma_l(k, BF + 8*(k & 1)), fill)
        if k in (4, 11, 18) and (k - 4) // 7 in PFL:
            prefetch((k - 4) // 7); log.append(("P", k))
    e(f"s_setprio {FPRIO}")
    e(f"s_mul_i32 s{sT0}, s{sRP}, {2*112*1024}")
    e(f"s_lshl_b32 s{sT1}, s{sJ}, 12")
    e(f"s_add_u32 s{sT0}, s{sT0}, s{sT1}")
    e(f"s_add_u32 s{sT0}, s{sT0}, {HF}")
    e(f"s_add_u32 s{sT1}, s{sT0}, {112*1024}")
    gm()
    e("s_nop 6")
    for (a, bb) in ((0, 0), (0, 1), (1, 1), (1, 0)):
        d = ACC + 16*(2*a+bb)
        for i in range(8):
            e(f"v_cvt_pk_bf16_f32 v{d+i}, v{d+2*i}, v{d+2*i+1}")
        for i in range(8):
            e(f"v_pk_max_i16 v{d+i}, v{d+i}, 0")
        for half in range(2):
            e(f"buffer_store_dwordx4 {vr(d+4*half,4)}, v{vL16}, {sr(sWS,4)}, s{sT1 if bb else sT0} offen offset:{(2*a+half)*1024} sc1")
    gm()
    e(f"s_branch {Lg1d}")
    e(f"{Lskip1}:")
    for i in PFL: prefetch(i)
    if CONT:
        for u in range(32, 32 + D): dma(u)
    e(f"{Lg1d}:")
    e(f"s_lshl_b32 s{sT0}, s{sRP}, 5")
    e(f"s_add_u32 s{sT0}, s{sT0}, s{sJ}")
    e(f"s_lshl_b32 s{sT0}, s{sT0}, 7")
    e(f"s_add_u32 s{sT0}, s{sT0}, {HFL}")
    flag_set(e, AF, sT0)
    lds_signal(e, C_G1, vT0)
    gm()
    st.mark()
    if OPT.get("tb", "1") == "1": e(f"s_call_b64 {sr(sRT2,2)}, L_ftry")
    if not CONT:
        for u in range(32, 32 + D): dma(u)
    lds_wait(e, C_G1, 4, vT0, sleep=2)
    WOL = int(OPT.get("wol", 0))
    if not WOL: stage_w512(e, None, L_XN, sF, 4, sB0, srd_=sWO)
    Lc7 = e.label("c7")
    e(f"s_cmp_lg_u32 s{sCG}, 7")
    e(f"s_cbranch_scc1 {Lc7}")
    e(f"s_cmp_ge_u32 s{sPQ}, 4")
    e(f"s_cbranch_scc1 {Lc7}")
    e(f"s_call_b64 {sr(sRT2,2)}, L_fpub")
    e(f"{Lc7}:")
    if OPT.get("tb", "1") == "2": e(f"s_call_b64 {sr(sRT2,2)}, L_ftry")
    e(f"s_lshr_b32 s{sT1}, s{sF}, 1")
    e(f"s_lshl_b32 s{sT1}, s{sT1}, 6")
    e(f"v_lshl_add_u32 v{vTA0}, v{vHH}, 9, v{vTRC}")
    e(f"v_xor_b32 v{vXB}, s{sT1}, v{vTA0}")
    e(f"v_add_u32 v{vTA0}, s{sRING}, v{vXB}")
    e(f"v_xor_b32 v{vTA1}, 64, v{vTA0}")
    sHB, sHD = 89, 84
    e(f"s_mul_i32 s{sHB}, s{sRP}, {2*112*1024}")
    e(f"s_mul_i32 s{sT1}, s{sF}, {28*1024}")
    e(f"s_add_u32 s{sHB}, s{sHB}, s{sT1}")
    e(f"s_add_u32 s{sHB}, s{sHB}, {HF}")
    e(f"s_bitcmp1_b32 s{sF}, 0")
    e(f"s_cselect_b32 s{sT0}, {112*1024}, 0")
    e(f"s_add_u32 s{sHB}, s{sHB}, s{sT0}")
    e(f"s_lshl_b32 s{sT0}, s{sT0}, 1")
    e(f"s_sub_u32 s{sHD}, {112*1024}, s{sT0}")
    e(f"s_mul_i32 s{sT1}, s{sF}, 7")
    e(f"s_add_u32 s{sT0}, s{sF}, 28")
    e(f"v_add_u32 v{vT0}, s{sT1}, v{vL}")
    e(f"v_mov_b32 v{vT1}, s{sT0}")
    e(f"v_cmp_gt_u32 vcc, 7, v{vL}")
    e(f"s_lshl_b32 s{sT0}, s{sRP}, 12")
    e(f"s_add_u32 s{sT0}, s{sT0}, {HFL}")
    e(f"v_cndmask_b32 v{vT0}, v{vT1}, v{vT0}, vcc")
    e(f"v_lshlrev_b32 v{vT0}, 7, v{vT0}")
    flag_poll(e, AF + 8, vT0, sT0, sleep=int(OPT.get("hsleep", 8)))
    st.mark()
    def bload_l(g):
        out = []
        j = g % 7
        if j == 0:
            out += seg_off(sB0, g // 7, 7*1024, sHB) + [f"s_add_u32 s{sB1}, s{sB0}, s{sHD}"]
        elif j == 4:
            out += [f"s_add_u32 s{sB0}, s{sB0}, 4096", f"s_add_u32 s{sB1}, s{sB1}, 4096"]
        b = BF + 8*(g % DB)
        return out + [f"buffer_load_dwordx4 {vr(b,4)}, v{vL16}, {sr(sWS,4)}, s{sB0} offen offset:{(j%4)*1024} sc1",
                      f"buffer_load_dwordx4 {vr(b+4,4)}, v{vL16}, {sr(sWS,4)}, s{sB1} offen offset:{(j%4)*1024} sc1"]
    log.clear()
    for g in range(DB):
        for l in bload_l(g): e(l)
        log += [("B", g)]*2
    lds_signal(e, C_HP, vT0)
    TRY = [int(x) for x in OPT.get("try", "0+6+12+18+24").split("+")]
    for l in areads_l(32): e(l)
    for g in range(28):
        u = 32 + g
        if g in TRY: try_pub(GP[1])
        e(wait_for([("B", g)]) + " lgkmcnt(0)")
        fill = [[], [], [], []]
        if g + 1 < 28:
            fill[0] = [wait_for([("A", u + 1)])] + areads_l(u + 1)
        if g + D < 28:
            fill[1], fill[2] = dma_l(u + D); log += [("A", u + D)]*2
        if g + DB < 28:
            fill[3] = bload_l(g + DB); log += [("B", g + DB)]*2
        if WOL and g >= 22:
            def wopair(i):
                pre = [f"s_lshl_b32 s{sSO}, s{sF}, 17", f"s_lshl_b32 s{sSG}, s{sCG}, 7", f"s_add_u32 s{sSO}, s{sSO}, s{sSG}", f"s_lshl_b32 s{sSG}, s{sF}, 14"] if i == 0 else []
                return pre + [f"s_add_u32 m0, s{sSG}, {L_XN + 2048*i}", (f"s_add_u32 s{sSO}, s{sSO}, 16384" if i else "s_nop 0"),
                              f"buffer_load_dwordx4 v{vDA}, {sr(sWO,4)}, s{sSO} offen lds",
                              f"buffer_load_dwordx4 v{vDB}, {sr(sWO,4)}, s{sSO} offen offset:1024 lds"]
            if g < 26:
                fill[1] = wopair(2*(g-22)); fill[3] = wopair(2*(g-22)+1); log += [("W", g)]*4
        weave(mfma_l(u, BF + 8*(g % DB)), fill)
    if GP: e(f"s_setprio {FPRIO}")
    st.off = GS
    st.mark()
    if ABL:
        keep = []
        for l in e.lines[abl_start:]:
            t = l.strip()
            if "m" in ABL and t.startswith("v_mfma"): continue
            if "g" in ABL and t.startswith("buffer_load_dwordx4"): continue
            if "l" in ABL and (t.startswith("ds_read_b64_tr") or t.startswith("ds_read_b128")): continue
            if "v" in ABL and (t.startswith("v_cvt_pk") or t.startswith("v_pk_max") or t.startswith("buffer_store_dwordx4")): continue
            keep.append(l)
        e.lines[abl_start:] = keep
    XR, G = AF, ACC
    vXO = vD1A
    e(f"s_lshr_b32 s{sT0}, s{sF}, 1")
    e(f"s_lshl_b32 s{sT1}, s{sCG}, 1")
    e(f"s_add_u32 s{sT0}, s{sT0}, s{sT1}")
    e(f"s_lshl_b32 s{sSO}, s{sT0}, 6")
    e(f"s_and_b32 s{sT0}, s{sF}, 1")
    e(f"s_lshl_b32 s{sT1}, s{sRP}, 1")
    e(f"s_add_u32 s{sB1}, s{sT0}, s{sT1}")
    e(f"s_lshl_b32 s{sB0}, s{sB1}, 15")
    e(f"s_add_u32 s{sSO}, s{sSO}, s{sB0}")
    e(f"s_add_u32 s{sB0}, s{sB0}, {OF}")
    e(f"v_add_u32 v{vT0}, s{sRING}, v{vL16}")
    for l in (1, 3, 2):
        for i in range(4):
            e(f"ds_write_b128 v{vT0}, {vr(ACC+16*l+4*i,4)} offset:{4096*(l-1)+1024*i}")
    lds_signal(e, C_RED, vT2)
    if WOL:
        e("s_waitcnt vmcnt(0)")
        lds_signal(e, C_WO, vT2)
    tm()
    LOWP = OPT.get("lowp", "0")
    Lp2, Lp3 = e.label("p2"), e.label("p3")
    e(f"{Lp2}:")
    e(f"s_cmp_ge_u32 s{sPQ}, 7")
    e(f"s_cbranch_scc1 {Lp3}")
    e(f"s_call_b64 {sr(sRT2,2)}, L_fpub")
    e(f"s_branch {Lp2}")
    e(f"{Lp3}:")
    R1 = [96 + 4*n for n in range(16)]
    R2 = [64, 68, 72, 76, 88, 92, 160, 164]
    R3 = R1[:8]
    vFO, vCA, vWO = vD1B, vTA0, vXB
    def oloads(R, first):
        e(f"s_add_u32 s{sT0}, s{sB0}, {first*1024}")
        for n, r in enumerate(R):
            if n % 4 == 0 and n: e(f"s_add_u32 s{sT0}, s{sT0}, 4096")
            e(f"buffer_load_dwordx4 {vr(r,4)}, v{vL16}, {sr(sWS,4)}, s{sT0} offen offset:{(n%4)*1024} sc1")
    def peek(n, first, sleep):
        L, D = e.label("pk"), e.label("pkd")
        e(f"v_min_u32 v{vFO}, {n-1}, v{vL}")
        e(f"v_lshlrev_b32 v{vFO}, 10, v{vFO}")
        e(f"s_add_u32 s{sT1}, s{sB0}, {first*1024}")
        e(f"s_mov_b32 s{sSP}, {SPIN_MAX}")
        e(f"{L}:")
        e(f"buffer_load_dword v{vT1}, v{vFO}, {sr(sWS,4)}, s{sT1} offen sc1")
        e(f"s_sub_u32 s{sSP}, s{sSP}, 1")
        e("s_waitcnt vmcnt(0)")
        e(f"v_cmp_eq_u32 vcc, -1, v{vT1}")
        e(f"s_cbranch_vccz {D}")
        e(f"s_sleep {sleep}")
        e(f"s_cbranch_scc0 {L}")
        e(f"{D}:")
    def verify(R, first, younger):
        L, D = e.label("vf"), e.label("vfd")
        e(f"s_mov_b32 s{sSP}, {SPIN_MAX}")
        e(f"s_waitcnt vmcnt({younger})")
        e(f"{L}:")
        regs = [r + i for r in R for i in range(4 if FULLCHK else 1)]
        e(f"v_max_u32 v{vT1}, v{regs[0]}, v{regs[1]}")
        for i in range(2, len(regs), 2):
            e(f"v_max3_u32 v{vT1}, v{regs[i]}, v{regs[i+1]}, v{vT1}")
        e(f"v_cmp_eq_u32 vcc, -1, v{vT1}")
        e(f"s_cbranch_vccz {D}")
        e("s_sleep 4")
        oloads(R, first)
        e("s_waitcnt vmcnt(0)")
        e(f"s_sub_u32 s{sSP}, s{sSP}, 1")
        e(f"s_cbranch_scc0 {L}")
        e(f"{D}:")
    lds_wait(e, C_HP, 4, vT2, sleep=2)
    oloads(R1, 0)
    e(f"v_and_b32 v{vXO}, 31, v{vL}")
    e(f"v_lshlrev_b32 v{vXO}, 10, v{vXO}")
    e(f"v_lshl_add_u32 v{vXO}, v{vHH}, 3, v{vXO}")
    for q in range(4):
        e(f"buffer_load_dwordx2 {vr(XR+2*q,2)}, v{vXO}, {sr(sX,4)}, s{sSO} offen offset:{16*q}")
    RA = 88
    for l in range(1, 4):
        e(f"s_xor_b32 s{sT0}, s{sF}, {l}")
        e(f"s_mul_i32 s{sT0}, s{sT0}, {RINGB}")
        e(f"s_add_u32 s{sT0}, s{sT0}, {L_WQ + 4096*(l-1)}")
        e(f"v_add_u32 v{RA+l}, s{sT0}, v{vL16}")
    if OPT.get("lowat") == "r": e(f"s_setprio {LOWP}")
    tm()
    lds_wait(e, C_RED, 4, vT2, sleep=2)
    tm()
    for l in range(1, 4):
        for i in range(4):
            e(f"ds_read_b128 {vr(ACC+16*l+4*i,4)}, v{RA+l} offset:{1024*i}")
    e("s_waitcnt lgkmcnt(0)")
    tm()
    for i in range(0, 16, 2):
        e(f"v_pk_add_f32 {vr(ACC+i,2)}, {vr(ACC+i,2)}, {vr(ACC+16+i,2)}")
        e(f"v_pk_add_f32 {vr(ACC+32+i,2)}, {vr(ACC+32+i,2)}, {vr(ACC+48+i,2)}")
    for i in range(0, 16, 2):
        e(f"v_pk_add_f32 {vr(ACC+i,2)}, {vr(ACC+i,2)}, {vr(ACC+32+i,2)}")
    SA, AW = 32, 48
    assert L_XN == 0
    e(f"s_and_b32 s{sT0}, s{sF}, 1")
    e(f"s_lshl_b32 s{sT0}, s{sT0}, 9")
    e(f"s_add_u32 s{sT0}, s{sT0}, {L_L + 6*512}")
    e(f"v_mov_b32 v{vCA}, s{sT0}")
    def woread(dst, head):
        e(f"ds_read_b64_tr_b16 {vr(dst,2)}, v{vWO} offset:{head*2048}")
        e(f"ds_read_b64_tr_b16 {vr(dst+2,2)}, v{vWO} offset:{head*2048+1024}")
    seqA = [(i, c) for i in range(4) for c in range(8)]
    RALL = R1 + R2 + R3
    tm()
    oloads(R2, 16)
    if WOL: lds_wait(e, C_WO, 4, vT2, sleep=2)
    for n in range(4): woread(AW + 4*n, 4*seqA[n][1] + seqA[n][0])
    LOWAT = OPT.get("lowat", "s")
    if LOWAT == "s": e(f"s_setprio {LOWP}")
    if LOWAT not in "zy": silu(e, ACC, SA)
    st.mark()
    if LOWAT == "v": e(f"s_setprio {LOWP}")
    verify(R1, 0, 8)
    verify(R2, 16, 0)
    if LOWAT in "my": e(f"s_setprio {LOWP}")
    def mm(n0, n1):
        for n in range(n0, n1):
            e(f"s_waitcnt lgkmcnt({2*min(3, 31-n)})")
            e(f"{MFMA} {vr(SA,16)}, {vr(AW+4*(n%4),4)}, {vr(RALL[n],4)}, {'0' if n == 0 else vr(SA,16)}")
            if n + 4 < 32: woread(AW + 4*(n%4), 4*seqA[n+4][1] + seqA[n+4][0])
    XF = 64
    if FAST:
        sM, sA, sB = sP1, sB1, sRING
        NE = int(OPT.get("ne", 16))
        mm(0, NE)
        e(f"s_mov_b32 s{sM}, 0xff")
        e(f"s_add_u32 s{sA}, s{sB0}, {24*1024 + OF2 - OF}")
        e(f"s_add_u32 s{sB}, s{sA}, 4096")
        def rnd_loads(masked):
            for c in range(8):
                L = e.label("gs")
                if masked:
                    e(f"s_bitcmp1_b32 s{sM}, {c}")
                    e(f"s_cbranch_scc0 {L}")
                e(f"buffer_load_dwordx4 {vr(R3[c],4)}, v{vL16}, {sr(sWS,4)}, s{sA if c < 4 else sB} offen offset:{(c%4)*1024} sc1")
                if masked: e(f"{L}:")
        rnd_loads(False)
        if LOWAT == "n": e(f"s_setprio {LOWP}")
        mm(NE, 24)
        if LOWAT in "zy":
            e(f"s_setprio {LOWP}")
            silu(e, ACC, 128)
        st.mark()
        for q in range(8):
            e(f"v_lshlrev_b32 v{XF+2*q}, 16, v{XR+q}")
            e(f"v_and_b32 v{XF+2*q+1}, 0xffff0000, v{XR+q}")
        tm()
        Lp, Lpd = e.label("gm"), e.label("gmd")
        e(f"s_mov_b32 s{sPQ}, {SPIN_MAX}")
        e("s_waitcnt vmcnt(0)")
        e(f"v_max_u32 v{vT1}, v{R3[0]}, v{R3[0]+1}")
        for i in range(2, 32, 2):
            e(f"v_max3_u32 v{vT1}, v{R3[0]+i}, v{R3[0]+i+1}, v{vT1}")
        e(f"v_cmp_eq_u32 vcc, -1, v{vT1}")
        e(f"s_cbranch_vccz {Lpd}")
        if OPT.get("gall", "8") != "x":
            La = e.label("ga")
            lds_wait(e, OCNT, CNT8, vT1, sleep=2, vaddr=vCA)
            e("s_setprio 3")
            e(f"s_mov_b32 s{sT1}, {int(OPT.get('gall', 8))}")
            e(f"{La}:")
            rnd_loads(False)
            e("s_waitcnt vmcnt(0)")
            e(f"v_max_u32 v{vT1}, v{R3[0]}, v{R3[0]+1}")
            for i in range(2, 32, 2):
                e(f"v_max3_u32 v{vT1}, v{R3[0]+i}, v{R3[0]+i+1}, v{vT1}")
            e(f"v_cmp_eq_u32 vcc, -1, v{vT1}")
            e(f"s_cbranch_vccz {Lpd}")
            e(f"s_sub_u32 s{sT1}, s{sT1}, 1")
            e(f"s_cbranch_scc0 {La}")
        e(f"{Lp}:")
        e("s_waitcnt vmcnt(0)")
        for c in range(8):
            L = e.label("gc")
            e(f"s_bitcmp1_b32 s{sM}, {c}")
            e(f"s_cbranch_scc0 {L}")
            e(f"v_max_u32 v{vT1}, v{R3[c]}, v{R3[c]+1}")
            e(f"v_max3_u32 v{vT1}, v{R3[c]+2}, v{R3[c]+3}, v{vT1}")
            e(f"v_cmp_eq_u32 vcc, -1, v{vT1}")
            e(f"s_cbranch_vccnz {L}")
            e(f"s_bitset0_b32 s{sM}, {c}")
            e(f"{L}:")
        e(f"s_cmp_eq_u32 s{sM}, 0")
        e(f"s_cbranch_scc1 {Lpd}")
        lds_wait(e, OCNT, CNT8, vT1, sleep=2, vaddr=vCA)
        e("s_setprio 3")
        e(f"s_and_b32 s{sT0}, s{sPQ}, 7")
        e(f"s_cmp_eq_u32 s{sT0}, 1")
        e(f"s_cselect_b32 s{sT0}, 0, {OF2 - OF}")
        e(f"s_add_u32 s{sA}, s{sB0}, s{sT0}")
        e(f"s_add_u32 s{sA}, s{sA}, {24*1024}")
        e(f"s_add_u32 s{sB}, s{sA}, 4096")
        rnd_loads(True)
        e(f"s_sub_u32 s{sPQ}, s{sPQ}, 1")
        e(f"s_cbranch_scc0 {Lp}")
        e("s_waitcnt vmcnt(0)")
        e(f"{Lpd}:")
        e("s_setprio 3")
        tm(); tm(); tm()
    else:
        sE = sP1
        vPK = vT2
        Ln1, Ln2, Ln3 = e.label("e1"), e.label("e2"), e.label("e3")
        e(f"ds_read_b32 v{vT1}, v{vCA} offset:{OCNT}")
        e(f"s_mov_b32 s{sE}, 0")
        e(f"s_add_u32 s{sT1}, s{sB0}, {24*1024}")
        e("s_waitcnt lgkmcnt(0)")
        e(f"v_cmp_gt_u32 vcc, {CNT8}, v{vT1}")
        e(f"s_cbranch_vccnz {Ln1}")
        e("s_setprio 3")
        e(f"buffer_load_dword v{vPK}, v{vFO}, {sr(sWS,4)}, s{sT1} offen sc1")
        e(f"s_mov_b32 s{sE}, 1")
        e(f"{Ln1}:")
        NE = int(OPT.get("ne", 12))
        mm(0, NE)
        e(f"s_cmp_eq_u32 s{sE}, 0")
        e(f"s_cbranch_scc1 {Ln2}")
        e(f"s_mov_b32 s{sE}, 0")
        e("s_waitcnt vmcnt(0)")
        e(f"v_cmp_eq_u32 vcc, -1, v{vPK}")
        e(f"s_cbranch_vccnz {Ln2}")
        oloads(R3, 24)
        e(f"s_mov_b32 s{sE}, 1")
        e(f"{Ln2}:")
        mm(NE, 24)
        st.mark()
        XF = 64
        for q in range(8):
            e(f"v_lshlrev_b32 v{XF+2*q}, 16, v{XR+q}")
            e(f"v_and_b32 v{XF+2*q+1}, 0xffff0000, v{XR+q}")
        tm()
        e(f"s_cmp_lg_u32 s{sE}, 0")
        e(f"s_cbranch_scc1 {Ln3}")
        lds_wait(e, OCNT, CNT8, vT1, sleep=2, vaddr=vCA)
        e("s_setprio 3")
        e(f"s_sleep {int(OPT.get('osleep', 4))}")
        peek(8, 24, int(OPT.get('rsleep', 1)))
        oloads(R3, 24)
        e(f"{Ln3}:")
        tm(); tm()
        verify(R3, 24, 0)
        tm()
    mm(24, 32)
    e("s_nop 11")
    for i in range(0, 16, 2):
        e(f"v_pk_fma_f32 {vr(SA+i,2)}, {vr(SA+i,2)}, {vr(G+i,2)}, {vr(XF+i,2)}")
    OST = OPT.get("ost", "").replace("+", " ")
    if OPT.get("o4", "1") == "1":
        for i in range(8):
            e(f"v_cvt_pk_bf16_f32 v{SA+i}, v{SA+2*i}, v{SA+2*i+1}")
        e(f"v_lshl_add_u32 v{vXO}, v{vHH}, 3, v{vXO}")
        e("s_nop 0")
        for p in range(2):
            e(f"v_permlane32_swap_b32 v{SA+4*p}, v{SA+4*p+2}")
            e(f"v_permlane32_swap_b32 v{SA+4*p+1}, v{SA+4*p+3}")
            e(f"buffer_store_dwordx4 {vr(SA+4*p,4)}, v{vXO}, {sr(sOUT,4)}, s{sSO} offen offset:{32*p} {OST}")
    else:
        for q in range(4):
            a = SA + 4*q
            e(f"v_cvt_pk_bf16_f32 v{a}, v{a}, v{a+1}")
            e(f"v_cvt_pk_bf16_f32 v{a+1}, v{a+2}, v{a+3}")
            e(f"buffer_store_dwordx2 {vr(a,2)}, v{vXO}, {sr(sOUT,4)}, s{sSO} offen offset:{16*q} {OST}")
    OB = 96
    Lne = e.label("ne")
    e(f"s_xor_b32 s{sT0}, s{sF}, 3")
    e(f"s_or_b32 s{sT0}, s{sT0}, s2")
    e(f"s_cmp_lg_u32 s{sT0}, 0")
    e(f"s_cbranch_scc1 {Lne}")
    e(f"s_mov_b32 s{sT0}, {EPOCH}")
    flag_set(e, OB, sT0)
    e(f"{Lne}:")
    if DBGT:
        e("s_waitcnt vmcnt(0)")
        dbg_time(e, 2, False, vT0, vT1)
        e(f"v_mov_b32 v{vT0}, s98")
        e(f"v_not_b32 v{vT2}, s98")
        e(f"v_mov_b32 v{vT1}, 0")
        e("s_mov_b64 exec, 1")
        e(f"global_atomic_umax v{vT1}, v{vT2}, s[22:23]")
        e(f"global_atomic_umax v{vT1}, v{vT0}, s[22:23] offset:4")
        e("s_mov_b64 exec, -1")
    if common.STAMP: e("s_waitcnt vmcnt(0)")
    st.off = False
    st.mark(); st.mark(True)
    st.flush(sW, sWS, vT0, vT1, 12)
    e("s_endpgm")
    BUF = [88, 92, 164]
    e("L_ftry:")
    e(f"s_cmp_ge_u32 s{sPQ}, 7")
    e(f"s_cbranch_scc1 L_fret")
    e(f"s_lshl_b32 s{sT0}, s{sPQ}, 9")
    e(f"s_add_u32 s{sT0}, s{sT0}, {L_L}")
    e(f"v_mov_b32 v{vT2}, s{sT0}")
    e(f"ds_read_b32 v{vT1}, v{vT2} offset:{OCNT}")
    e("s_waitcnt lgkmcnt(0)")
    e(f"v_cmp_ne_u32 vcc, {CNT8}, v{vT1}")
    e(f"s_cbranch_vccz L_fgo")
    e("L_fret:")
    e(f"s_setpc_b64 {sr(sRT2,2)}")
    e("L_fpub:")
    e(f"s_lshl_b32 s{sT0}, s{sPQ}, 9")
    e(f"s_add_u32 s{sT0}, s{sT0}, {L_L}")
    e(f"v_mov_b32 v{vT2}, s{sT0}")
    lds_wait(e, OCNT, CNT8, vT1, sleep=4, vaddr=vT2, exact=True)
    e("L_fgo:")
    e(f"s_and_b32 s{sT1}, s{sPQ}, 3")
    e(f"s_lshl_b32 s{sT1}, s{sT1}, 13")
    e(f"s_add_u32 s{sT1}, s{sT1}, {L_OA}")
    e(f"v_add_u32 v{vT0}, s{sT1}, v{vL16}")
    for w in range(3):
        e(f"ds_read_b128 {vr(BUF[w],4)}, v{vT0} offset:{1024*w}")
    e(f"v_and_b32 v{vT1}, 31, v{vL}")
    e(f"v_lshl_add_u32 v{vT1}, v{vT1}, 3, v{vT2}")
    for w in range(8):
        e(f"s_waitcnt lgkmcnt({min(2, 7-w)})")
        e(f"{MFMA} {vr(F_D,16)}, {vr(F_ID,4)}, {vr(BUF[w%3],4)}, {'0' if w == 0 else vr(F_D,16)}")
        if w + 3 < 8: e(f"ds_read_b128 {vr(BUF[w%3],4)}, v{vT0} offset:{1024*(w+3)}")
    e(f"ds_write_b32 v{vT2}, v{vCT} offset:{OMRK}")
    e(f"ds_read_b64 v[4:5], v{vT1}")
    e("s_waitcnt lgkmcnt(0)")
    publish_tail(e, F_D, 4, sPQ)
    e(f"s_add_u32 s{sPQ}, s{sPQ}, 4")
    e(f"s_setpc_b64 {sr(sRT2,2)}")
    attention_slow(e)

def common_setup(e):
    decode_ids(e)
    e(f"v_mov_b32 v{vCT}, {L_C}")
    e(f"s_mov_b32 s{sONES}, 0x3f803f80")
    for d, b, n in ((sX, 4, 2048*512*2), (sWS, 26, WS_BYTES), (sOUT, 22, 2048*512*2)):
        e(f"s_mov_b64 s[{d}:{d+1}], s[{b}:{b+1}]")
        e(f"s_mov_b32 s{d+2}, {n:#x}")
        e(f"s_mov_b32 s{d+3}, 0x20000")

def row_offsets(e, sbase, n):
    for j in range(n):
        r = ROWS[j]
        e(f"s_add_u32 s{r}, s{sbase}, {j}")
        e(f"s_and_b32 s{r}, s{r}, 63")
        e(f"s_lshr_b32 s{sT0}, s{r}, 5")
        e(f"s_mul_i32 s{sT0}, s{sT0}, {XRT - 512}")
        e(f"s_lshl_b32 s{r}, s{r}, 4")
        e(f"s_add_u32 s{r}, s{r}, s{sT0}")

def gen(e, name):
    kernel_begin(e, name)
    stA, stF = Stamps(e, 0), Stamps(e, 0)
    e("s_load_dwordx16 s[4:19], s[0:1], 0")
    e("s_load_dwordx8 s[20:27], s[0:1], 56")
    PFTOP = int(OPT.get("pftop", 0))
    if PFTOP:
        e("L_pf:")
        e("s_getpc_b64 s[44:45]")
        e(f"s_and_b32 s{sT0}, s2, 0xf8")
        e(f"v_add_lshl_u32 v{vT1}, v0, s{sT0}, 7")
        e(f"v_cmp_gt_u32 vcc, 8, v0")
        e(f"v_min_u32 v{vT1}, CODE_BYTES, v{vT1}")
        e(f"s_and_saveexec_b64 s[46:47], vcc")
        e("s_cbranch_execz L_pfd")
        e(f"global_load_dword v11, v{vT1}, s[44:45]")
        e("L_pfd:")
        e("s_mov_b64 exec, -1")
    e(f"v_lshrrev_b32 v{vT0}, 6, v0")
    e(f"s_cmpk_ge_u32 s2, 256")
    e(f"v_readfirstlane_b32 s{sW}, v{vT0}")
    e(f"s_cbranch_scc1 L_end")
    if common.STAMP:
        e("s_memrealtime s[98:99]")
        e("s_memtime s[96:97]")
        stA.n = stF.n = 2
    e(f"s_and_b32 s{sT1}, s2, 7")
    e(f"s_lshl_b32 s{sT1}, s{sT1}, 8")
    e(f"s_and_b32 s{sT2}, s2, 0xf0")
    e(f"v_and_b32 v{vL}, 63, v0")
    e(f"s_cmp_lt_u32 s{sW}, 8")
    e(f"v_lshlrev_b32 v{vL16}, 4, v{vL}")
    e(f"s_cbranch_scc1 L_a0")
    e("s_setprio 3")
    e(f"s_sub_u32 s{sF}, s{sW}, 8")
    e(f"s_add_u32 s{sT1}, s{sT1}, s{sT2}")
    e(f"s_lshl_b32 s{sT1}, s{sT1}, 10")
    e(f"s_lshl_b32 s{sT3}, s{sF}, 12")
    e(f"s_add_u32 s{sT1}, s{sT1}, s{sT3}")
    e(f"v_add_u32 v{vT1}, s{sT1}, v{vL16}")
    e(f"v_add_u32 v{vT2}, s{sT3}, v{vL16}")
    e(f"s_add_u32 m0, s{sT3}, {L_R}")
    e(f"s_bitcmp1_b32 s2, 3")
    e("s_waitcnt lgkmcnt(0)")
    for j in range(4):
        e(f"global_load_dwordx4 {vr(96+4*j,4)}, v{vT1}, s[4:5] offset:{1024*j}")
    e(f"s_cselect_b64 s[8:9], s[10:11], s[8:9]")
    for j in range(4):
        e(f"global_load_lds_dwordx4 v{vT2}, s[8:9] offset:{1024*j}")
    e(f"v_mov_b32 v{vT1}, {EPOCH}")
    e(f"global_load_dwordx2 v[28:29], v{vT1}, s[26:27]")
    e("s_barrier")
    e("s_branch L_ffn")
    e("L_a0:")
    e(f"s_cmp_lg_u32 s{sW}, 0")
    e(f"s_cbranch_scc1 L_nopf")
    if not PFTOP:
        e("s_getpc_b64 s[44:45]")
        e(f"s_lshr_b32 s{sT0}, s2, 3")
        e(f"s_lshl_b32 s{sT0}, s{sT0}, 10")
        e(f"v_lshl_add_u32 v{vT1}, v0, 7, s{sT0}")
        e(f"v_min_u32 v{vT1}, CODE_BYTES, v{vT1}")
        e(f"s_mov_b64 exec, 0xff")
        e(f"global_load_dword v{vT2}, v{vT1}, s[44:45]")
        e("s_mov_b64 exec, -1")
    e(f"v_lshlrev_b32 v{vT0}, 2, v{vL}")
    e(f"v_add_u32 v{vT0}, {L_C}, v{vT0}")
    e(f"v_mov_b32 v{vT1}, 0")
    e(f"ds_write_b32 v{vT0}, v{vT1}")
    e("L_nopf:")
    e(f"s_and_b32 s{sT3}, s2, 0xc0")
    e(f"s_add_u32 s{sT1}, s{sT1}, s{sT3}")
    e(f"s_mul_i32 s{sT3}, s{sW}, 6")
    e(f"s_add_u32 s{sT2}, s{sT2}, s{sT3}")
    e(f"s_add_u32 s{sT2}, s{sT2}, 16")
    for p in range(3):
        e(f"s_add_u32 s{sT3}, s{sT2}, {2*p}")
        e(f"s_and_b32 s{sT3}, s{sT3}, 63")
        e(f"s_add_u32 s{sT3}, s{sT3}, s{sT1}")
        e(f"s_lshl_b32 s{sT3}, s{sT3}, 10")
        e(f"v_add_u32 v{12+p}, s{sT3}, v{vL16}")
    e("s_waitcnt lgkmcnt(0)")
    TL = int(OPT.get("tlbs", 0))
    if TL == 1:
        e("s_load_dword s62, s[6:7], 0x0")
        e("s_load_dword s63, s[26:27], 0x22000")
    e("s_barrier")
    for j in range(6):
        e(f"global_load_dwordx4 {vr(112+4*j,4)}, v{12+j//2}, s[4:5] offset:{1024*(j&1)}")
    if TL == 2:
        e("s_load_dword s62, s[6:7], 0x0")
        e("s_load_dword s63, s[26:27], 0x22000")
    if TL:
        e("s_load_dword s64, s[16:17], 0x0")
        e("s_load_dword s65, s[18:19], 0x0")
        e("s_load_dword s66, s[12:13], 0x0")
        e("s_load_dword s60, s[22:23], 0x0")
    e("s_branch L_attn")
    if OPT.get("alf"): e(f".p2align {OPT.get('alf')}")
    e("L_ffn:")
    ffn_role(e, stF, lambda: attention_role(e, stA))
    e("L_end:")
    e("s_endpgm")
    e("L_code_end:")
    return 168

if __name__ == "__main__":
    if "--stamp" in sys.argv:
        sys.argv.remove("--stamp"); common.STAMP = True
    out = sys.argv[1] if len(sys.argv) > 1 else "cdna_kernels/" + NAME + ".s"
    HDR = open("cdna_kernels/" + NAME + ".s.ref").read().split("; Override")[0]
    e = Asm()
    e('.amdgcn_target "amdgcn-amd-amdhsa--gfx950"')
    e(".text")
    name = NAME + "_kernel"
    nv = gen(e, name)
    hdr = HDR + f"; @launch grid=(256,1,1) block=(768,1,1) lds={LDS_BYTES}\n"
    txt = hdr + e.text() + '.section .rodata,"a"\n' + descriptor(name, nv)
    import subprocess, re as _re
    open("_p1.s", "w").write(txt.replace("CODE_BYTES", "0x12345"))
    subprocess.run(["clang", "-x", "assembler", "-target", "amdgcn-amd-amdhsa", "-mcpu=gfx950", "-c", "_p1.s", "-o", "_p1.o"], check=True)
    sym = subprocess.run(["llvm-readelf", "-s", "_p1.o"], capture_output=True, text=True).stdout
    addr = {l.split()[-1]: int(l.split()[1], 16) for l in sym.splitlines() if l.split() and l.split()[-1].startswith("L_")}
    nbytes = addr["L_code_end"] - addr["L_a0"] - 128
    assert nbytes < 32768 + 2600, nbytes
    open(out, "w").write(txt.replace("CODE_BYTES", hex(nbytes)))
```

```python
import sys
from common import *
import common
import struct
def f32bits(x): return struct.unpack("<I", struct.pack("<f", x))[0]
LOG2E = 1.4426950408889634
QSCALE = 0.25 * LOG2E
BOUND2 = 40.0 * 40.0
M16 = "v_mfma_f32_16x16x32_bf16"

KF   = 0x000000
VF   = 0x010000
KMAX = 0x020000
EPOCH = 0x021000
KVFL = 0x028000
HFL  = 0x040000
OFL  = 0x080000
HF   = 0x100000
OF   = 0x800000
OF2  = 0xA00000
XS2, XS1, XRT = 528, 1056, 33792
L_XN  = 0
L_WQ  = 67584
L_R   = L_WQ + 65536
L_OA  = L_WQ + 49152
L_L   = L_OA + 32768
CNT8, CNT7 = 0x40200000, 0x401c0000
RINGB = 12288
L_Q   = L_R + 20480
L_C   = L_Q + 8192
C_KVX, C_QRDY, C_QMAX, C_REDO, C_ADONE, C_G1, C_RED, C_WO, C_S1, C_S2, C_Z, C_KVD, C_KVL, C_TICK, C_S0, C_XN = [4*i for i in range(16)]
C_QW = 72
C_CHK = 76
C_KVF = 80
C_WQ = 84
C_KVS = 88
C_VOID = 92
C_HP = 96
C_RS = 100
C_NON = 64
assert L_L + 8*512 == L_Q
L_RM  = L_C + 256
L_RT  = L_RM + 1024
LDS_BYTES = L_RT + 256 + 16
assert LDS_BYTES <= 163840
SPIN_MAX = 1 << 18
import os
OPT = dict(kv.split("=") for kv in os.environ.get("FOPT", "").split(",") if kv)
FPRIO = int(OPT.get("fprio", 2))
NOLD = int(OPT.get("nold", 6))
BOOST = int(OPT.get("boost", 1))
KVD_ACK = int(OPT.get("kvdack", 0))
PF1 = int(OPT.get("pf1", 0))
ABL = OPT.get("abl", "")
DBGT = int(OPT.get("dbgt", 0))
def dbg_time(e, idx, inv, va, vb):
    if not DBGT: return
    e("s_memrealtime s[96:97]")
    e("s_waitcnt lgkmcnt(0)")
    if inv: e("s_not_b32 s96, s96")
    e(f"v_mov_b32 v{va}, s96")
    e(f"v_mov_b32 v{vb}, {4*idx}")
    e("s_mov_b64 exec, 1")
    e(f"global_atomic_umax v{vb}, v{va}, s[22:23]")
    e("s_mov_b64 exec, -1")
GROUP = int(OPT.get("group", 2))
PF2 = int(OPT.get("pf2", 1))
QFIRST = int(OPT.get("qfirst", 0))
CSWAP = int(OPT.get("cswap", 1))
JIT = int(OPT.get("jit", 0))
PEEL = int(OPT.get("peel", 1))
FAST = int(OPT.get("fast", 1))
CONT = int(OPT.get("cont", 1))
EARLYP = int(OPT.get("earlyp", 1))
PFQ = int(OPT.get("pfq", 0))
FULLCHK = int(OPT.get("fullchk", 1))
WQLATE = int(OPT.get("wqlate", 1))
PSLEEP = int(OPT.get("psleep", 0))
PWQ = int(OPT.get("pwq", 1))
WQAT = OPT.get("wqat", "f")
LOT = OPT.get("lot", "34567")
TLBW = int(OPT.get("tlbw", 0))
ROT = int(OPT.get("rot", 0))
FILLATE = int(OPT.get("fillate", 1))
XEARLY = int(OPT.get("xearly", 0))
YDELAY = int(OPT.get("ydelay", 2))
SENT = int(OPT.get("sent", 1))

sX, sWS, sWA, sOUT, sDBG = 28, 32, 36, 40, 44
sW, sRP, sCG, sT0, sT1, sT2, sT3, sCNT, sF = 48, 49, 50, 51, 52, 53, 54, 55, 56
sONES = 57
sNON = 58
sMASK = 60
sLN = 62
sMN = [60, 61, 62, 63, 64, 65]
sSP = 3
vL, vL16, vT0, vT1, vT2, vCT = 1, 2, 3, 4, 5, 6
vDA, vDB = 7, 8

def decode_ids(e):
    e(f"s_and_b32 s{sRP}, s2, 7")
    e(f"s_lshl_b32 s{sRP}, s{sRP}, 2")
    e(f"s_lshr_b32 s{sCG}, s2, 6")
    e(f"s_add_u32 s{sRP}, s{sRP}, s{sCG}")
    e(f"s_lshr_b32 s{sCG}, s2, 3")
    e(f"s_and_b32 s{sCG}, s{sCG}, 7")

def lds_signal(e, off, vtmp, val="1"):
    e("s_waitcnt lgkmcnt(0)")
    e(f"v_mov_b32 v{vtmp}, {val}")
    e("s_mov_b64 exec, 1")
    e(f"ds_add_u32 v{vCT}, v{vtmp} offset:{off}")
    e("s_mov_b64 exec, -1")

def lds_wait(e, off, n, vtmp, sleep=1, vaddr=None, exact=False):
    L, D = e.label("lw"), e.label("lwd")
    vaddr = vCT if vaddr is None else vaddr
    e(f"s_mov_b32 s{sSP}, {SPIN_MAX*8}")
    e(f"{L}:")
    e(f"ds_read_b32 v{vtmp}, v{vaddr} offset:{off}")
    e(f"s_sub_u32 s{sSP}, s{sSP}, 1")
    e("s_waitcnt lgkmcnt(0)")
    e(f"v_cmp_{'ne' if exact else 'gt'}_u32 vcc, {n}, v{vtmp}")
    e(f"s_cbranch_vccz {D}")
    e(f"s_sleep {sleep}")
    e(f"s_cbranch_scc0 {L}")
    e(f"{D}:")

def fetch_nonce(e, vt):
    e(f"ds_read_b64 {vr(vt,2)}, v{vCT} offset:{C_NON}")
    e("s_waitcnt lgkmcnt(0)")
    e(f"v_readfirstlane_b32 s{sNON}, v{vt}")
    e(f"v_readfirstlane_b32 s{sNON+1}, v{vt+1}")

def flag_poll(e, vt, voff, soff, sleep=1):
    L, D = e.label("fp"), e.label("fpd")
    e(f"s_mov_b32 s{sSP}, {SPIN_MAX}")
    e(f"{L}:")
    e(f"buffer_load_dwordx2 {vr(vt,2)}, v{voff}, {sr(sWS,4)}, s{soff} offen sc1")
    e(f"s_sub_u32 s{sSP}, s{sSP}, 1")
    e("s_waitcnt vmcnt(0)")
    e(f"v_cmp_ne_u64 vcc, {sr(sNON,2)}, {vr(vt,2)}")
    e(f"s_cbranch_vccz {D}")
    e(f"s_sleep {sleep}")
    e(f"s_cbranch_scc0 {L}")
    e(f"{D}:")

def flag_set(e, vt, soff):
    e(f"v_mov_b32 v{vt}, s{sNON}")
    e(f"v_mov_b32 v{vt+1}, s{sNON+1}")
    e(f"v_mov_b32 v{vt+2}, 0")
    e("s_waitcnt vmcnt(0)")
    e("s_mov_b64 exec, 1")
    e(f"buffer_store_dwordx2 {vr(vt,2)}, v{vt+2}, {sr(sWS,4)}, s{soff} offen sc1")
    e("s_mov_b64 exec, -1")

def set_srd(e, d, base, nbytes):
    srd(e, d, base, nbytes)

def row_reduce(e, n, S):
    p32 = [(0, 2), (1, 3)] + ([(4, 5)] if n == 6 else [])
    e("s_nop 2")
    for (a, b) in p32: e(f"v_permlane32_swap_b32 v{S+a}, v{S+b}")
    for (a, b) in p32: e(f"v_add_f32 v{S+a}, v{S+a}, v{S+b}")
    if n == 6: e(f"v_mov_b32 v{S+5}, v{S+4}")
    e("s_nop 1")
    p16 = [(0, 1)] + ([(4, 5)] if n == 6 else [])
    for (a, b) in p16: e(f"v_permlane16_swap_b32 v{S+a}, v{S+b}")
    e("s_nop 0")
    for (a, b) in p16: e(f"v_add_f32 v{S+a}, v{S+a}, v{S+b}")
    G = [0] + ([4] if n == 6 else [])
    for rot in (8, 4, 2, 1):
        e("s_nop 1" if len(G) == 1 else "s_nop 0")
        for g in G:
            e(f"v_add_f32_dpp v{S+g}, v{S+g}, v{S+g} row_ror:{rot} row_mask:0xf bank_mask:0xf")
    return G

def ln_setup(e, n, T, sbase):
    A = T + 2*n
    e(f"v_mul_u32_u24 v{A+2}, {XS2}, v{vL}")
    e(f"v_mov_b32 v{A+4}, 0x00003f80")
    e(f"v_mov_b32 v{A+5}, 0x3f800000")
    e(f"v_lshrrev_b32 v{A+6}, 4, v{vL}")
    e(f"v_add_u32 v{A+6}, s{sbase}, v{A+6}")
    e(f"v_and_b32 v{A+6}, 63, v{A+6}")
    e(f"v_lshlrev_b32 v{A+6}, 2, v{A+6}")
    if n == 6:
        e(f"v_lshrrev_b32 v{A+7}, 5, v{vL}")
        e(f"v_add3_u32 v{A+7}, s{sbase}, 4, v{A+7}")
        e(f"v_and_b32 v{A+7}, 63, v{A+7}")
        e(f"v_lshlrev_b32 v{A+7}, 2, v{A+7}")

def ln_center(e, n, X, T, U, srow, vm_after):
    S1, A = T, T + 2*n
    for j in range(0, n, 2):
        if vm_after is not None: e(f"s_waitcnt vmcnt({vm_after + n - 2 - j})")
        for i in range(4):
            for jj in (j, j+1):
                e(f"v_dot2_f32_bf16 v{S1+jj}, v{X+4*jj+i}, s{sONES}, {'0' if i == 0 else 'v' + str(S1+jj)}")
    G = row_reduce(e, n, S1)
    for gi, g in enumerate(G): e(f"v_mul_f32 v{S1+g}, {f32bits(-1/512):#x}, v{S1+g}")
    for gi, g in enumerate(G): e(f"v_cvt_pk_bf16_f32 v{A+gi}, v{S1+g}, v{S1+g}")
    for gi, g in enumerate(G): e(f"v_lshlrev_b32 v{A+gi}, 16, v{A+gi}")
    e("s_nop 0")
    lane_of = [0, 16, 32, 48, 0, 32]
    for j in range(n):
        e(f"v_readlane_b32 s{sMN[j]}, v{A + (j >> 2)}, {lane_of[j]}")
    def head(j):
        x, P = X + 4*j, U + 8*(j & 1)
        for i in range(4):
            e(f"v_dot2_f32_bf16 v{P+2*i}, v{x+i}, v{A+4}, s{sMN[j]}")
            e(f"v_dot2_f32_bf16 v{P+2*i+1}, v{x+i}, v{A+5}, s{sMN[j]}")
    def tail(j):
        x, P = X + 4*j, U + 8*(j & 1)
        e(f"v_add_u32 v{A+3}, s{srow[j]}, v{A+2}")
        for i in range(4):
            e(f"v_cvt_pk_bf16_f32 v{x+i}, v{P+2*i}, v{P+2*i+1}")
        e(f"ds_write_b128 v{A+3}, {vr(x,4)}")
    head(0)
    for j in range(n):
        if j + 1 < n: head(j + 1)
        tail(j)

def ln_scale(e, n, X, T):
    S1, S2, A = T, T + n, T + 2*n
    for i in range(4):
        for j in range(n):
            x = X + 4*j + i
            e(f"v_dot2_f32_bf16 v{S2+j}, v{x}, v{x}, {'0' if i == 0 else 'v' + str(S2+j)}")
    G = row_reduce(e, n, S2)
    def each(fmt):
        for gi, g in enumerate(G):
            e(fmt.format(m=S1+g, v=S2+g, t=A+gi, a=A+6+gi))
    each("v_sub_f32 v{m}, v{m}, v{t}")
    each(f"v_mul_f32 v{{v}}, {f32bits(1/512):#x}, v{{v}}")
    each("v_fma_f32 v{v}, -v{m}, v{m}, v{v}")
    each("v_max_f32 v{v}, 0, v{v}")
    each("v_cvt_pk_bf16_f32 v{v}, v{v}, v{v}")
    each("v_lshlrev_b32 v{v}, 16, v{v}")
    each(f"v_add_f32 v{{v}}, {f32bits(1e-5):#x}, v{{v}}")
    each("v_cvt_pk_bf16_f32 v{v}, v{v}, v{v}")
    each("v_lshlrev_b32 v{v}, 16, v{v}")
    each("v_sqrt_f32 v{v}, v{v}")
    e("s_nop 0")
    each("v_cvt_pk_bf16_f32 v{v}, v{v}, v{v}")
    each("v_lshlrev_b32 v{v}, 16, v{v}")
    each("v_rcp_f32 v{v}, v{v}")
    each(f"v_add_u32 v{{a}}, {L_RT}, v{{a}}")
    each("ds_write_b32 v{a}, v{v}")

def ln_both4(e, X, T, U, srow, vm_after):
    n = 4
    S1, S2, A = T, T + n, T + 2*n
    for j in range(0, n, 2):
        e(f"s_waitcnt vmcnt({vm_after + n - 2 - j})")
        for i in range(4):
            for jj in (j, j+1):
                x = X + 4*jj + i
                e(f"v_dot2_f32_bf16 v{S1+jj}, v{x}, s{sONES}, {'0' if i == 0 else 'v' + str(S1+jj)}")
                e(f"v_dot2_f32_bf16 v{S2+jj}, v{x}, v{x}, {'0' if i == 0 else 'v' + str(S2+jj)}")
    e("s_nop 2")
    for S in (S1, S2):
        for (a, b) in ((0, 2), (1, 3)): e(f"v_permlane32_swap_b32 v{S+a}, v{S+b}")
    for S in (S1, S2):
        for (a, b) in ((0, 2), (1, 3)): e(f"v_add_f32 v{S+a}, v{S+a}, v{S+b}")
    e("s_nop 1")
    for S in (S1, S2): e(f"v_permlane16_swap_b32 v{S}, v{S+1}")
    e("s_nop 0")
    for S in (S1, S2): e(f"v_add_f32 v{S}, v{S}, v{S+1}")
    for rot in (8, 4, 2, 1):
        e("s_nop 0")
        for S in (S1, S2):
            e(f"v_add_f32_dpp v{S}, v{S}, v{S} row_ror:{rot} row_mask:0xf bank_mask:0xf")
    m, v = S1, S2
    e(f"v_mul_f32 v{m}, {f32bits(-1/512):#x}, v{m}")
    e(f"v_mul_f32 v{v}, {f32bits(1/512):#x}, v{v}")
    e(f"v_cvt_pk_bf16_f32 v{A}, v{m}, v{m}")
    e(f"v_fma_f32 v{v}, -v{m}, v{m}, v{v}")
    e(f"v_lshlrev_b32 v{A}, 16, v{A}")
    e(f"v_max_f32 v{v}, 0, v{v}")
    for j in range(n):
        e(f"v_readlane_b32 s{sMN[j]}, v{A}, {16*j}")
    chain = [f"v_cvt_pk_bf16_f32 v{v}, v{v}, v{v}", f"v_lshlrev_b32 v{v}, 16, v{v}", f"v_add_f32 v{v}, {f32bits(1e-5):#x}, v{v}",
             f"v_cvt_pk_bf16_f32 v{v}, v{v}, v{v}", f"v_lshlrev_b32 v{v}, 16, v{v}", f"v_sqrt_f32 v{v}, v{v}",
             f"v_cvt_pk_bf16_f32 v{v}, v{v}, v{v}", f"v_lshlrev_b32 v{v}, 16, v{v}", f"v_rcp_f32 v{v}, v{v}",
             f"v_add_u32 v{A+6}, {L_RT}, v{A+6}", f"ds_write_b32 v{A+6}, v{v}"]
    main = []
    def head(j):
        x, P = X + 4*j, U + 8*(j & 1)
        for i in range(4):
            main.append(f"v_dot2_f32_bf16 v{P+2*i}, v{x+i}, v{A+4}, s{sMN[j]}")
            main.append(f"v_dot2_f32_bf16 v{P+2*i+1}, v{x+i}, v{A+5}, s{sMN[j]}")
    def tail(j):
        x, P = X + 4*j, U + 8*(j & 1)
        main.append(f"v_add_u32 v{A+3}, s{srow[j]}, v{A+2}")
        for i in range(4):
            main.append(f"v_cvt_pk_bf16_f32 v{x+i}, v{P+2*i}, v{P+2*i+1}")
        main.append(f"ds_write_b128 v{A+3}, {vr(x,4)}")
    head(0)
    for j in range(n):
        if j + 1 < n: head(j + 1)
        tail(j)
    for i, l in enumerate(main):
        if i % 3 == 0 and chain: e(chain.pop(0))
        e(l)

def tr_common(e, vd, t0, t1):
    e(f"v_and_b32 v{t0}, 12, v{vL}")
    e(f"v_lshlrev_b32 v{vd}, 5, v{t0}")
    e(f"v_lshrrev_b32 v{t0}, 3, v{vL}")
    e(f"v_and_b32 v{t0}, 2, v{t0}")
    e(f"v_bfe_u32 v{t1}, v{vL}, 1, 1")
    e(f"v_or_b32 v{t0}, v{t0}, v{t1}")
    e(f"v_lshrrev_b32 v{t1}, 1, v{vL}")
    e(f"v_and_b32 v{t1}, 4, v{t1}")
    e(f"v_xor_b32 v{t0}, v{t0}, v{t1}")
    e(f"v_lshl_add_u32 v{vd}, v{t0}, 4, v{vd}")
    e(f"v_and_b32 v{t0}, 1, v{vL}")
    e(f"v_lshl_add_u32 v{vd}, v{t0}, 3, v{vd}")

def dpp_max16(e, v):
    for ctl in ("row_ror:8", "row_ror:4", "row_ror:2", "row_ror:1"):
        e("s_nop 1")
        e(f"v_max_f32_dpp v{v}, v{v}, v{v} {ctl} row_mask:0xf bank_mask:0xf")

def swap_op(e, op, kind, v, t):
    e(f"v_mov_b32 v{t}, v{v}")
    e("s_nop 1")
    e(f"v_permlane{kind}_swap_b32 v{v}, v{t}")
    e("s_nop 0")
    e(f"{op} v{v}, v{v}, v{t}")


OCNT, OMRK = 260, 264
def stage_w512(e, base_sreg, lbase, sIDX, nparts, sSO, srd_=None):
    rows = 512 // nparts
    if srd_ is None:
        srd_ = sWA
        set_srd(e, sWA, base_sreg, 512*512*2)
    e(f"s_mul_i32 s{sSO}, s{sIDX}, {rows*1024}")
    e(f"s_lshl_b32 s{sT0}, s{sCG}, 7")
    e(f"s_add_u32 s{sSO}, s{sSO}, s{sT0}")
    e(f"s_mul_i32 s{sT0}, s{sIDX}, {rows*128}")
    for i in range(rows // 16):
        e(f"s_add_u32 m0, s{sT0}, {lbase + 2048*i}")
        if i: e(f"s_add_u32 s{sSO}, s{sSO}, 16384")
        else: e("s_nop 0")
        e(f"buffer_load_dwordx4 v{vDA}, {sr(srd_,4)}, s{sSO} offen lds")
        e(f"buffer_load_dwordx4 v{vDB}, {sr(srd_,4)}, s{sSO} offen offset:1024 lds")

A_Q, A_KR, A_VR, A_S0, A_S1, A_O = 12, 16, 48, 112, 128, 144
vLA, vQA, vWB = 7, 8, 9
A_ID = 160
sQT, sLAST, sRET, sPO = 84, 85, 86, 88
ROWS = [84, 85, 86, 87, 88, 89]
def flush_parts(e, rtn=False):
    O = A_O
    L = e.label("sf")
    pre = [f"ds_read_b32 v{vT0}, v{vLA} offset:{OMRK}"]
    pk = [f"v_cvt_pk_bf16_f32 v{O+12+i}, v{O+2*i}, v{O+2*i+1}" for i in range(4)]
    adr = [f"v_add_u32 v{vT1}, s{sPO}, v{vWB}"]
    chk1 = ["s_waitcnt lgkmcnt(0)", f"v_readfirstlane_b32 s{sT0}, v{vT0}"]
    chk2 = [f"s_cmp_lt_u32 s{sQT}, 4", f"s_cselect_b32 s{sT0}, 1, s{sT0}", f"s_cmp_lg_u32 s{sT0}, 0", f"s_cbranch_scc1 {L}",
            f"s_call_b64 {sr(sRET,2)}, L_wslot", f"{L}:"]
    add = f"ds_add_rtn_f64 v[4:5], v{vLA}, v[10:11] offset:2048" if rtn else f"ds_add_f64 v{vLA}, v[10:11] offset:2048"
    out = [f"ds_write_b128 v{vT1}, {vr(O+12,4)}", "s_mov_b32 exec_hi, 0", f"v_cvt_f64_f32 v[10:11], v{O+8}",
           "s_mov_b32 exec_hi, 1", add, "s_mov_b32 exec_hi, -1"]
    nxt = [f"v_add_u32 v{vLA}, 512, v{vLA}", f"s_add_u32 s{sPO}, s{sPO}, 8192", f"s_and_b32 s{sPO}, s{sPO}, 0x6000"]
    return pre, pk, adr, chk1, chk2, out, nxt

def a_flush(e):
    pre, pk, adr, chk1, chk2, out, nxt = flush_parts(e, rtn=True)
    for x in pre + pk + adr + chk1 + ["s_nop 0"] + chk2 + out: e(x)
    e(f"v_add_u32 v{vT0}, {L_OA + 3*8192}, v{vL16}")
    e(f"v_and_b32 v{A_Q}, 31, v{vL}")
    e(f"v_lshlrev_b32 v{A_Q}, 3, v{A_Q}")
    e(f"v_add_u32 v{A_Q}, {L_L + 7*512}, v{A_Q}")
    e(f"ds_read_b64 {vr(A_Q,2)}, v{A_Q}")
    for w in range(8):
        e(f"ds_read_b128 {vr(A_S0+4*w,4)}, v{vT0} offset:{1024*w}")
    for x in nxt: e(x)
    e("s_waitcnt lgkmcnt(9)")
    e(f"v_readlane_b32 s{sT0}, v5, 32")
    e("s_nop 0")
    L = e.label("nl")
    e(f"s_cmp_lg_u32 s{sT0}, s{sLAST}")
    e(f"s_cbranch_scc1 {L}")
    e(f"s_cmp_lg_u32 s{sQT}, 7")
    e(f"s_cbranch_scc1 {L}")
    e(f"s_call_b64 {sr(sRET,2)}, L_pub")
    e(f"{L}:")
    e("s_waitcnt lgkmcnt(0)")
    e(f"s_add_u32 s{sQT}, s{sQT}, 1")

def make_identity(e, d, t0, t1):
    e(f"v_and_b32 v{t0}, 1, v{vL}")
    e(f"v_lshlrev_b32 v{t0}, 4, v{t0}")
    e(f"v_mov_b32 v{t1}, 0x3f80")
    e(f"v_lshlrev_b32 v{t1}, v{t0}, v{t1}")
    e(f"v_lshrrev_b32 v{t0}, 3, v{vL}")
    e(f"v_and_b32 v{t0}, 4, v{t0}")
    e(f"v_xor_b32 v{t0}, v{t0}, v{vL}")
    e(f"v_and_b32 v{t0}, 0x1e, v{t0}")
    for i, key in enumerate((0, 2, 8, 10)):
        e(f"v_cmp_eq_u32 vcc, {key}, v{t0}")
        e("s_nop 1")
        e(f"v_cndmask_b32 v{d+i}, 0, v{t1}, vcc")

def publish_tail(e, D, LP, sq):
    e(f"s_lshl_b32 s{sT0}, s{sRP}, 3")
    e(f"s_and_b32 s{sT1}, s{sq}, 1")
    e(f"s_lshl_b32 s{sT1}, s{sT1}, 2")
    e(f"s_add_u32 s{sT0}, s{sT0}, s{sT1}")
    e(f"s_lshr_b32 s{sT1}, s{sq}, 1")
    e(f"s_add_u32 s{sT0}, s{sT0}, s{sT1}")
    e(f"s_lshl_b32 s{sT0}, s{sT0}, 3")
    e(f"s_add_u32 s{sT0}, s{sT0}, s{sCG}")
    e(f"s_lshl_b32 s{sT1}, s{sT0}, 10")
    e(f"s_add_u32 s{sT1}, s{sT1}, {OF}")
    e(f"v_cvt_f32_f64 v{LP}, {vr(LP,2)}")
    e(f"v_rcp_f32 v{LP}, v{LP}")
    e("s_nop 0")
    for i in range(0, 8, 2):
        e(f"v_pk_mul_f32 {vr(D+i,2)}, {vr(D+i,2)}, {vr(LP,2)} op_sel_hi:[1,0]")
    for i in range(4):
        e(f"v_cvt_pk_bf16_f32 v{D+i}, v{D+2*i}, v{D+2*i+1}")
    for i in range(4):
        e(f"v_min_u32 v{D+i}, -2, v{D+i}")
    L = e.label("nf")
    e(f"s_cmp_lt_u32 s{sq}, 6")
    e(f"s_cbranch_scc1 {L}")
    e(f"s_add_u32 s{sT0}, s{sT1}, {OF2 - OF}")
    e(f"buffer_store_dwordx4 {vr(D,4)}, v{vL16}, {sr(sWS,4)}, s{sT0} offen")
    e(f"{L}:")
    e(f"buffer_store_dwordx4 {vr(D,4)}, v{vL16}, {sr(sWS,4)}, s{sT1} offen sc1")

def flush_init(e):
    e(f"v_lshlrev_b32 v{vLA}, 3, v{vL}")
    e(f"v_add_u32 v{vLA}, {L_L - 2048}, v{vLA}")
    e(f"v_mov_b32 v10, 0")
    e(f"v_mov_b32 v11, 0x3ff00000")
    e(f"s_mov_b32 s{sLAST}, {CNT7}")
    e(f"s_mov_b32 s{sQT}, 0")
    e(f"s_mov_b32 s{sPO}, 0")

def attention_role(e, st):
    Q, KR, VR, S0, S1, O = A_Q, A_KR, A_VR, A_S0, A_S1, A_O
    X, T = 112, 136
    e("; ---- attention waves: setup, centring of 6 rows, K/V gather, main loops ----"); e("L_attn:")
    rows = ROWS
    if common.STAMP:
        e(f"s_mov_b32 s{common.S_ST}, s98")
        e(f"s_mov_b32 s{common.S_ST+1}, s96")
    row_offsets(e, sT2, 6)
    PQW = int(OPT.get("pqw", 6))
    Lnq = e.label("nopq")
    e(f"s_cmp_lt_u32 s{sW}, {PQW}")
    e(f"s_cbranch_scc1 {Lnq}")
    e(f"s_lshr_b32 s{sT1}, s2, 3")
    e(f"s_lshl_b32 s{sT1}, s{sT1}, 1")
    e(f"s_add_u32 s{sT0}, s{sW}, s{sT1}")
    e(f"s_sub_u32 s{sT0}, s{sT0}, 6")
    e(f"s_lshl_b32 s{sT0}, s{sT0}, 13")
    e(f"v_lshl_add_u32 v10, v{vL}, 7, s{sT0}")
    e(f"global_load_dword v10, v10, s[6:7]")
    e(f"{Lnq}:")
    vPO_ = 164
    e(f"v_and_b32 v{vT0}, 15, v{vL}")
    e(f"v_cmp_eq_u32 vcc, 0, v{vT0}")
    e(f"v_mov_b32 v{vT1}, 0x3f803f80")
    e(f"v_and_b32 v{vT0}, 31, v{vL}")
    e(f"v_cndmask_b32 v{VR+4}, 0, v{vT1}, vcc")
    e(f"v_cndmask_b32 v{VR+5}, 0, v{vT1}, vcc")
    for t in range(8):
        for i in (4, 6):
            if (t, i) != (0, 4): e(f"v_mov_b64 {vr(VR+8*t+i,2)}, {vr(VR+4,2)}")
    e(f"v_add_u32 v{vQA}, {L_Q}, v{vL16}")
    e(f"v_lshlrev_b32 v{vPO_}, 7, v{vT0}")
    e(f"s_lshl_b32 s{sT0}, s{sW}, 10")
    e(f"s_add_u32 s{sT0}, s{sT0}, {L_OA}")
    e(f"v_add_u32 v{vWB}, s{sT0}, v{vL16}")
    sK0, sK1, sV0, sV1, sKM, sFLG = 90, 91, 92, 93, 94, 95
    e(f"s_lshr_b32 s{sK1}, s2, 1")
    e(f"s_and_b32 s{sK1}, s{sK1}, {4 if CSWAP else 0}")
    e(f"s_xor_b32 s{sK1}, s{sK1}, s{sW}")
    e(f"s_lshl_b32 s{sFLG}, s{sK1}, 12")
    e(f"s_add_u32 s{sFLG}, s{sFLG}, {KVFL}")
    e(f"s_lshl_b32 s{sK0}, s{sK1}, 13")
    e(f"s_add_u32 s{sK1}, s{sK0}, {KF + 4096}")
    e(f"s_add_u32 s{sV0}, s{sK0}, {VF}")
    e(f"s_add_u32 s{sV1}, s{sK0}, {VF + 4096}")
    assert KF == 0
    make_identity(e, A_ID, vT0, vT1)
    common_setup(e)
    ln_setup(e, 6, T, sT2)
    Lw1, Lw2 = e.label("xw"), e.label("xw2")
    e(f"s_cmp_lt_u32 s{sW}, {PQW}")
    e(f"s_cbranch_scc1 {Lw1}")
    e("s_waitcnt vmcnt(1)")
    e(f"s_branch {Lw2}")
    e(f"{Lw1}:")
    e("s_waitcnt vmcnt(0)")
    e(f"{Lw2}:")
    if OPT.get("tlbs"): e("s_waitcnt lgkmcnt(0)")
    st.mark()
    e("s_setprio 1")
    ln_center(e, 6, X, T, 16, rows, None)
    e("s_setprio 0")
    st.mark()
    ln_scale(e, 6, X, T)
    lds_signal(e, C_RS, vT0)
    lds_wait(e, *((C_WQ, 4) if PWQ else (C_KVF, 1)), vT1)
    if PWQ == 2: lds_wait(e, C_XN, 8, vT1)
    fetch_nonce(e, S0)
    st.mark()
    if PSLEEP: e(f"s_sleep {PSLEEP}")
    Lp, Lpd = e.label("kp"), e.label("kpd")
    e(f"s_mov_b32 s{sSP}, {SPIN_MAX}")
    e(f"{Lp}:")
    e(f"buffer_load_dwordx4 {vr(S0,4)}, v{vPO_}, {sr(sWS,4)}, s{sFLG} offen sc1")
    e("s_waitcnt vmcnt(0)")
    e(f"v_cmp_ne_u64 vcc, {sr(sNON,2)}, {vr(S0,2)}")
    e(f"v_cmp_ne_u32 {sr(sLN,2)}, v{S0}, v{S0+3}")
    e(f"s_or_b64 vcc, vcc, {sr(sLN,2)}")
    e(f"s_cbranch_vccz {Lpd}")
    e(f"s_sub_u32 s{sSP}, s{sSP}, 1")
    e(f"s_sleep {int(OPT.get('kvsleep', 1))}")
    e(f"s_cbranch_scc0 {Lp}")
    e(f"{Lpd}:")
    e(f"v_mov_b32 v{vT2}, v{S0+2}")
    st.mark()
    if YDELAY == 2:
        Ly = e.label("old")
        e(f"s_cmp_lt_u32 s{sW}, 4")
        e(f"s_cbranch_scc1 {Ly}")
        lds_wait(e, C_KVL, 4, vT1, sleep=1)
        e(f"{Ly}:")
    log = []
    def ldk(t):
        log.append(("K", t))
        return [f"buffer_load_dwordx4 {vr(KR+4*t,4)}, v{vL16}, {sr(sWS,4)}, s{sK0 if t < 4 else sK1} offen offset:{(t%4)*1024} sc1"]
    def ldv(t):
        log.append(("V", t))
        return [f"buffer_load_dwordx4 {vr(VR+8*t,4)}, v{vL16}, {sr(sWS,4)}, s{sV0 if t < 4 else sV1} offen offset:{(t%4)*1024} sc1"]
    def wait_for(items):
        last = max(i for i, it in enumerate(log) if it in items)
        return f"s_waitcnt vmcnt({len(log) - 1 - last})"
    order = [("K", 0), ("K", 1), ("V", 0), ("K", 2), ("V", 1), ("K", 3), ("V", 2), ("K", 4), ("V", 3), ("K", 5), ("V", 4), ("K", 6), ("V", 5), ("K", 7), ("V", 6), ("V", 7)]
    ld = lambda it: ldk(it[1]) if it[0] == "K" else ldv(it[1])
    NPRE = 16
    for it in order[:NPRE]:
        for l in ld(it): e(l)
    lds_signal(e, C_KVL, vT0)
    lds_wait(e, C_QW, 2 if QFIRST else 4, vT0)
    e(f"ds_read_b128 {vr(Q,4)}, v{vQA}")
    e(wait_for([("K", 0)]))
    e("s_waitcnt lgkmcnt(0)")
    e(f"{MFMA} {vr(S0,16)}, {vr(KR,4)}, {vr(Q,4)}, 0")
    e("s_nop 11")
    st.mark()
    def qtile(first, base, plain=False):
        for t in range(8):
            a = S0 if (t & 1) == 0 else S1
            b = S1 if (t & 1) == 0 else S0
            tp = (t - 1) % 8
            tn = (t + 1) % 8
            ex = [f"v_exp_f32 v{a+i}, v{a+i}" for i in range(16)]
            pk = [f"v_cvt_pk_bf16_f32 v{a+i}, v{a+2*i}, v{a+2*i+1}" for i in range(8)]
            if OPT.get("perm"): pk = [f"v_perm_b32 v{a+i}, v{a+2*i+1}, v{a+2*i}, s88" for i in range(8)]
            c0 = "0" if t == 1 else vr(O,16)
            pv0 = [f"{MFMA} {vr(O,16)}, {vr(VR+8*tp,4)}, {vr(b,4)}, {c0}"]
            pv1 = [f"{MFMA} {vr(O,16)}, {vr(VR+8*tp+4,4)}, {vr(b+4,4)}, {vr(O,16)}"]
            qk = [f"{MFMA} {vr(b,16)}, {vr(KR+4*tn,4)}, {vr(Q,4)}, 0"]
            wait, extra = [], []
            if first:
                if t == 0: pv0 = pv1 = []
                wait = [wait_for([("K", t+1)])] if t < 7 else []
            if plain:
                if t == 7: qk = []
            else:
                if t == 7: wait += [f"s_waitcnt lgkmcnt(0)"]
                if t == 6: extra += [f"ds_read_b128 {vr(Q,4)}, v{vQA} offset:1024"]
            bs = base if isinstance(base, int) else (0 if str(t) in base else 1)
            hi, lo = ["s_setprio 3"], [f"s_setprio {bs}"]
            if not BOOST:
                hi = []
                prevb = base if isinstance(base, int) else (0 if str((t-1) % 8) in base else 1)
                if prevb == bs and not (first and t == 0): lo = ["s_nop 0"] if t == 0 else []
            if OPT.get("nb") and not isinstance(base, int) and bs == 0 and str((t-1) % 8) in base: hi, lo = [], (["s_nop 0"] if t == 0 else [])
            SP = OPT.get("sp", "33")
            n1, n2 = int(SP[0]), int(SP[0]) + int(SP[1])
            if plain: hi, lo = [], (["s_nop 0"] if t == 0 else [])
            seq = wait + hi + pv0 + ex[0:n1] + pv1 + ex[n1:n2] + qk + lo + extra + ex[n2:6]
            if OPT.get("ord") == "q":
                seq = wait + hi + pv0 + lo + ex[0:3] + hi + pv1 + lo + ex[3:6] + hi + qk + lo + extra
            if t == 0 and not first:
                fpre, fpk, fadr, fc1, fc2, fout, fnxt = flush_parts(e)
                seq += fpre + [pk[0], pk[1]] + ex[6:8] + [pk[2]] + fadr + ex[8:10]
                seq += [fpk[0], pk[3], fpk[1], ex[10], fpk[2], ex[11], fpk[3], pk[4]] + fc1 + ex[12:14] + fc2 + fout + [pk[5]] + ex[14:16] + [pk[6], pk[7]] + fnxt
            else:
                seq += [pk[0], pk[1]] + ex[6:8] + [pk[2]] + ex[8:10] + [pk[3]] + ex[10:12] + [pk[4]] + ex[12:14] + [pk[5]]
                if first:
                    seq += [wait_for([("V", t)])] + [f"v_permlane16_swap_b32 v{VR+8*t+i}, v{VR+8*t+4+i}" for i in range(4)]
                seq += ex[14:16] + [pk[6], pk[7]]
            if OPT.get("noda"): seq = [x for x in seq if not x.startswith("ds_add_f64")]
            for x in seq: e(x)
        if not plain: e(f"v_add_u32 v{vQA}, 1024, v{vQA}")
        if not first: e(f"s_add_u32 s{sQT}, s{sQT}, 1")
    if OPT.get("perm"): e("s_mov_b32 s88, 0x07060302")
    BASE = 1 if NOLD < 8 else 0
    qtile(True, BASE)
    lds_wait(e, C_Z, 4, vT0)
    e(f"ds_read_b32 v{vT1}, v{vCT} offset:{C_QMAX}")
    e("s_waitcnt vmcnt(0) lgkmcnt(0)")
    flush_init(e)
    e(f"v_mul_f32 v{vT2}, v{vT2}, v{vT1}")
    e(f"v_cmp_nge_f32 vcc, {f32bits(BOUND2):#x}, v{vT2}")
    Lok = e.label("bok")
    e(f"s_cbranch_vccz {Lok}")
    lds_signal(e, C_REDO, vT0)
    lds_signal(e, C_VOID, vT0)
    e(f"v_mov_b32 v11, 0x40700000")
    e(f"s_mov_b32 s{sLAST}, -1")
    e(f"{Lok}:")
    lds_signal(e, C_CHK, vT0)
    if LOT != "x":
        LA, LB, LE = e.label("aloopa"), e.label("aloopb"), e.label("aloope")
        e(f"s_cmp_lt_u32 s{sW}, 4")
        e(f"s_cbranch_scc1 {LB}")
        e(".p2align 6")
        e(f"{LA}:")
        NL = 6 if PEEL else 7
        qtile(False, 1)
        e(f"s_cmp_lt_u32 s{sQT}, {NL}")
        e(f"s_cbranch_scc1 {LA}")
        e(f"s_branch {LE}")
        e(".p2align 6")
        e(f"{LB}:")
        qtile(False, LOT)
        e(f"s_cmp_lt_u32 s{sQT}, {NL}")
        e(f"s_cbranch_scc1 {LB}")
        e(f"{LE}:")
        if PEEL:
            e(f"s_setprio {OPT.get('lastp', 0)}")
            qtile(False, 0, plain=True)
    else:
        e(f"s_cmp_lt_u32 s{sW}, 4")
        e(f"s_cselect_b32 s{sCNT}, {NOLD - 1}, 7")
        LA, LB, LE = e.label("aloopa"), e.label("aloopb"), e.label("aloope")
        e(".p2align 6")
        e(f"{LA}:")
        qtile(False, BASE)
        e(f"s_cmp_lt_u32 s{sQT}, s{sCNT}")
        e(f"s_cbranch_scc1 {LA}")
        if NOLD < 8:
            e(f"s_cmp_eq_u32 s{sQT}, 7")
            e(f"s_cbranch_scc1 {LE}")
            e(f"{LB}:")
            qtile(False, 0)
            e(f"s_cmp_lt_u32 s{sQT}, 7")
            e(f"s_cbranch_scc1 {LB}")
            e(f"{LE}:")
    e("s_setprio 3")
    e(f"{MFMA} {vr(O,16)}, {vr(VR+56,4)}, {vr(S1,4)}, {vr(O,16)}")
    e(f"{MFMA} {vr(O,16)}, {vr(VR+60,4)}, {vr(S1+4,4)}, {vr(O,16)}")
    e("s_nop 11")
    a_flush(e)
    st.mark()
    lds_wait(e, C_CHK, 8, vT0)
    e(f"ds_read_b32 v{vT0}, v{vCT} offset:{C_REDO}")
    e("s_waitcnt lgkmcnt(0)")
    e(f"v_cmp_ne_u32 vcc, 0, v{vT0}")
    e(f"s_cbranch_vccnz L_slow")
    e("L_aend:")
    st.mark(); st.mark(True)
    st.flush(sW, sWS, vT0, vT1, 12)
    e("s_endpgm")
    e("; ---- publish the last q-tile (called by the wave that arrived last) ----"); e("L_pub:")
    for w in range(8):
        e(f"s_waitcnt lgkmcnt({7-w})")
        e(f"{MFMA} {vr(O,16)}, {vr(A_ID,4)}, {vr(S0+4*w,4)}, {'0' if w == 0 else vr(O,16)}")
    publish_tail(e, O, Q, sQT)
    e(f"s_setpc_b64 {sr(sRET,2)}")
    e("L_wslot:")
    e(f"s_mov_b32 s{sSP}, {SPIN_MAX*8}")
    e("L_wslot1:")
    e("s_sleep 2")
    e(f"ds_read_b32 v{vT0}, v{vLA} offset:{OMRK}")
    e(f"ds_read_b32 v{vT2}, v{vCT} offset:{C_VOID}")
    e("s_waitcnt lgkmcnt(0)")
    e(f"v_or_b32 v{vT0}, v{vT0}, v{vT2}")
    e("s_nop 0")
    e(f"v_readfirstlane_b32 s{sT0}, v{vT0}")
    e("s_nop 0")
    e(f"s_cmp_lg_u32 s{sT0}, 0")
    e("s_cbranch_scc1 L_wslot2")
    e(f"s_sub_u32 s{sSP}, s{sSP}, 1")
    e("s_cbranch_scc0 L_wslot1")
    e("L_wslot2:")
    e(f"s_setpc_b64 {sr(sRET,2)}")

def attention_slow(e):
    Q, KR, VR, S0, S1, O = A_Q, A_KR, A_VR, A_S0, A_S1, A_O
    vRM = 0
    e("; ---- fallback: softmax with the exact row maximum ----"); e("L_slow:")
    e("s_setprio 0")
    e(f"s_lshl_b32 s{sT0}, s{sW}, 9")
    e(f"s_add_u32 s{sT0}, s{sT0}, {L_L}")
    e(f"v_lshl_add_u32 v{vT2}, v{vL}, 3, s{sT0}")
    e(f"v_mov_b32 v10, 0")
    e(f"v_mov_b32 v11, 0")
    lds_signal(e, C_S0, vT0)
    lds_wait(e, C_S0, 8, vT0)
    e(f"ds_write_b64 v{vT2}, v[10:11]")
    e(f"ds_write_b32 v{vCT}, v10 offset:{C_VOID}")
    e("s_waitcnt lgkmcnt(0)")
    flush_init(e)
    e(f"v_and_b32 v{vRM}, 31, v{vL}")
    e(f"v_lshlrev_b32 v{vRM}, 2, v{vRM}")
    e(f"v_add_u32 v{vRM}, {L_RM}, v{vRM}")
    e(f"s_lshl_b32 s{sT0}, s{sW}, 7")
    e(f"v_add_u32 v{vT1}, s{sT0}, v{vRM}")
    e(f"v_mov_b32 v{vT0}, 0xff800000")
    e(f"ds_write_b32 v{vT1}, v{vT0}")
    lds_signal(e, C_S1, vT0)
    lds_wait(e, C_S1, 8, vT0)
    e(f"v_add_u32 v{vQA}, {L_Q}, v{vL16}")
    e(f"v_mov_b32 v{vT2}, v{vRM}")
    e(f"s_mov_b32 s{sCNT}, 8")
    L1 = e.label("sp1")
    e(f"{L1}:")
    e(f"ds_read_b128 {vr(Q,4)}, v{vQA}")
    e(f"v_mov_b32 v{vT0}, 0xff800000")
    e("s_waitcnt lgkmcnt(0)")
    for t in range(8):
        e(f"{MFMA} {vr(S0,16)}, {vr(KR+4*t,4)}, {vr(Q,4)}, 0")
        e("s_nop 11")
        for i in range(0, 16, 2):
            e(f"v_max3_f32 v{vT0}, v{S0+i}, v{S0+i+1}, v{vT0}")
    e(f"ds_max_f32 v{vT2}, v{vT0}")
    e(f"v_add_u32 v{vQA}, 1024, v{vQA}")
    e(f"v_add_u32 v{vT2}, 128, v{vT2}")
    e(f"s_sub_u32 s{sCNT}, s{sCNT}, 1")
    e(f"s_cmp_lg_u32 s{sCNT}, 0")
    e(f"s_cbranch_scc1 {L1}")
    lds_signal(e, C_S2, vT0)
    lds_wait(e, C_S2, 8, vT0)
    e(f"v_add_u32 v{vQA}, {L_Q}, v{vL16}")
    e(f"s_mov_b32 s{sCNT}, 8")
    L2 = e.label("sp2")
    e(f"{L2}:")
    e(f"ds_read_b128 {vr(Q,4)}, v{vQA}")
    e(f"ds_read_b32 v{vT0}, v{vRM}")
    e("s_waitcnt lgkmcnt(0)")
    for i in range(16):
        e(f"v_sub_f32 v{S1+i}, 0, v{vT0}")
    e("s_nop 1")
    for t in range(8):
        e(f"{MFMA} {vr(S0,16)}, {vr(KR+4*t,4)}, {vr(Q,4)}, {vr(S1,16)}")
        e("s_nop 11")
        for i in range(16):
            e(f"v_exp_f32 v{S0+i}, v{S0+i}")
        for i in range(8):
            e(f"v_cvt_pk_bf16_f32 v{S0+i}, v{S0+2*i}, v{S0+2*i+1}")
        e("s_nop 1")
        e(f"{MFMA} {vr(O,16)}, {vr(VR+8*t,4)}, {vr(S0,4)}, {'0' if t == 0 else vr(O,16)}")
        e(f"{MFMA} {vr(O,16)}, {vr(VR+8*t+4,4)}, {vr(S0+4,4)}, {vr(O,16)}")
    e("s_nop 11")
    a_flush(e)
    e(f"v_add_u32 v{vQA}, 1024, v{vQA}")
    e(f"v_add_u32 v{vRM}, 128, v{vRM}")
    e(f"s_sub_u32 s{sCNT}, s{sCNT}, 1")
    e(f"s_cmp_lg_u32 s{sCNT}, 0")
    e(f"s_cbranch_scc1 {L2}")
    e("s_branch L_aend")

def silu(e, d, t, r):
    e(f"v_mul_f32 v{r+1}, {f32bits(-LOG2E):#x}, v{r}")
    for i in range(0, 16, 2):
        e(f"v_pk_mul_f32 {vr(t+i,2)}, {vr(d+i,2)}, {vr(r,2)} op_sel:[0,1] op_sel_hi:[1,1]")
    for i in range(16):
        e(f"v_exp_f32 v{t+i}, v{t+i}")
    e(f"v_rcp_f32 v{r}, v{r}")
    e("s_nop 0")
    for i in range(0, 16, 2):
        e(f"v_pk_fma_f32 {vr(t+i,2)}, {vr(t+i,2)}, {vr(r,2)}, {vr(r,2)} op_sel_hi:[1,0,0]")
    for i in range(16):
        e(f"v_rcp_f32 v{t+i}, v{t+i}")
    for i in range(0, 16, 2):
        e(f"v_pk_mul_f32 {vr(d+i,2)}, {vr(d+i,2)}, {vr(t+i,2)}")

def ffn_role(e, st, emit_attention):
    vD1A, vD1B = 9, 10
    vTRC, vTA0, vTA1, vXB, vHH = 11, 12, 13, 14, 15
    ACC, AF, BF = 16, 80, 96
    sRING, sSO, sB0, sB1, sGRP = 90, 91, 92, 93, 89
    vPF = BF + 17
    TS = bool(OPT.get("tailst"))
    GS = bool(OPT.get("g1st"))
    st.off = TS or GS
    def tm():
        if TS: st.mark()
    def gm():
        if GS:
            st.off = False; st.mark(); st.off = True
    if DBGT:
        e("s_memrealtime s[98:99]")
    X, T = 96, 112
    rows = ROWS[:4]
    if common.STAMP:
        e(f"s_mov_b32 s{common.S_ST}, s98")
        e(f"s_mov_b32 s{common.S_ST+1}, s96")
    e(f"s_lshl_b32 s{sT3}, s{sF}, 2")
    e(f"s_add_u32 s{sT2}, s{sT2}, s{sT3}")
    row_offsets(e, sT2, 4)
    ln_setup(e, 4, T, sT2)
    e(f"v_lshrrev_b32 v{vT0}, 2, v{vL}")
    e(f"v_and_b32 v{vT0}, 4, v{vT0}")
    e(f"v_and_b32 v{vT1}, 7, v{vL}")
    e(f"v_xor_b32 v{vT1}, v{vT1}, v{vT0}")
    e(f"v_lshlrev_b32 v{vT1}, 4, v{vT1}")
    e(f"v_lshrrev_b32 v{vT0}, 3, v{vL}")
    e(f"v_lshl_add_u32 v{vDA}, v{vT0}, 10, v{vT1}")
    e(f"v_add_u32 v{vDB}, {8192-1024}, v{vDA}")
    common_setup(e)
    e(f"s_lshr_b32 s{sGRP}, s{sCG}, 1")
    e(f"v_mul_u32_u24 v{vD1A}, 3584, v{vT0}")
    e(f"v_add_u32 v{vD1A}, v{vD1A}, v{vT1}")
    e(f"v_add_u32 v{vD1B}, {8*3584-1024}, v{vD1A}")
    e(f"s_mul_i32 s{sRING}, s{sF}, {RINGB}")
    e(f"s_add_u32 s{sRING}, s{sRING}, {L_WQ}")
    tr_common(e, vTRC, vT0, vT1)
    e(f"v_lshrrev_b32 v{vHH}, 5, v{vL}")
    vWA, vXA, vG, vI, vSA = ACC+8, ACC+9, ACC+10, ACC+11, ACC+7
    e(f"v_lshrrev_b32 v{vG}, 4, v{vL}")
    e(f"v_and_b32 v{vI}, 15, v{vL}")
    e(f"v_lshlrev_b32 v{vWA}, 3, v{vI}")
    e(f"v_lshl_add_u32 v{vWA}, v{vG}, 8, v{vWA}")
    e(f"v_add_u32 v{vWA}, {L_R}, v{vWA}")
    e(f"v_mul_u32_u24 v{vXA}, {XS2}, v{vG}")
    e(f"v_lshl_add_u32 v{vXA}, v{vI}, 4, v{vXA}")
    e(f"v_add_u32 v{vXA}, s{rows[0]}, v{vXA}")
    e(f"s_lshr_b32 s{sB0}, s{sGRP}, 1")
    e(f"s_lshl_b32 s{sT1}, s{sRP}, 1")
    e(f"s_add_u32 s{sB0}, s{sB0}, s{sT1}")
    e(f"s_and_b32 s{sB1}, s{sGRP}, 1")
    e(f"s_and_b32 s{sT3}, s{sCG}, 1")
    e(f"v_and_b32 v{vT0}, 1, v{vG}")
    e(f"v_lshlrev_b32 v{vT0}, 9, v{vT0}")
    e(f"v_lshrrev_b32 v{vT1}, 1, v{vG}")
    e(f"v_lshl_add_u32 v{vT0}, v{vT1}, 3, v{vT0}")
    e(f"v_lshl_add_u32 v{vSA}, v{vI}, 4, v{vT0}")
    e(f"s_lshl_b32 s{sSO}, s{sB1}, 8")
    e(f"s_lshl_b32 s{sT0}, s{sB0}, 10")
    e(f"s_add_u32 s{sSO}, s{sSO}, s{sT0}")
    e(f"s_lshl_b32 s{sT0}, s{sT3}, 16")
    assert VF == 0x10000
    e(f"s_add_u32 s{sSO}, s{sSO}, s{sT0}")
    vRA = ACC + 6
    e(f"s_lshl_b32 s{sT0}, s{sGRP}, 6")
    e(f"s_add_u32 s{sT0}, s{sT0}, {L_RT}")
    e(f"v_lshlrev_b32 v{vT0}, 2, v{vI}")
    e(f"v_lshlrev_b32 v{vT1}, 4, v{vG}")
    e(f"s_cmp_eq_u32 s{sT3}, 0")
    e(f"s_cselect_b64 vcc, -1, 0")
    e(f"v_cndmask_b32 v{vRA}, v{vT1}, v{vT0}, vcc")
    e(f"v_add_u32 v{vRA}, s{sT0}, v{vRA}")
    ln_both4(e, X, T, 136, rows, 5)
    e("s_waitcnt vmcnt(1)")
    lds_signal(e, C_KVX, vT0)
    st.mark()
    Lnokv = e.label("nokv")
    e(f"s_cmp_lg_u32 s{sF}, 0")
    e(f"s_cbranch_scc1 {Lnokv}")
    lds_wait(e, C_KVX, 4, vT0, sleep=0)
    FRG = 96
    def kvreads(kk):
        b = FRG + 8*(kk % 4)
        e(f"ds_read_b64_tr_b16 {vr(b,2)}, v{vWA} offset:{kk*1024}")
        e(f"ds_read_b64_tr_b16 {vr(b+2,2)}, v{vWA} offset:{kk*1024+128}")
        e(f"ds_read_b128 {vr(b+4,4)}, v{vXA} offset:{kk*4*XS2}")
    def kvchain(isv):
        for kk in range(16):
            e(f"s_waitcnt lgkmcnt({3*min(3, 15-kk)})")
            b = FRG + 8*(kk % 4)
            c = "0" if kk == 0 else vr(ACC,4)
            if isv: e(f"{M16} {vr(ACC,4)}, {vr(b+4,4)}, {vr(b,4)}, {c}")
            else:   e(f"{M16} {vr(ACC,4)}, {vr(b,4)}, {vr(b+4,4)}, {c}")
            if kk + 4 < 16: kvreads(kk + 4)
    Lv, Lkvs = e.label("kvv"), e.label("kvs")
    RR = ACC + 16
    e(f"ds_read2_b32 {vr(RR,2)}, v{vRA} offset0:0 offset1:1")
    e(f"ds_read2_b32 {vr(RR+2,2)}, v{vRA} offset0:2 offset1:3")
    for kk in range(4): kvreads(kk)
    e(f"s_bitcmp1_b32 s{sCG}, 0")
    e(f"s_cbranch_scc1 {Lv}")
    kvchain(False)
    e("s_nop 7")
    e(f"v_pk_mul_f32 {vr(ACC,2)}, {vr(ACC,2)}, {vr(RR,2)} op_sel_hi:[1,0]")
    e(f"v_pk_mul_f32 {vr(ACC+2,2)}, {vr(ACC+2,2)}, {vr(RR,2)} op_sel_hi:[1,0]")
    e(f"s_branch {Lkvs}")
    e(f"{Lv}:")
    kvchain(True)
    e("s_nop 7")
    e(f"v_pk_mul_f32 {vr(ACC,2)}, {vr(ACC,2)}, {vr(RR,2)}")
    e(f"v_pk_mul_f32 {vr(ACC+2,2)}, {vr(ACC+2,2)}, {vr(RR+2,2)}")
    e(f"{Lkvs}:")
    e(f"v_cvt_pk_bf16_f32 v{ACC}, v{ACC}, v{ACC+1}")
    e(f"v_cvt_pk_bf16_f32 v{ACC+1}, v{ACC+2}, v{ACC+3}")
    e(f"buffer_store_dwordx2 {vr(ACC,2)}, v{vSA}, {sr(sWS,4)}, s{sSO} offen sc1")
    if WQAT == "s" or len(WQAT) == 3: lds_signal(e, C_KVS, vT0)
    st.mark()
    assert ACC + 12 == 28
    e(f"v_dot2_f32_bf16 v30, v{ACC}, v{ACC}, 0")
    e(f"v_dot2_f32_bf16 v30, v{ACC+1}, v{ACC+1}, v30")
    e(f"s_lshl_b32 s{sT0}, s{sB0}, 2")
    e(f"s_lshl_b32 s{sT1}, s{sB1}, 1")
    e(f"s_add_u32 s{sT0}, s{sT0}, s{sT1}")
    e(f"s_add_u32 s{sT0}, s{sT0}, s{sT3}")
    e(f"s_lshl_b32 s{sT0}, s{sT0}, 7")
    e(f"s_add_u32 s{sT0}, s{sT0}, {KVFL}")
    swap_op(e, "v_add_f32", 16, 30, ACC+3)
    swap_op(e, "v_add_f32", 32, 30, ACC+3)
    dpp_max16(e, 30)
    e(f"s_sub_u32 s{sT1}, s{sT3}, 1")
    e(f"v_and_b32 v30, s{sT1}, v30")
    e(f"v_mov_b32 v{vT1}, 0")
    e("s_waitcnt vmcnt(1)")
    e(f"v_add_co_u32 v28, vcc, 1, v28")
    e("s_nop 1")
    e(f"v_addc_co_u32 v29, vcc, 0, v29, vcc")
    e(f"v_mov_b32 v31, v28")
    e("s_mov_b64 exec, 1")
    e("s_waitcnt vmcnt(0)")
    e(f"buffer_store_dwordx4 v[28:31], v{vT1}, {sr(sWS,4)}, s{sT0} offen sc1")
    e("s_mov_b64 exec, -1")
    e(f"ds_write_b64 v{vCT}, v[28:29] offset:{C_NON}")
    lds_signal(e, C_KVF, vT0)
    st.mark()
    Lkvj = e.label("kvj")
    e(f"s_branch {Lkvj}")
    e(f"{Lnokv}:")
    if not st.off: st.n -= 2
    st.mark(); st.mark()
    e(f"{Lkvj}:")
    st.mark()
    def filler():
        e(f"s_lshl_b32 s{sT0}, s{sRP}, 3")
        e(f"s_add_u32 s{sT0}, s{sT0}, s{sF}")
        e(f"s_lshl_b32 s{sT0}, s{sT0}, 3")
        e(f"s_add_u32 s{sT0}, s{sT0}, s{sCG}")
        e(f"s_lshl_b32 s{sT0}, s{sT0}, 10")
        e(f"s_add_u32 s{sT0}, s{sT0}, {OF}")
        e(f"s_add_u32 s{sT1}, s{sT0}, 32768")
        e(f"v_mov_b64 {vr(BF+60,2)}, -1")
        e(f"v_mov_b64 {vr(BF+62,2)}, -1")
        e(f"buffer_store_dwordx4 {vr(BF+60,4)}, v{vL16}, {sr(sWS,4)}, s{sT0} offen sc1")
        e(f"buffer_store_dwordx4 {vr(BF+60,4)}, v{vL16}, {sr(sWS,4)}, s{sT1} offen sc1")
        if FAST:
            Lf = e.label("nf2")
            e(f"s_cmp_lg_u32 s{sF}, 3")
            e(f"s_cbranch_scc1 {Lf}")
            e(f"s_add_u32 s{sT0}, s{sT0}, {OF2 - OF}")
            e(f"s_add_u32 s{sT1}, s{sT1}, {OF2 - OF}")
            e(f"buffer_store_dwordx4 {vr(BF+60,4)}, v{vL16}, {sr(sWS,4)}, s{sT0} offen sc1")
            e(f"buffer_store_dwordx4 {vr(BF+60,4)}, v{vL16}, {sr(sWS,4)}, s{sT1} offen sc1")
            e(f"{Lf}:")
    if not FILLATE: filler()
    e(f"s_and_b32 s{sT0}, s{sF}, 1")
    e(f"s_mul_i32 s{sT0}, s{sT0}, {XRT}")
    e(f"v_and_b32 v{vXB}, 31, v{vL}")
    e(f"v_lshlrev_b32 v{vXB}, 4, v{vXB}")
    e(f"v_mul_u32_u24 v{vT0}, {XS2}, v{vHH}")
    e(f"v_add_u32 v{vXB}, v{vXB}, v{vT0}")
    e(f"v_add_u32 v{vT2}, s{sT0}, v{vXB}")
    e(f"s_lshr_b32 s{sT1}, s{sF}, 1")
    e(f"s_lshl_b32 s{sT1}, s{sT1}, 6")
    e(f"v_lshl_add_u32 v{vTA0}, v{vHH}, 10, v{vTRC}")
    e(f"v_xor_b32 v{vTA0}, s{sT1}, v{vTA0}")
    e(f"v_add_u32 v{vTA0}, {L_WQ}, v{vTA0}")
    NS = 5
    if len(WQAT) == 3:
        Lgo = e.label("wqgo")
        for f in range(1, 4):
            if WQAT[f-1] == "l":
                e(f"s_cmp_eq_u32 s{sF}, {f}")
                e(f"s_cbranch_scc1 {Lgo}")
        lds_wait(e, C_KVS, 1, vT0, sleep=1)
        for f in range(1, 4):
            if WQAT[f-1] == "s":
                e(f"s_cmp_eq_u32 s{sF}, {f}")
                e(f"s_cbranch_scc1 {Lgo}")
        lds_wait(e, C_KVF, 1, vT0, sleep=1)
        e(f"{Lgo}:")
    elif WQAT != "l": lds_wait(e, *((C_KVS, 1) if WQAT == "s" else (C_KVF, 1)), vT0, sleep=1)
    stage_w512(e, 6, L_WQ, sF, 4, sT1)
    e("s_waitcnt vmcnt(0)")
    lds_signal(e, C_WQ, vT0)
    lds_wait(e, C_WQ, 4, vT0, sleep=1)
    lds_wait(e, C_RS, 8, vT0, sleep=1)
    def row_scale(dst):
        e(f"s_and_b32 s{sT0}, s{sF}, 1")
        e(f"s_lshl_b32 s{sT0}, s{sT0}, 7")
        e(f"s_add_u32 s{sT0}, s{sT0}, {L_RT}")
        e(f"v_and_b32 v{dst}, 31, v{vL}")
        e(f"v_lshl_add_u32 v{dst}, v{dst}, 2, s{sT0}")
        e(f"ds_read_b32 v{dst}, v{dst}")
    row_scale(AF)
    if QFIRST:
        Lq = e.label("qa")
        e(f"s_cmp_lt_u32 s{sF}, 2")
        e(f"s_cbranch_scc1 {Lq}")
        lds_wait(e, C_QW, 2, vT0, sleep=2)
        e(f"{Lq}:")
    st.mark()
    def qreads(ks):
        b = BF + 8*(ks % NS)
        e(f"ds_read_b64_tr_b16 {vr(b,2)}, v{vTA0} offset:{ks*2048}")
        e(f"ds_read_b64_tr_b16 {vr(b+2,2)}, v{vTA0} offset:{ks*2048+512}")
        e(f"ds_read_b128 {vr(b+4,4)}, v{vT2} offset:{ks*XS1}")
    for ks in range(NS): qreads(ks)
    for ks in range(32):
        e(f"s_waitcnt lgkmcnt({3*min(NS-1, 31-ks)})")
        b = BF + 8*(ks % NS)
        e(f"{MFMA} {vr(ACC,16)}, {vr(b,4)}, {vr(b+4,4)}, {'0' if ks == 0 else vr(ACC,16)}")
        if ks + NS < 32: qreads(ks + NS)
    e(f"s_and_b32 s{sT0}, s{sF}, 1")
    e(f"s_lshl_b32 s{sT0}, s{sT0}, 10")
    e(f"s_lshr_b32 s{sT1}, s{sF}, 1")
    e(f"s_lshl_b32 s{sT1}, s{sT1}, 12")
    e(f"s_add_u32 s{sT0}, s{sT0}, s{sT1}")
    e(f"s_add_u32 s{sT0}, s{sT0}, {L_Q}")
    e(f"v_add_u32 v{vT0}, s{sT0}, v{vL16}")
    e(f"v_mul_f32 v{AF}, {f32bits(QSCALE):#x}, v{AF}")
    e("s_nop 3")
    for i in range(0, 16, 2):
        e(f"v_pk_mul_f32 {vr(ACC+i,2)}, {vr(ACC+i,2)}, {vr(AF,2)} op_sel_hi:[1,0]")
    for i in range(8):
        e(f"v_cvt_pk_bf16_f32 v{ACC+i}, v{ACC+2*i}, v{ACC+2*i+1}")
    e(f"ds_write_b128 v{vT0}, {vr(ACC,4)}")
    e(f"ds_write_b128 v{vT0}, {vr(ACC+4,4)} offset:2048")
    lds_signal(e, C_QW, vT0)
    if OPT.get("qst2"): st.mark()
    if FILLATE: filler()
    e(f"s_setprio {FPRIO}")
    for h in range(2):
        e(f"v_dot2_f32_bf16 v{ACC+8+h}, v{ACC+4*h}, v{ACC+4*h}, 0")
    for i in range(1, 4):
        for h in range(2):
            e(f"v_dot2_f32_bf16 v{ACC+8+h}, v{ACC+4*h+i}, v{ACC+4*h+i}, v{ACC+8+h}")
    for i in range(4):
        e(f"v_mov_b32 v{ACC+12+i}, 0")
    e(f"v_permlane32_swap_b32 v{ACC+8}, v{ACC+9}")
    e(f"s_lshl_b32 s{sT0}, s{sF}, 10")
    e(f"v_add_f32 v{ACC+8}, v{ACC+8}, v{ACC+9}")
    e(f"s_add_u32 s{sT0}, s{sT0}, {L_L}")
    dpp_max16(e, ACC+8)
    e(f"v_add_u32 v{vT1}, s{sT0}, v{vL16}")
    e(f"s_mov_b32 exec_lo, 0x00010001")
    e(f"s_mov_b32 exec_hi, 0x00010001")
    e(f"ds_max_u32 v{vCT}, v{ACC+8} offset:{C_QMAX}")
    e("s_mov_b64 exec, -1")
    lds_wait(e, C_QW, 4, vT0)
    e(f"ds_write_b128 v{vT1}, {vr(ACC+12,4)}")
    e("s_waitcnt vmcnt(0)")
    lds_signal(e, C_Z, vT0)
    if not OPT.get("qst2"): st.mark()
    e(f"s_setprio {FPRIO}")
    e("s_branch L_g1")
    emit_attention()
    e("; ---- FFN waves: GEMM1 (h), GEMM2 (f), reduction, silu, o @ wo, output ----"); e("L_g1:")
    if OPT.get("pure"):
        for i in range(8): st.mark()
        st.mark(True)
        st.flush(sW, sWS, vT0, vT1, 12)
        e("s_endpgm")
    abl_start = len(e.lines)
    set_srd(e, sWA, 16, 512*1792*2)
    F_ID, F_D = 144, 148
    sPQ, sRT2, sP1 = 88, 94, 55
    e(f"s_mov_b32 s{sPQ}, s{sF}")
    make_identity(e, F_ID, vT0, vT1)
    lds_wait(e, C_KVL, max(1, int(OPT.get("gate", 8))), vT0, sleep=4)
    fetch_nonce(e, AF)
    st.mark()
    if PF1:
        e(f"s_lshr_b32 s{sT0}, s2, 3")
        e(f"s_mul_i32 s{sT0}, s{sT0}, {448*128}")
        e(f"s_lshl_b32 s{sT1}, s{sF}, 14")
        e(f"s_add_u32 s{sT0}, s{sT0}, s{sT1}")
        e(f"s_add_u32 s{sT1}, s{sT0}, 8192")
        e(f"buffer_load_dword v{vPF}, v{vTA1}, {sr(sWA,4)}, s{sT0} offen sc1")
        e(f"buffer_load_dword v{vPF}, v{vTA1}, {sr(sWA,4)}, s{sT1} offen sc1")
    vPO, sP2, sPO_ = BF + 16, 54, 89
    sW2, sWO = 44, 8
    set_srd(e, sW2, 18, 512*1792*2)
    set_srd(e, sWO, 12, 512*512*2)
    def prefetch(i):
        if i < 2:
            e(f"buffer_load_dword v{vPF}, v{vPO}, {sr(sW2,4)}, s{sP2} offen sc1")
            e(f"s_add_u32 s{sP2}, s{sP2}, 8192")
        else:
            e("s_mov_b32 exec_hi, 0")
            e(f"buffer_load_dword v{vPF}, v{vPO}, {sr(sWO,4)}, s{sPO_} offen sc1")
            e("s_mov_b64 exec, -1")
    PFL = [0, 1, 2] if PF2 else [2]
    e(f"v_lshlrev_b32 v{vPO}, 7, v{vL}")
    e(f"s_lshr_b32 s{sT0}, s2, 3")
    e(f"s_mul_i32 s{sP2}, s{sT0}, {448*128}")
    e(f"s_lshl_b32 s{sT1}, s{sF}, 14")
    e(f"s_add_u32 s{sP2}, s{sP2}, s{sT1}")
    e(f"s_lshl_b32 s{sPO_}, s{sT0}, 14")
    e(f"s_lshl_b32 s{sT1}, s{sF}, 12")
    e(f"s_add_u32 s{sPO_}, s{sPO_}, s{sT1}")
    D, DB = 6, 6
    sJ, sR, sSB, sSG = 84, 85, 86, 87
    GP = OPT.get("gp", "11")
    e(f"s_lshr_b32 s{sR}, s2, 6" if ROT else f"s_mov_b32 s{sR}, 0")
    e(f"s_lshl_b32 s{sJ}, s{sCG}, 2")
    e(f"s_add_u32 s{sJ}, s{sJ}, s{sF}")
    e(f"s_mul_i32 s{sSB}, s{sF}, {448*1024}")
    e(f"s_lshl_b32 s{sT0}, s{sCG}, 7")
    e(f"s_add_u32 s{sSB}, s{sSB}, s{sT0}")
    def seg_off(dst, sidx, per_seg, base):
        return [f"s_add_u32 s{sSG}, s{sR}, {sidx}", f"s_and_b32 s{sSG}, s{sSG}, 3", f"s_mul_i32 s{sSG}, s{sSG}, {per_seg}", f"s_add_u32 s{dst}, s{sSG}, s{base}"]
    def dma_l(u):
        if u < 32:
            adv = [f"s_add_u32 s{sSO}, s{sSO}, {16*3584}"] if u else [f"s_lshl_b32 s{sSO}, s{sJ}, 7"]
            va, vb, srd_ = vD1A, vD1B, sWA
        else:
            g = u - 32
            adv = seg_off(sSO, g // 7, 7*16384, sSB) if g % 7 == 0 else [f"s_add_u32 s{sSO}, s{sSO}, 16384"]
            va, vb, srd_ = vDA, vDB, sW2
        return [[f"s_add_u32 m0, s{sRING}, {2048*(u % D)}"] + adv + [f"buffer_load_dwordx4 v{va}, {sr(srd_,4)}, s{sSO} offen lds"],
                [f"buffer_load_dwordx4 v{vb}, {sr(srd_,4)}, s{sSO} offen offset:1024 lds"]]
    def dma(u):
        for grp in dma_l(u):
            for l in grp: e(l)
    def areads_l(u):
        b = AF + 8*(u & 1)
        o = 2048*(u % D)
        second = 512 if u < 32 else 1024
        return [f"ds_read_b64_tr_b16 {vr(b,2)}, v{vTA0} offset:{o}", f"ds_read_b64_tr_b16 {vr(b+2,2)}, v{vTA0} offset:{o+second}",
                f"ds_read_b64_tr_b16 {vr(b+4,2)}, v{vTA1} offset:{o}", f"ds_read_b64_tr_b16 {vr(b+6,2)}, v{vTA1} offset:{o+second}"]
    def mfma_l(u, bb0):
        a = AF + 8*(u & 1)
        out = []
        for (i, j) in ((0, 0), (0, 1), (1, 1), (1, 0)):
            d = ACC + 16*(2*i+j)
            out.append(f"{MFMA} {vr(d,16)}, {vr(a+4*i,4)}, {vr(bb0+4*j,4)}, {'0' if u in (0, 32) else vr(d,16)}")
        return out
    def weave(ms, fill):
        for i in range(4):
            e(ms[i])
            for l in fill[i]: e(l)
    def try_pub(p):
        e(f"s_setprio {FPRIO}")
        e(f"s_call_b64 {sr(sRT2,2)}, L_ftry")
        e(f"s_setprio {p}")
    log = []
    def wait_for(items):
        last = max(i for i, it in enumerate(log) if it in items) if any(it in items for it in log) else -1
        return f"s_waitcnt vmcnt({len(log) - 1 - last})"
    Lskip1, Lg1d = e.label("g1skip"), e.label("g1d")
    e(f"s_cmp_eq_u32 s{sCG}, 7")
    e(f"s_cbranch_scc1 {Lskip1}")
    for u in range(D):
        dma(u); log += [("A", u)]*2
    e(f"v_lshl_add_u32 v{vTA0}, v{vHH}, 10, v{vTRC}")
    e(f"v_add_u32 v{vTA0}, s{sRING}, v{vTA0}")
    e(f"v_xor_b32 v{vTA1}, 64, v{vTA0}")
    e(f"v_add_u32 v0, {XRT}, v{vXB}")
    def xreads_l(k):
        b = BF + 8*(k & 1)
        return [f"ds_read_b128 {vr(b,4)}, v{vXB} offset:{k*XS1}", f"ds_read_b128 {vr(b+4,4)}, v0 offset:{k*XS1}"]
    TRY1 = [int(x) for x in OPT.get("try1", "99").split("+")]
    e(f"s_setprio {GP[0]}")
    gm()
    e(wait_for([("A", 0)]))
    for l in areads_l(0) + xreads_l(0): e(l)
    for k in range(32):
        if k % 4 == 0: gm()
        if k in TRY1: try_pub(GP[0])
        e("s_waitcnt lgkmcnt(0)")
        fill = [[], [], [], []]
        if k + 1 < 32:
            r = areads_l(k + 1)
            fill[0] = xreads_l(k + 1) + [wait_for([("A", k + 1)])] + r[0:2]
            fill[1] = r[2:4]
        if CONT or k + D < 32:
            fill[2], fill[3] = dma_l(k + D); log += [("A", k + D)]*2
        weave(mfma_l(k, BF + 8*(k & 1)), fill)
        if k in (4, 11, 18) and (k - 4) // 7 in PFL:
            prefetch((k - 4) // 7); log.append(("P", k))
    e(f"s_setprio {FPRIO}")
    e(f"s_mul_i32 s{sT0}, s{sRP}, {2*112*1024}")
    e(f"s_lshl_b32 s{sT1}, s{sJ}, 12")
    e(f"s_add_u32 s{sT0}, s{sT0}, s{sT1}")
    e(f"s_add_u32 s{sT0}, s{sT0}, {HF}")
    e(f"s_add_u32 s{sT1}, s{sT0}, {112*1024}")
    gm()
    e("s_nop 6")
    for (a, bb) in ((0, 0), (0, 1), (1, 1), (1, 0)):
        d = ACC + 16*(2*a+bb)
        for i in range(8):
            e(f"v_cvt_pk_bf16_f32 v{d+i}, v{d+2*i}, v{d+2*i+1}")
        for i in range(8):
            e(f"v_pk_max_i16 v{d+i}, v{d+i}, 0")
        for half in range(2):
            e(f"buffer_store_dwordx4 {vr(d+4*half,4)}, v{vL16}, {sr(sWS,4)}, s{sT1 if bb else sT0} offen offset:{(2*a+half)*1024} sc1")
    gm()
    e(f"s_branch {Lg1d}")
    e(f"{Lskip1}:")
    for i in PFL: prefetch(i)
    if CONT:
        for u in range(32, 32 + D): dma(u)
    e(f"{Lg1d}:")
    e(f"s_lshl_b32 s{sT0}, s{sRP}, 5")
    e(f"s_add_u32 s{sT0}, s{sT0}, s{sJ}")
    e(f"s_lshl_b32 s{sT0}, s{sT0}, 7")
    e(f"s_add_u32 s{sT0}, s{sT0}, {HFL}")
    flag_set(e, AF, sT0)
    lds_signal(e, C_G1, vT0)
    gm()
    st.mark()
    if OPT.get("tb", "1") == "1": e(f"s_call_b64 {sr(sRT2,2)}, L_ftry")
    if not CONT:
        for u in range(32, 32 + D): dma(u)
    lds_wait(e, C_G1, 4, vT0, sleep=2)
    WOL = int(OPT.get("wol", 0))
    if not WOL: stage_w512(e, None, L_XN, sF, 4, sB0, srd_=sWO)
    Lc7 = e.label("c7")
    e(f"s_cmp_lg_u32 s{sCG}, 7")
    e(f"s_cbranch_scc1 {Lc7}")
    e(f"s_cmp_ge_u32 s{sPQ}, 4")
    e(f"s_cbranch_scc1 {Lc7}")
    e(f"s_call_b64 {sr(sRT2,2)}, L_fpub")
    e(f"{Lc7}:")
    if OPT.get("tb", "1") == "2": e(f"s_call_b64 {sr(sRT2,2)}, L_ftry")
    e(f"s_lshr_b32 s{sT1}, s{sF}, 1")
    e(f"s_lshl_b32 s{sT1}, s{sT1}, 6")
    e(f"v_lshl_add_u32 v{vTA0}, v{vHH}, 9, v{vTRC}")
    e(f"v_xor_b32 v{vXB}, s{sT1}, v{vTA0}")
    e(f"v_add_u32 v{vTA0}, s{sRING}, v{vXB}")
    e(f"v_xor_b32 v{vTA1}, 64, v{vTA0}")
    sHB, sHD = 89, 84
    e(f"s_mul_i32 s{sHB}, s{sRP}, {2*112*1024}")
    e(f"s_mul_i32 s{sT1}, s{sF}, {28*1024}")
    e(f"s_add_u32 s{sHB}, s{sHB}, s{sT1}")
    e(f"s_add_u32 s{sHB}, s{sHB}, {HF}")
    e(f"s_bitcmp1_b32 s{sF}, 0")
    e(f"s_cselect_b32 s{sT0}, {112*1024}, 0")
    e(f"s_add_u32 s{sHB}, s{sHB}, s{sT0}")
    e(f"s_lshl_b32 s{sT0}, s{sT0}, 1")
    e(f"s_sub_u32 s{sHD}, {112*1024}, s{sT0}")
    e(f"s_mul_i32 s{sT1}, s{sF}, 7")
    e(f"s_add_u32 s{sT0}, s{sF}, 28")
    e(f"v_add_u32 v{vT0}, s{sT1}, v{vL}")
    e(f"v_mov_b32 v{vT1}, s{sT0}")
    e(f"v_cmp_gt_u32 vcc, 7, v{vL}")
    e(f"s_lshl_b32 s{sT0}, s{sRP}, 12")
    e(f"s_add_u32 s{sT0}, s{sT0}, {HFL}")
    e(f"v_cndmask_b32 v{vT0}, v{vT1}, v{vT0}, vcc")
    e(f"v_lshlrev_b32 v{vT0}, 7, v{vT0}")
    flag_poll(e, AF + 8, vT0, sT0, sleep=int(OPT.get("hsleep", 8)))
    st.mark()
    def bload_l(g):
        out = []
        j = g % 7
        if j == 0:
            out += seg_off(sB0, g // 7, 7*1024, sHB) + [f"s_add_u32 s{sB1}, s{sB0}, s{sHD}"]
        elif j == 4:
            out += [f"s_add_u32 s{sB0}, s{sB0}, 4096", f"s_add_u32 s{sB1}, s{sB1}, 4096"]
        b = BF + 8*(g % DB)
        return out + [f"buffer_load_dwordx4 {vr(b,4)}, v{vL16}, {sr(sWS,4)}, s{sB0} offen offset:{(j%4)*1024} sc1",
                      f"buffer_load_dwordx4 {vr(b+4,4)}, v{vL16}, {sr(sWS,4)}, s{sB1} offen offset:{(j%4)*1024} sc1"]
    log.clear()
    for g in range(DB):
        for l in bload_l(g): e(l)
        log += [("B", g)]*2
    lds_signal(e, C_HP, vT0)
    TRY = [int(x) for x in OPT.get("try", "0+6+12+18+24").split("+")]
    for l in areads_l(32): e(l)
    for g in range(28):
        u = 32 + g
        if g in TRY: try_pub(GP[1])
        e(wait_for([("B", g)]) + " lgkmcnt(0)")
        fill = [[], [], [], []]
        if g + 1 < 28:
            fill[0] = [wait_for([("A", u + 1)])] + areads_l(u + 1)
        if g + D < 28:
            fill[1], fill[2] = dma_l(u + D); log += [("A", u + D)]*2
        if g + DB < 28:
            fill[3] = bload_l(g + DB); log += [("B", g + DB)]*2
        if WOL and g >= 22:
            def wopair(i):
                pre = [f"s_lshl_b32 s{sSO}, s{sF}, 17", f"s_lshl_b32 s{sSG}, s{sCG}, 7", f"s_add_u32 s{sSO}, s{sSO}, s{sSG}", f"s_lshl_b32 s{sSG}, s{sF}, 14"] if i == 0 else []
                return pre + [f"s_add_u32 m0, s{sSG}, {L_XN + 2048*i}", (f"s_add_u32 s{sSO}, s{sSO}, 16384" if i else "s_nop 0"),
                              f"buffer_load_dwordx4 v{vDA}, {sr(sWO,4)}, s{sSO} offen lds",
                              f"buffer_load_dwordx4 v{vDB}, {sr(sWO,4)}, s{sSO} offen offset:1024 lds"]
            if g < 26:
                fill[1] = wopair(2*(g-22)); fill[3] = wopair(2*(g-22)+1); log += [("W", g)]*4
        weave(mfma_l(u, BF + 8*(g % DB)), fill)
    if GP: e(f"s_setprio {FPRIO}")
    st.off = GS
    st.mark()
    if ABL:
        keep = []
        for l in e.lines[abl_start:]:
            t = l.strip()
            if "m" in ABL and t.startswith("v_mfma"): continue
            if "g" in ABL and t.startswith("buffer_load_dwordx4"): continue
            if "l" in ABL and (t.startswith("ds_read_b64_tr") or t.startswith("ds_read_b128")): continue
            if "v" in ABL and (t.startswith("v_cvt_pk") or t.startswith("v_pk_max") or t.startswith("buffer_store_dwordx4")): continue
            keep.append(l)
        e.lines[abl_start:] = keep
    XR, G = AF, ACC
    vXO = vD1A
    e(f"s_lshr_b32 s{sT0}, s{sF}, 1")
    e(f"s_lshl_b32 s{sT1}, s{sCG}, 1")
    e(f"s_add_u32 s{sT0}, s{sT0}, s{sT1}")
    e(f"s_lshl_b32 s{sSO}, s{sT0}, 6")
    e(f"s_and_b32 s{sT0}, s{sF}, 1")
    e(f"s_lshl_b32 s{sT1}, s{sRP}, 1")
    e(f"s_add_u32 s{sB1}, s{sT0}, s{sT1}")
    e(f"s_lshl_b32 s{sB0}, s{sB1}, 15")
    e(f"s_add_u32 s{sSO}, s{sSO}, s{sB0}")
    e(f"s_add_u32 s{sB0}, s{sB0}, {OF}")
    e(f"v_add_u32 v{vT0}, s{sRING}, v{vL16}")
    for l in (1, 3, 2):
        for i in range(4):
            e(f"ds_write_b128 v{vT0}, {vr(ACC+16*l+4*i,4)} offset:{4096*(l-1)+1024*i}")
    lds_signal(e, C_RED, vT2)
    if WOL:
        e("s_waitcnt vmcnt(0)")
        lds_signal(e, C_WO, vT2)
    tm()
    LOWP = OPT.get("lowp", "0")
    Lp2, Lp3 = e.label("p2"), e.label("p3")
    e(f"{Lp2}:")
    e(f"s_cmp_ge_u32 s{sPQ}, 7")
    e(f"s_cbranch_scc1 {Lp3}")
    e(f"s_call_b64 {sr(sRT2,2)}, L_fpub")
    e(f"s_branch {Lp2}")
    e(f"{Lp3}:")
    R1 = [96 + 4*n for n in range(16)]
    R2 = [64, 68, 72, 76, 88, 92, 160, 164]
    R3 = R1[:8]
    vFO, vCA, vWO = vD1B, vTA0, vXB
    def oloads(R, first):
        e(f"s_add_u32 s{sT0}, s{sB0}, {first*1024}")
        for n, r in enumerate(R):
            if n % 4 == 0 and n: e(f"s_add_u32 s{sT0}, s{sT0}, 4096")
            e(f"buffer_load_dwordx4 {vr(r,4)}, v{vL16}, {sr(sWS,4)}, s{sT0} offen offset:{(n%4)*1024} sc1")
    def peek(n, first, sleep):
        L, D = e.label("pk"), e.label("pkd")
        e(f"v_min_u32 v{vFO}, {n-1}, v{vL}")
        e(f"v_lshlrev_b32 v{vFO}, 10, v{vFO}")
        e(f"s_add_u32 s{sT1}, s{sB0}, {first*1024}")
        e(f"s_mov_b32 s{sSP}, {SPIN_MAX}")
        e(f"{L}:")
        e(f"buffer_load_dword v{vT1}, v{vFO}, {sr(sWS,4)}, s{sT1} offen sc1")
        e(f"s_sub_u32 s{sSP}, s{sSP}, 1")
        e("s_waitcnt vmcnt(0)")
        e(f"v_cmp_eq_u32 vcc, -1, v{vT1}")
        e(f"s_cbranch_vccz {D}")
        e(f"s_sleep {sleep}")
        e(f"s_cbranch_scc0 {L}")
        e(f"{D}:")
    def verify(R, first, younger):
        L, D = e.label("vf"), e.label("vfd")
        e(f"s_mov_b32 s{sSP}, {SPIN_MAX}")
        e(f"s_waitcnt vmcnt({younger})")
        e(f"{L}:")
        regs = [r + i for r in R for i in range(4 if FULLCHK else 1)]
        e(f"v_max_u32 v{vT1}, v{regs[0]}, v{regs[1]}")
        for i in range(2, len(regs), 2):
            e(f"v_max3_u32 v{vT1}, v{regs[i]}, v{regs[i+1]}, v{vT1}")
        e(f"v_cmp_eq_u32 vcc, -1, v{vT1}")
        e(f"s_cbranch_vccz {D}")
        e("s_sleep 4")
        oloads(R, first)
        e("s_waitcnt vmcnt(0)")
        e(f"s_sub_u32 s{sSP}, s{sSP}, 1")
        e(f"s_cbranch_scc0 {L}")
        e(f"{D}:")
    lds_wait(e, C_HP, 4, vT2, sleep=2)
    oloads(R1, 0)
    e(f"v_and_b32 v{vXO}, 31, v{vL}")
    e(f"v_lshlrev_b32 v{vXO}, 10, v{vXO}")
    e(f"v_lshl_add_u32 v{vXO}, v{vHH}, 3, v{vXO}")
    for q in range(4):
        e(f"buffer_load_dwordx2 {vr(XR+2*q,2)}, v{vXO}, {sr(sX,4)}, s{sSO} offen offset:{16*q}")
    RA = 88
    for l in range(1, 4):
        e(f"s_xor_b32 s{sT0}, s{sF}, {l}")
        e(f"s_mul_i32 s{sT0}, s{sT0}, {RINGB}")
        e(f"s_add_u32 s{sT0}, s{sT0}, {L_WQ + 4096*(l-1)}")
        e(f"v_add_u32 v{RA+l}, s{sT0}, v{vL16}")
    if OPT.get("lowat") == "r": e(f"s_setprio {LOWP}")
    tm()
    lds_wait(e, C_RED, 4, vT2, sleep=2)
    tm()
    for l in range(1, 4):
        for i in range(4):
            e(f"ds_read_b128 {vr(ACC+16*l+4*i,4)}, v{RA+l} offset:{1024*i}")
    e("s_waitcnt lgkmcnt(0)")
    tm()
    for i in range(0, 16, 2):
        e(f"v_pk_add_f32 {vr(ACC+i,2)}, {vr(ACC+i,2)}, {vr(ACC+16+i,2)}")
        e(f"v_pk_add_f32 {vr(ACC+32+i,2)}, {vr(ACC+32+i,2)}, {vr(ACC+48+i,2)}")
    for i in range(0, 16, 2):
        e(f"v_pk_add_f32 {vr(ACC+i,2)}, {vr(ACC+i,2)}, {vr(ACC+32+i,2)}")
    SA, AW = 32, 48
    assert L_XN == 0
    e(f"s_and_b32 s{sT0}, s{sF}, 1")
    e(f"s_lshl_b32 s{sT0}, s{sT0}, 9")
    e(f"s_add_u32 s{sT0}, s{sT0}, {L_L + 6*512}")
    e(f"v_mov_b32 v{vCA}, s{sT0}")
    def woread(dst, head):
        e(f"ds_read_b64_tr_b16 {vr(dst,2)}, v{vWO} offset:{head*2048}")
        e(f"ds_read_b64_tr_b16 {vr(dst+2,2)}, v{vWO} offset:{head*2048+1024}")
    seqA = [(i, c) for i in range(4) for c in range(8)]
    RALL = R1 + R2 + R3
    tm()
    oloads(R2, 16)
    if WOL: lds_wait(e, C_WO, 4, vT2, sleep=2)
    for n in range(4): woread(AW + 4*n, 4*seqA[n][1] + seqA[n][0])
    row_scale(4)
    e("s_waitcnt lgkmcnt(0)")
    LOWAT = OPT.get("lowat", "s")
    assert LOWAT == "s"
    if LOWAT == "s": e(f"s_setprio {LOWP}")
    if LOWAT not in "zy": silu(e, ACC, SA, 4)
    st.mark()
    if LOWAT == "v": e(f"s_setprio {LOWP}")
    verify(R1, 0, 8)
    verify(R2, 16, 0)
    if LOWAT in "my": e(f"s_setprio {LOWP}")
    def mm(n0, n1):
        for n in range(n0, n1):
            e(f"s_waitcnt lgkmcnt({2*min(3, 31-n)})")
            e(f"{MFMA} {vr(SA,16)}, {vr(AW+4*(n%4),4)}, {vr(RALL[n],4)}, {'0' if n == 0 else vr(SA,16)}")
            if n + 4 < 32: woread(AW + 4*(n%4), 4*seqA[n+4][1] + seqA[n+4][0])
    XF = 64
    if FAST:
        sM, sA, sB = sP1, sB1, sRING
        NE = int(OPT.get("ne", 16))
        mm(0, NE)
        e(f"s_mov_b32 s{sM}, 0xff")
        e(f"s_add_u32 s{sA}, s{sB0}, {24*1024 + OF2 - OF}")
        e(f"s_add_u32 s{sB}, s{sA}, 4096")
        def rnd_loads(masked):
            for c in range(8):
                L = e.label("gs")
                if masked:
                    e(f"s_bitcmp1_b32 s{sM}, {c}")
                    e(f"s_cbranch_scc0 {L}")
                e(f"buffer_load_dwordx4 {vr(R3[c],4)}, v{vL16}, {sr(sWS,4)}, s{sA if c < 4 else sB} offen offset:{(c%4)*1024} sc1")
                if masked: e(f"{L}:")
        rnd_loads(False)
        if LOWAT == "n": e(f"s_setprio {LOWP}")
        mm(NE, 24)
        if LOWAT in "zy":
            e(f"s_setprio {LOWP}")
            silu(e, ACC, 128, 4)
        st.mark()
        for q in range(8):
            e(f"v_lshlrev_b32 v{XF+2*q}, 16, v{XR+q}")
            e(f"v_and_b32 v{XF+2*q+1}, 0xffff0000, v{XR+q}")
        tm()
        Lp, Lpd = e.label("gm"), e.label("gmd")
        e(f"s_mov_b32 s{sPQ}, {SPIN_MAX}")
        e("s_waitcnt vmcnt(0)")
        e(f"v_max_u32 v{vT1}, v{R3[0]}, v{R3[0]+1}")
        for i in range(2, 32, 2):
            e(f"v_max3_u32 v{vT1}, v{R3[0]+i}, v{R3[0]+i+1}, v{vT1}")
        e(f"v_cmp_eq_u32 vcc, -1, v{vT1}")
        e(f"s_cbranch_vccz {Lpd}")
        if OPT.get("gall", "8") != "x":
            La = e.label("ga")
            lds_wait(e, OCNT, CNT8, vT1, sleep=2, vaddr=vCA)
            e("s_setprio 3")
            e(f"s_mov_b32 s{sT1}, {int(OPT.get('gall', 8))}")
            e(f"{La}:")
            rnd_loads(False)
            e("s_waitcnt vmcnt(0)")
            e(f"v_max_u32 v{vT1}, v{R3[0]}, v{R3[0]+1}")
            for i in range(2, 32, 2):
                e(f"v_max3_u32 v{vT1}, v{R3[0]+i}, v{R3[0]+i+1}, v{vT1}")
            e(f"v_cmp_eq_u32 vcc, -1, v{vT1}")
            e(f"s_cbranch_vccz {Lpd}")
            e(f"s_sub_u32 s{sT1}, s{sT1}, 1")
            e(f"s_cbranch_scc0 {La}")
        e(f"{Lp}:")
        e("s_waitcnt vmcnt(0)")
        for c in range(8):
            L = e.label("gc")
            e(f"s_bitcmp1_b32 s{sM}, {c}")
            e(f"s_cbranch_scc0 {L}")
            e(f"v_max_u32 v{vT1}, v{R3[c]}, v{R3[c]+1}")
            e(f"v_max3_u32 v{vT1}, v{R3[c]+2}, v{R3[c]+3}, v{vT1}")
            e(f"v_cmp_eq_u32 vcc, -1, v{vT1}")
            e(f"s_cbranch_vccnz {L}")
            e(f"s_bitset0_b32 s{sM}, {c}")
            e(f"{L}:")
        e(f"s_cmp_eq_u32 s{sM}, 0")
        e(f"s_cbranch_scc1 {Lpd}")
        lds_wait(e, OCNT, CNT8, vT1, sleep=2, vaddr=vCA)
        e("s_setprio 3")
        e(f"s_and_b32 s{sT0}, s{sPQ}, 7")
        e(f"s_cmp_eq_u32 s{sT0}, 1")
        e(f"s_cselect_b32 s{sT0}, 0, {OF2 - OF}")
        e(f"s_add_u32 s{sA}, s{sB0}, s{sT0}")
        e(f"s_add_u32 s{sA}, s{sA}, {24*1024}")
        e(f"s_add_u32 s{sB}, s{sA}, 4096")
        rnd_loads(True)
        e(f"s_sub_u32 s{sPQ}, s{sPQ}, 1")
        e(f"s_cbranch_scc0 {Lp}")
        e("s_waitcnt vmcnt(0)")
        e(f"{Lpd}:")
        e("s_setprio 3")
        tm(); tm(); tm()
    else:
        sE = sP1
        vPK = vT2
        Ln1, Ln2, Ln3 = e.label("e1"), e.label("e2"), e.label("e3")
        e(f"ds_read_b32 v{vT1}, v{vCA} offset:{OCNT}")
        e(f"s_mov_b32 s{sE}, 0")
        e(f"s_add_u32 s{sT1}, s{sB0}, {24*1024}")
        e("s_waitcnt lgkmcnt(0)")
        e(f"v_cmp_gt_u32 vcc, {CNT8}, v{vT1}")
        e(f"s_cbranch_vccnz {Ln1}")
        e("s_setprio 3")
        e(f"buffer_load_dword v{vPK}, v{vFO}, {sr(sWS,4)}, s{sT1} offen sc1")
        e(f"s_mov_b32 s{sE}, 1")
        e(f"{Ln1}:")
        NE = int(OPT.get("ne", 12))
        mm(0, NE)
        e(f"s_cmp_eq_u32 s{sE}, 0")
        e(f"s_cbranch_scc1 {Ln2}")
        e(f"s_mov_b32 s{sE}, 0")
        e("s_waitcnt vmcnt(0)")
        e(f"v_cmp_eq_u32 vcc, -1, v{vPK}")
        e(f"s_cbranch_vccnz {Ln2}")
        oloads(R3, 24)
        e(f"s_mov_b32 s{sE}, 1")
        e(f"{Ln2}:")
        mm(NE, 24)
        st.mark()
        XF = 64
        for q in range(8):
            e(f"v_lshlrev_b32 v{XF+2*q}, 16, v{XR+q}")
            e(f"v_and_b32 v{XF+2*q+1}, 0xffff0000, v{XR+q}")
        tm()
        e(f"s_cmp_lg_u32 s{sE}, 0")
        e(f"s_cbranch_scc1 {Ln3}")
        lds_wait(e, OCNT, CNT8, vT1, sleep=2, vaddr=vCA)
        e("s_setprio 3")
        e(f"s_sleep {int(OPT.get('osleep', 4))}")
        peek(8, 24, int(OPT.get('rsleep', 1)))
        oloads(R3, 24)
        e(f"{Ln3}:")
        tm(); tm()
        verify(R3, 24, 0)
        tm()
    mm(24, 32)
    e("s_nop 11")
    for i in range(0, 16, 2):
        e(f"v_pk_fma_f32 {vr(SA+i,2)}, {vr(SA+i,2)}, {vr(G+i,2)}, {vr(XF+i,2)}")
    OST = OPT.get("ost", "").replace("+", " ")
    if OPT.get("o4", "1") == "1":
        for i in range(8):
            e(f"v_cvt_pk_bf16_f32 v{SA+i}, v{SA+2*i}, v{SA+2*i+1}")
        e(f"v_lshl_add_u32 v{vXO}, v{vHH}, 3, v{vXO}")
        e("s_nop 0")
        for p in range(2):
            e(f"v_permlane32_swap_b32 v{SA+4*p}, v{SA+4*p+2}")
            e(f"v_permlane32_swap_b32 v{SA+4*p+1}, v{SA+4*p+3}")
            e(f"buffer_store_dwordx4 {vr(SA+4*p,4)}, v{vXO}, {sr(sOUT,4)}, s{sSO} offen offset:{32*p} {OST}")
    else:
        for q in range(4):
            a = SA + 4*q
            e(f"v_cvt_pk_bf16_f32 v{a}, v{a}, v{a+1}")
            e(f"v_cvt_pk_bf16_f32 v{a+1}, v{a+2}, v{a+3}")
            e(f"buffer_store_dwordx2 {vr(a,2)}, v{vXO}, {sr(sOUT,4)}, s{sSO} offen offset:{16*q} {OST}")
    OB = 96
    Lne = e.label("ne")
    e(f"s_xor_b32 s{sT0}, s{sF}, 3")
    e(f"s_or_b32 s{sT0}, s{sT0}, s2")
    e(f"s_cmp_lg_u32 s{sT0}, 0")
    e(f"s_cbranch_scc1 {Lne}")
    e(f"s_mov_b32 s{sT0}, {EPOCH}")
    flag_set(e, OB, sT0)
    e(f"{Lne}:")
    if DBGT:
        e("s_waitcnt vmcnt(0)")
        dbg_time(e, 2, False, vT0, vT1)
        e(f"v_mov_b32 v{vT0}, s98")
        e(f"v_not_b32 v{vT2}, s98")
        e(f"v_mov_b32 v{vT1}, 0")
        e("s_mov_b64 exec, 1")
        e(f"global_atomic_umax v{vT1}, v{vT2}, s[22:23]")
        e(f"global_atomic_umax v{vT1}, v{vT0}, s[22:23] offset:4")
        e("s_mov_b64 exec, -1")
    if common.STAMP: e("s_waitcnt vmcnt(0)")
    st.off = False
    st.mark(); st.mark(True)
    st.flush(sW, sWS, vT0, vT1, 12)
    e("s_endpgm")
    BUF = [88, 92, 164]
    e("; ---- publish a finished q-tile: sum the 8 partial fragments, normalise, store ----"); e("L_ftry:")
    e(f"s_cmp_ge_u32 s{sPQ}, 7")
    e(f"s_cbranch_scc1 L_fret")
    e(f"s_lshl_b32 s{sT0}, s{sPQ}, 9")
    e(f"s_add_u32 s{sT0}, s{sT0}, {L_L}")
    e(f"v_mov_b32 v{vT2}, s{sT0}")
    e(f"ds_read_b32 v{vT1}, v{vT2} offset:{OCNT}")
    e("s_waitcnt lgkmcnt(0)")
    e(f"v_cmp_ne_u32 vcc, {CNT8}, v{vT1}")
    e(f"s_cbranch_vccz L_fgo")
    e("L_fret:")
    e(f"s_setpc_b64 {sr(sRT2,2)}")
    e("L_fpub:")
    e(f"s_lshl_b32 s{sT0}, s{sPQ}, 9")
    e(f"s_add_u32 s{sT0}, s{sT0}, {L_L}")
    e(f"v_mov_b32 v{vT2}, s{sT0}")
    lds_wait(e, OCNT, CNT8, vT1, sleep=4, vaddr=vT2, exact=True)
    e("L_fgo:")
    e(f"s_and_b32 s{sT1}, s{sPQ}, 3")
    e(f"s_lshl_b32 s{sT1}, s{sT1}, 13")
    e(f"s_add_u32 s{sT1}, s{sT1}, {L_OA}")
    e(f"v_add_u32 v{vT0}, s{sT1}, v{vL16}")
    for w in range(3):
        e(f"ds_read_b128 {vr(BUF[w],4)}, v{vT0} offset:{1024*w}")
    e(f"v_and_b32 v{vT1}, 31, v{vL}")
    e(f"v_lshl_add_u32 v{vT1}, v{vT1}, 3, v{vT2}")
    for w in range(8):
        e(f"s_waitcnt lgkmcnt({min(2, 7-w)})")
        e(f"{MFMA} {vr(F_D,16)}, {vr(F_ID,4)}, {vr(BUF[w%3],4)}, {'0' if w == 0 else vr(F_D,16)}")
        if w + 3 < 8: e(f"ds_read_b128 {vr(BUF[w%3],4)}, v{vT0} offset:{1024*(w+3)}")
    e(f"ds_write_b32 v{vT2}, v{vCT} offset:{OMRK}")
    e(f"ds_read_b64 v[4:5], v{vT1}")
    e("s_waitcnt lgkmcnt(0)")
    publish_tail(e, F_D, 4, sPQ)
    e(f"s_add_u32 s{sPQ}, s{sPQ}, 4")
    e(f"s_setpc_b64 {sr(sRT2,2)}")
    attention_slow(e)

def common_setup(e):
    decode_ids(e)
    e(f"v_mov_b32 v{vCT}, {L_C}")
    e(f"s_mov_b32 s{sONES}, 0x3f803f80")
    for d, b, n in ((sX, 4, 2048*512*2), (sWS, 26, WS_BYTES), (sOUT, 22, 2048*512*2)):
        e(f"s_mov_b64 s[{d}:{d+1}], s[{b}:{b+1}]")
        e(f"s_mov_b32 s{d+2}, {n:#x}")
        e(f"s_mov_b32 s{d+3}, 0x20000")

def row_offsets(e, sbase, n):
    for j in range(n):
        r = ROWS[j]
        e(f"s_add_u32 s{r}, s{sbase}, {j}")
        e(f"s_and_b32 s{r}, s{r}, 63")
        e(f"s_lshr_b32 s{sT0}, s{r}, 5")
        e(f"s_mul_i32 s{sT0}, s{sT0}, {XRT - 512}")
        e(f"s_lshl_b32 s{r}, s{r}, 4")
        e(f"s_add_u32 s{r}, s{r}, s{sT0}")

def gen(e, name):
    kernel_begin(e, name)
    stA, stF = Stamps(e, 0), Stamps(e, 0)
    e("s_load_dwordx16 s[4:19], s[0:1], 0")
    e("s_load_dwordx8 s[20:27], s[0:1], 56")
    PFTOP = int(OPT.get("pftop", 0))
    if PFTOP:
        e("L_pf:")
        e("s_getpc_b64 s[44:45]")
        e(f"s_and_b32 s{sT0}, s2, 0xf8")
        e(f"v_add_lshl_u32 v{vT1}, v0, s{sT0}, 7")
        e(f"v_cmp_gt_u32 vcc, 8, v0")
        e(f"v_min_u32 v{vT1}, CODE_BYTES, v{vT1}")
        e(f"s_and_saveexec_b64 s[46:47], vcc")
        e("s_cbranch_execz L_pfd")
        e(f"global_load_dword v11, v{vT1}, s[44:45]")
        e("L_pfd:")
        e("s_mov_b64 exec, -1")
    e(f"v_lshrrev_b32 v{vT0}, 6, v0")
    e(f"s_cmpk_ge_u32 s2, 256")
    e(f"v_readfirstlane_b32 s{sW}, v{vT0}")
    e(f"s_cbranch_scc1 L_end")
    if common.STAMP:
        e("s_memrealtime s[98:99]")
        e("s_memtime s[96:97]")
        stA.n = stF.n = 2
    e(f"s_and_b32 s{sT1}, s2, 7")
    e(f"s_lshl_b32 s{sT1}, s{sT1}, 8")
    e(f"s_and_b32 s{sT2}, s2, 0xf0")
    e(f"v_and_b32 v{vL}, 63, v0")
    e(f"s_cmp_lt_u32 s{sW}, 8")
    e(f"v_lshlrev_b32 v{vL16}, 4, v{vL}")
    e(f"s_cbranch_scc1 L_a0")
    e("s_setprio 3")
    e(f"s_sub_u32 s{sF}, s{sW}, 8")
    e(f"s_add_u32 s{sT1}, s{sT1}, s{sT2}")
    e(f"s_lshl_b32 s{sT1}, s{sT1}, 10")
    e(f"s_lshl_b32 s{sT3}, s{sF}, 12")
    e(f"s_add_u32 s{sT1}, s{sT1}, s{sT3}")
    e(f"v_add_u32 v{vT1}, s{sT1}, v{vL16}")
    e(f"v_add_u32 v{vT2}, s{sT3}, v{vL16}")
    e(f"s_add_u32 m0, s{sT3}, {L_R}")
    e(f"s_bitcmp1_b32 s2, 3")
    e("s_waitcnt lgkmcnt(0)")
    for j in range(4):
        e(f"global_load_dwordx4 {vr(96+4*j,4)}, v{vT1}, s[4:5] offset:{1024*j}")
    e(f"s_cselect_b64 s[8:9], s[10:11], s[8:9]")
    for j in range(4):
        e(f"global_load_lds_dwordx4 v{vT2}, s[8:9] offset:{1024*j}")
    e(f"v_mov_b32 v{vT1}, {EPOCH}")
    e(f"global_load_dwordx2 v[28:29], v{vT1}, s[26:27]")
    e("s_barrier")
    e("s_branch L_ffn")
    e("; ---- attention waves: first loads ----"); e("L_a0:")
    e(f"s_cmp_lg_u32 s{sW}, 0")
    e(f"s_cbranch_scc1 L_nopf")
    if not PFTOP:
        e("s_getpc_b64 s[44:45]")
        e(f"s_lshr_b32 s{sT0}, s2, 3")
        e(f"s_lshl_b32 s{sT0}, s{sT0}, 10")
        e(f"v_lshl_add_u32 v{vT1}, v0, 7, s{sT0}")
        e(f"v_min_u32 v{vT1}, CODE_BYTES, v{vT1}")
        e(f"s_mov_b64 exec, 0xff")
        e(f"global_load_dword v{vT2}, v{vT1}, s[44:45]")
        e("s_mov_b64 exec, -1")
    e(f"v_lshlrev_b32 v{vT0}, 2, v{vL}")
    e(f"v_add_u32 v{vT0}, {L_C}, v{vT0}")
    e(f"v_mov_b32 v{vT1}, 0")
    e(f"ds_write_b32 v{vT0}, v{vT1}")
    e("L_nopf:")
    e(f"s_and_b32 s{sT3}, s2, 0xc0")
    e(f"s_add_u32 s{sT1}, s{sT1}, s{sT3}")
    e(f"s_mul_i32 s{sT3}, s{sW}, 6")
    e(f"s_add_u32 s{sT2}, s{sT2}, s{sT3}")
    e(f"s_add_u32 s{sT2}, s{sT2}, 16")
    for p in range(3):
        e(f"s_add_u32 s{sT3}, s{sT2}, {2*p}")
        e(f"s_and_b32 s{sT3}, s{sT3}, 63")
        e(f"s_add_u32 s{sT3}, s{sT3}, s{sT1}")
        e(f"s_lshl_b32 s{sT3}, s{sT3}, 10")
        e(f"v_add_u32 v{12+p}, s{sT3}, v{vL16}")
    e("s_waitcnt lgkmcnt(0)")
    TL = int(OPT.get("tlbs", 0))
    if TL == 1:
        e("s_load_dword s62, s[6:7], 0x0")
        e("s_load_dword s63, s[26:27], 0x22000")
    e("s_barrier")
    for j in range(6):
        e(f"global_load_dwordx4 {vr(112+4*j,4)}, v{12+j//2}, s[4:5] offset:{1024*(j&1)}")
    if TL == 2:
        e("s_load_dword s62, s[6:7], 0x0")
        e("s_load_dword s63, s[26:27], 0x22000")
    if TL:
        e("s_load_dword s64, s[16:17], 0x0")
        e("s_load_dword s65, s[18:19], 0x0")
        e("s_load_dword s66, s[12:13], 0x0")
        e("s_load_dword s60, s[22:23], 0x0")
    e("s_branch L_attn")
    if OPT.get("alf"): e(f".p2align {OPT.get('alf')}")
    e("L_ffn:")
    ffn_role(e, stF, lambda: attention_role(e, stA))
    e("L_end:")
    e("s_endpgm")
    e("L_code_end:")
    return 168

DOC = '; ---------------------------------------------------------------------------------------------------------\n; workgroup redoes attention with the exact row maximum (L_slow, two passes).\n; Hand-offs between workgroups: write-through stores + drained flag carrying a tag (= word found in ws on entry + 1),\n; ---------------------------------------------------------------------------------------------------------\n'

if __name__ == "__main__":
    if "--stamp" in sys.argv:
        sys.argv.remove("--stamp"); common.STAMP = True
    out = sys.argv[1] if len(sys.argv) > 1 else "cdna_kernels/" + NAME + ".s"
    HDR = open("cdna_kernels/" + NAME + ".s.ref").read().split("; Override")[0]
    e = Asm()
    e('.amdgcn_target "amdgcn-amd-amdhsa--gfx950"')
    e(".text")
    name = NAME + "_kernel"
    nv = gen(e, name)
    hdr = HDR + f"; @launch grid=(256,1,1) block=(768,1,1) lds={LDS_BYTES}\n" + DOC
    txt = hdr + e.text() + '.section .rodata,"a"\n' + descriptor(name, nv)
    import subprocess, re as _re
    open("_p1.s", "w").write(txt.replace("CODE_BYTES", "0x12345"))
    subprocess.run(["clang", "-x", "assembler", "-target", "amdgcn-amd-amdhsa", "-mcpu=gfx950", "-c", "_p1.s", "-o", "_p1.o"], check=True)
    sym = subprocess.run(["llvm-readelf", "-s", "_p1.o"], capture_output=True, text=True).stdout
    addr = {l.split()[-1]: int(l.split()[1], 16) for l in sym.splitlines() if l.split() and l.split()[-1].startswith("L_")}
    nbytes = addr["L_code_end"] - addr["L_a0"] - 128
    assert nbytes < 32768 + 2600, nbytes
    open(out, "w").write(txt.replace("CODE_BYTES", hex(nbytes)))
```

```python
import sys
from common import *
import common
import struct
def f32bits(x): return struct.unpack("<I", struct.pack("<f", x))[0]
LOG2E = 1.4426950408889634
QSCALE = 0.25 * LOG2E
BOUND2 = 40.0 * 40.0
M16 = "v_mfma_f32_16x16x32_bf16"

KF   = 0x000000
VF   = 0x010000
KMAX = 0x020000
EPOCH = 0x021000
KVFL = 0x028000
HFL  = 0x040000
OFL  = 0x080000
HF   = 0x100000
OF   = 0x800000
OF2  = 0xA00000
XS2, XS1, XRT = 528, 1056, 33792
L_XN  = 0
L_WQ  = 67584
L_R   = L_WQ + 65536
L_OA  = L_WQ + 49152
L_L   = L_OA + 32768
CNT8, CNT7 = 0x40200000, 0x401c0000
RINGB = 12288
L_Q   = L_R + 20480
L_C   = L_Q + 8192
C_KVX, C_QRDY, C_QMAX, C_REDO, C_ADONE, C_G1, C_RED, C_WO, C_S1, C_S2, C_Z, C_KVD, C_KVL, C_TICK, C_S0, C_XN = [4*i for i in range(16)]
C_QW = 72
C_CHK = 76
C_KVF = 80
C_WQ = 84
C_KVS = 88
C_VOID = 92
C_HP = 96
C_RS = 100
C_NON = 64
assert L_L + 8*512 == L_Q
L_RM  = L_C + 256
L_RT  = L_RM + 1024
LDS_BYTES = L_RT + 256 + 16
assert LDS_BYTES <= 163840
SPIN_MAX = 1 << 18
import os
OPT = dict(kv.split("=") for kv in os.environ.get("FOPT", "").split(",") if kv)
FPRIO = int(OPT.get("fprio", 2))
NOLD = int(OPT.get("nold", 6))
BOOST = int(OPT.get("boost", 1))
KVD_ACK = int(OPT.get("kvdack", 0))
PF1 = int(OPT.get("pf1", 0))
ABL = OPT.get("abl", "")
DBGT = int(OPT.get("dbgt", 0))
def dbg_time(e, idx, inv, va, vb):
    if not DBGT: return
    e("s_memrealtime s[96:97]")
    e("s_waitcnt lgkmcnt(0)")
    if inv: e("s_not_b32 s96, s96")
    e(f"v_mov_b32 v{va}, s96")
    e(f"v_mov_b32 v{vb}, {4*idx}")
    e("s_mov_b64 exec, 1")
    e(f"global_atomic_umax v{vb}, v{va}, s[22:23]")
    e("s_mov_b64 exec, -1")
GROUP = int(OPT.get("group", 2))
PF2 = int(OPT.get("pf2", 1))
QFIRST = int(OPT.get("qfirst", 0))
CSWAP = int(OPT.get("cswap", 1))
JIT = int(OPT.get("jit", 0))
PEEL = int(OPT.get("peel", 1))
FAST = int(OPT.get("fast", 1))
CONT = int(OPT.get("cont", 1))
EARLYP = int(OPT.get("earlyp", 1))
PFQ = int(OPT.get("pfq", 0))
FULLCHK = int(OPT.get("fullchk", 1))
WQLATE = int(OPT.get("wqlate", 1))
PSLEEP = int(OPT.get("psleep", 0))
PWQ = int(OPT.get("pwq", 1))
WQAT = OPT.get("wqat", "f")
LOT = OPT.get("lot", "34567")
TLBW = int(OPT.get("tlbw", 0))
ROT = int(OPT.get("rot", 0))
FILLATE = int(OPT.get("fillate", 1))
XEARLY = int(OPT.get("xearly", 0))
YDELAY = int(OPT.get("ydelay", 2))
SENT = int(OPT.get("sent", 1))

sX, sWS, sWA, sOUT, sDBG = 28, 32, 36, 40, 44
sW, sRP, sCG, sT0, sT1, sT2, sT3, sCNT, sF = 48, 49, 50, 51, 52, 53, 54, 55, 56
sONES = 57
sNON = 58
sMASK = 60
sLN = 62
sMN = [60, 61, 62, 63, 64, 65]
sSP = 3
vL, vL16, vT0, vT1, vT2, vCT = 1, 2, 3, 4, 5, 6
vDA, vDB = 7, 8

def decode_ids(e):
    e(f"s_and_b32 s{sRP}, s2, 7")
    e(f"s_lshl_b32 s{sRP}, s{sRP}, 2")
    e(f"s_lshr_b32 s{sCG}, s2, 6")
    e(f"s_add_u32 s{sRP}, s{sRP}, s{sCG}")
    e(f"s_lshr_b32 s{sCG}, s2, 3")
    e(f"s_and_b32 s{sCG}, s{sCG}, 7")

def lds_signal(e, off, vtmp, val="1"):
    e("s_waitcnt lgkmcnt(0)")
    e(f"v_mov_b32 v{vtmp}, {val}")
    e("s_mov_b64 exec, 1")
    e(f"ds_add_u32 v{vCT}, v{vtmp} offset:{off}")
    e("s_mov_b64 exec, -1")

def lds_wait(e, off, n, vtmp, sleep=1, vaddr=None, exact=False):
    L, D = e.label("lw"), e.label("lwd")
    vaddr = vCT if vaddr is None else vaddr
    e(f"s_mov_b32 s{sSP}, {SPIN_MAX*8}")
    e(f"{L}:")
    e(f"ds_read_b32 v{vtmp}, v{vaddr} offset:{off}")
    e(f"s_sub_u32 s{sSP}, s{sSP}, 1")
    e("s_waitcnt lgkmcnt(0)")
    e(f"v_cmp_{'ne' if exact else 'gt'}_u32 vcc, {n}, v{vtmp}")
    e(f"s_cbranch_vccz {D}")
    e(f"s_sleep {sleep}")
    e(f"s_cbranch_scc0 {L}")
    e(f"{D}:")

def fetch_nonce(e, vt):
    e(f"ds_read_b64 {vr(vt,2)}, v{vCT} offset:{C_NON}")
    e("s_waitcnt lgkmcnt(0)")
    e(f"v_readfirstlane_b32 s{sNON}, v{vt}")
    e(f"v_readfirstlane_b32 s{sNON+1}, v{vt+1}")

def flag_poll(e, vt, voff, soff, sleep=1):
    L, D = e.label("fp"), e.label("fpd")
    e(f"s_mov_b32 s{sSP}, {SPIN_MAX}")
    e(f"{L}:")
    e(f"buffer_load_dwordx2 {vr(vt,2)}, v{voff}, {sr(sWS,4)}, s{soff} offen sc1")
    e(f"s_sub_u32 s{sSP}, s{sSP}, 1")
    e("s_waitcnt vmcnt(0)")
    e(f"v_cmp_ne_u64 vcc, {sr(sNON,2)}, {vr(vt,2)}")
    e(f"s_cbranch_vccz {D}")
    e(f"s_sleep {sleep}")
    e(f"s_cbranch_scc0 {L}")
    e(f"{D}:")

def flag_set(e, vt, soff):
    e(f"v_mov_b32 v{vt}, s{sNON}")
    e(f"v_mov_b32 v{vt+1}, s{sNON+1}")
    e(f"v_mov_b32 v{vt+2}, 0")
    e("s_waitcnt vmcnt(0)")
    e("s_mov_b64 exec, 1")
    e(f"buffer_store_dwordx2 {vr(vt,2)}, v{vt+2}, {sr(sWS,4)}, s{soff} offen sc1")
    e("s_mov_b64 exec, -1")

def set_srd(e, d, base, nbytes):
    srd(e, d, base, nbytes)

def row_reduce(e, n, S):
    p32 = [(0, 2), (1, 3)] + ([(4, 5)] if n == 6 else [])
    e("s_nop 2")
    for (a, b) in p32: e(f"v_permlane32_swap_b32 v{S+a}, v{S+b}")
    for (a, b) in p32: e(f"v_add_f32 v{S+a}, v{S+a}, v{S+b}")
    if n == 6: e(f"v_mov_b32 v{S+5}, v{S+4}")
    e("s_nop 1")
    p16 = [(0, 1)] + ([(4, 5)] if n == 6 else [])
    for (a, b) in p16: e(f"v_permlane16_swap_b32 v{S+a}, v{S+b}")
    e("s_nop 0")
    for (a, b) in p16: e(f"v_add_f32 v{S+a}, v{S+a}, v{S+b}")
    G = [0] + ([4] if n == 6 else [])
    for rot in (8, 4, 2, 1):
        e("s_nop 1" if len(G) == 1 else "s_nop 0")
        for g in G:
            e(f"v_add_f32_dpp v{S+g}, v{S+g}, v{S+g} row_ror:{rot} row_mask:0xf bank_mask:0xf")
    return G

def ln_setup(e, n, T, sbase):
    A = T + 2*n
    e(f"v_mul_u32_u24 v{A+2}, {XS2}, v{vL}")
    e(f"v_mov_b32 v{A+4}, 0x00003f80")
    e(f"v_mov_b32 v{A+5}, 0x3f800000")
    e(f"v_lshrrev_b32 v{A+6}, 4, v{vL}")
    e(f"v_add_u32 v{A+6}, s{sbase}, v{A+6}")
    e(f"v_and_b32 v{A+6}, 63, v{A+6}")
    e(f"v_lshlrev_b32 v{A+6}, 2, v{A+6}")
    if n == 6:
        e(f"v_lshrrev_b32 v{A+7}, 5, v{vL}")
        e(f"v_add3_u32 v{A+7}, s{sbase}, 4, v{A+7}")
        e(f"v_and_b32 v{A+7}, 63, v{A+7}")
        e(f"v_lshlrev_b32 v{A+7}, 2, v{A+7}")

def ln_center(e, n, X, T, U, srow, vm_after):
    S1, A = T, T + 2*n
    for j in range(0, n, 2):
        if vm_after is not None: e(f"s_waitcnt vmcnt({vm_after + n - 2 - j})")
        for i in range(4):
            for jj in (j, j+1):
                e(f"v_dot2_f32_bf16 v{S1+jj}, v{X+4*jj+i}, s{sONES}, {'0' if i == 0 else 'v' + str(S1+jj)}")
    G = row_reduce(e, n, S1)
    for gi, g in enumerate(G): e(f"v_mul_f32 v{S1+g}, {f32bits(-1/512):#x}, v{S1+g}")
    for gi, g in enumerate(G): e(f"v_cvt_pk_bf16_f32 v{A+gi}, v{S1+g}, v{S1+g}")
    for gi, g in enumerate(G): e(f"v_lshlrev_b32 v{A+gi}, 16, v{A+gi}")
    e("s_nop 0")
    lane_of = [0, 16, 32, 48, 0, 32]
    for j in range(n):
        e(f"v_readlane_b32 s{sMN[j]}, v{A + (j >> 2)}, {lane_of[j]}")
    def head(j):
        x, P = X + 4*j, U + 8*(j & 1)
        for i in range(4):
            e(f"v_dot2_f32_bf16 v{P+2*i}, v{x+i}, v{A+4}, s{sMN[j]}")
            e(f"v_dot2_f32_bf16 v{P+2*i+1}, v{x+i}, v{A+5}, s{sMN[j]}")
    def tail(j):
        x, P = X + 4*j, U + 8*(j & 1)
        e(f"v_add_u32 v{A+3}, s{srow[j]}, v{A+2}")
        for i in range(4):
            e(f"v_cvt_pk_bf16_f32 v{x+i}, v{P+2*i}, v{P+2*i+1}")
        e(f"ds_write_b128 v{A+3}, {vr(x,4)}")
    head(0)
    for j in range(n):
        if j + 1 < n: head(j + 1)
        tail(j)

def ln_scale(e, n, X, T):
    S1, S2, A = T, T + n, T + 2*n
    for i in range(4):
        for j in range(n):
            x = X + 4*j + i
            e(f"v_dot2_f32_bf16 v{S2+j}, v{x}, v{x}, {'0' if i == 0 else 'v' + str(S2+j)}")
    G = row_reduce(e, n, S2)
    def each(fmt):
        for gi, g in enumerate(G):
            e(fmt.format(m=S1+g, v=S2+g, t=A+gi, a=A+6+gi))
    each("v_sub_f32 v{m}, v{m}, v{t}")
    each(f"v_mul_f32 v{{v}}, {f32bits(1/512):#x}, v{{v}}")
    each("v_fma_f32 v{v}, -v{m}, v{m}, v{v}")
    each("v_max_f32 v{v}, 0, v{v}")
    each("v_cvt_pk_bf16_f32 v{v}, v{v}, v{v}")
    each("v_lshlrev_b32 v{v}, 16, v{v}")
    each(f"v_add_f32 v{{v}}, {f32bits(1e-5):#x}, v{{v}}")
    each("v_cvt_pk_bf16_f32 v{v}, v{v}, v{v}")
    each("v_lshlrev_b32 v{v}, 16, v{v}")
    each("v_sqrt_f32 v{v}, v{v}")
    e("s_nop 0")
    each("v_cvt_pk_bf16_f32 v{v}, v{v}, v{v}")
    each("v_lshlrev_b32 v{v}, 16, v{v}")
    each("v_rcp_f32 v{v}, v{v}")
    each(f"v_add_u32 v{{a}}, {L_RT}, v{{a}}")
    each("ds_write_b32 v{a}, v{v}")

def ln_both4(e, X, T, U, srow, vm_after):
    n = 4
    S1, S2, A = T, T + n, T + 2*n
    for j in range(0, n, 2):
        e(f"s_waitcnt vmcnt({vm_after + n - 2 - j})")
        for i in range(4):
            for jj in (j, j+1):
                x = X + 4*jj + i
                e(f"v_dot2_f32_bf16 v{S1+jj}, v{x}, s{sONES}, {'0' if i == 0 else 'v' + str(S1+jj)}")
                e(f"v_dot2_f32_bf16 v{S2+jj}, v{x}, v{x}, {'0' if i == 0 else 'v' + str(S2+jj)}")
    e("s_nop 2")
    for S in (S1, S2):
        for (a, b) in ((0, 2), (1, 3)): e(f"v_permlane32_swap_b32 v{S+a}, v{S+b}")
    for S in (S1, S2):
        for (a, b) in ((0, 2), (1, 3)): e(f"v_add_f32 v{S+a}, v{S+a}, v{S+b}")
    e("s_nop 1")
    for S in (S1, S2): e(f"v_permlane16_swap_b32 v{S}, v{S+1}")
    e("s_nop 0")
    for S in (S1, S2): e(f"v_add_f32 v{S}, v{S}, v{S+1}")
    for rot in (8, 4, 2, 1):
        e("s_nop 0")
        for S in (S1, S2):
            e(f"v_add_f32_dpp v{S}, v{S}, v{S} row_ror:{rot} row_mask:0xf bank_mask:0xf")
    m, v = S1, S2
    e(f"v_mul_f32 v{m}, {f32bits(-1/512):#x}, v{m}")
    e(f"v_mul_f32 v{v}, {f32bits(1/512):#x}, v{v}")
    e(f"v_cvt_pk_bf16_f32 v{A}, v{m}, v{m}")
    e(f"v_fma_f32 v{v}, -v{m}, v{m}, v{v}")
    e(f"v_lshlrev_b32 v{A}, 16, v{A}")
    e(f"v_max_f32 v{v}, 0, v{v}")
    for j in range(n):
        e(f"v_readlane_b32 s{sMN[j]}, v{A}, {16*j}")
    chain = [f"v_cvt_pk_bf16_f32 v{v}, v{v}, v{v}", f"v_lshlrev_b32 v{v}, 16, v{v}", f"v_add_f32 v{v}, {f32bits(1e-5):#x}, v{v}",
             f"v_cvt_pk_bf16_f32 v{v}, v{v}, v{v}", f"v_lshlrev_b32 v{v}, 16, v{v}", f"v_sqrt_f32 v{v}, v{v}",
             f"v_cvt_pk_bf16_f32 v{v}, v{v}, v{v}", f"v_lshlrev_b32 v{v}, 16, v{v}", f"v_rcp_f32 v{v}, v{v}",
             f"v_add_u32 v{A+6}, {L_RT}, v{A+6}", f"ds_write_b32 v{A+6}, v{v}"]
    main = []
    def head(j):
        x, P = X + 4*j, U + 8*(j & 1)
        for i in range(4):
            main.append(f"v_dot2_f32_bf16 v{P+2*i}, v{x+i}, v{A+4}, s{sMN[j]}")
            main.append(f"v_dot2_f32_bf16 v{P+2*i+1}, v{x+i}, v{A+5}, s{sMN[j]}")
    def tail(j):
        x, P = X + 4*j, U + 8*(j & 1)
        main.append(f"v_add_u32 v{A+3}, s{srow[j]}, v{A+2}")
        for i in range(4):
            main.append(f"v_cvt_pk_bf16_f32 v{x+i}, v{P+2*i}, v{P+2*i+1}")
        main.append(f"ds_write_b128 v{A+3}, {vr(x,4)}")
    head(0)
    for j in range(n):
        if j + 1 < n: head(j + 1)
        tail(j)
    for i, l in enumerate(main):
        if i % 3 == 0 and chain: e(chain.pop(0))
        e(l)

def tr_common(e, vd, t0, t1):
    e(f"v_and_b32 v{t0}, 12, v{vL}")
    e(f"v_lshlrev_b32 v{vd}, 5, v{t0}")
    e(f"v_lshrrev_b32 v{t0}, 3, v{vL}")
    e(f"v_and_b32 v{t0}, 2, v{t0}")
    e(f"v_bfe_u32 v{t1}, v{vL}, 1, 1")
    e(f"v_or_b32 v{t0}, v{t0}, v{t1}")
    e(f"v_lshrrev_b32 v{t1}, 1, v{vL}")
    e(f"v_and_b32 v{t1}, 4, v{t1}")
    e(f"v_xor_b32 v{t0}, v{t0}, v{t1}")
    e(f"v_lshl_add_u32 v{vd}, v{t0}, 4, v{vd}")
    e(f"v_and_b32 v{t0}, 1, v{vL}")
    e(f"v_lshl_add_u32 v{vd}, v{t0}, 3, v{vd}")

def dpp_max16(e, v):
    for ctl in ("row_ror:8", "row_ror:4", "row_ror:2", "row_ror:1"):
        e("s_nop 1")
        e(f"v_max_f32_dpp v{v}, v{v}, v{v} {ctl} row_mask:0xf bank_mask:0xf")

def swap_op(e, op, kind, v, t):
    e(f"v_mov_b32 v{t}, v{v}")
    e("s_nop 1")
    e(f"v_permlane{kind}_swap_b32 v{v}, v{t}")
    e("s_nop 0")
    e(f"{op} v{v}, v{v}, v{t}")


OCNT, OMRK = 260, 264
def stage_w512(e, base_sreg, lbase, sIDX, nparts, sSO, srd_=None):
    rows = 512 // nparts
    if srd_ is None:
        srd_ = sWA
        set_srd(e, sWA, base_sreg, 512*512*2)
    e(f"s_mul_i32 s{sSO}, s{sIDX}, {rows*1024}")
    e(f"s_lshl_b32 s{sT0}, s{sCG}, 7")
    e(f"s_add_u32 s{sSO}, s{sSO}, s{sT0}")
    e(f"s_mul_i32 s{sT0}, s{sIDX}, {rows*128}")
    for i in range(rows // 16):
        e(f"s_add_u32 m0, s{sT0}, {lbase + 2048*i}")
        if i: e(f"s_add_u32 s{sSO}, s{sSO}, 16384")
        else: e("s_nop 0")
        e(f"buffer_load_dwordx4 v{vDA}, {sr(srd_,4)}, s{sSO} offen lds")
        e(f"buffer_load_dwordx4 v{vDB}, {sr(srd_,4)}, s{sSO} offen offset:1024 lds")

A_Q, A_KR, A_VR, A_S0, A_S1, A_O = 12, 16, 48, 112, 128, 144
vLA, vQA, vWB = 7, 8, 9
A_ID = 160
sQT, sLAST, sRET, sPO = 84, 85, 86, 88
ROWS = [84, 85, 86, 87, 88, 89]
def flush_parts(e, rtn=False):
    O = A_O
    L = e.label("sf")
    pre = [f"ds_read_b32 v{vT0}, v{vLA} offset:{OMRK}"]
    pk = [f"v_cvt_pk_bf16_f32 v{O+12+i}, v{O+2*i}, v{O+2*i+1}" for i in range(4)]
    adr = [f"v_add_u32 v{vT1}, s{sPO}, v{vWB}"]
    chk1 = ["s_waitcnt lgkmcnt(0)", f"v_readfirstlane_b32 s{sT0}, v{vT0}"]
    chk2 = [f"s_cmp_lt_u32 s{sQT}, 4", f"s_cselect_b32 s{sT0}, 1, s{sT0}", f"s_cmp_lg_u32 s{sT0}, 0", f"s_cbranch_scc1 {L}",
            f"s_call_b64 {sr(sRET,2)}, L_wslot", f"{L}:"]
    add = f"ds_add_rtn_f64 v[4:5], v{vLA}, v[10:11] offset:2048" if rtn else f"ds_add_f64 v{vLA}, v[10:11] offset:2048"
    out = [f"ds_write_b128 v{vT1}, {vr(O+12,4)}", "s_mov_b32 exec_hi, 0", f"v_cvt_f64_f32 v[10:11], v{O+8}",
           "s_mov_b32 exec_hi, 1", add, "s_mov_b32 exec_hi, -1"]
    nxt = [f"v_add_u32 v{vLA}, 512, v{vLA}", f"s_add_u32 s{sPO}, s{sPO}, 8192", f"s_and_b32 s{sPO}, s{sPO}, 0x6000"]
    return pre, pk, adr, chk1, chk2, out, nxt

def a_flush(e):
    pre, pk, adr, chk1, chk2, out, nxt = flush_parts(e, rtn=True)
    for x in pre + pk + adr + chk1 + ["s_nop 0"] + chk2 + out: e(x)
    e(f"v_add_u32 v{vT0}, {L_OA + 3*8192}, v{vL16}")
    e(f"v_and_b32 v{A_Q}, 31, v{vL}")
    e(f"v_lshlrev_b32 v{A_Q}, 3, v{A_Q}")
    e(f"v_add_u32 v{A_Q}, {L_L + 7*512}, v{A_Q}")
    e(f"ds_read_b64 {vr(A_Q,2)}, v{A_Q}")
    for w in range(8):
        e(f"ds_read_b128 {vr(A_S0+4*w,4)}, v{vT0} offset:{1024*w}")
    for x in nxt: e(x)
    e("s_waitcnt lgkmcnt(9)")
    e(f"v_readlane_b32 s{sT0}, v5, 32")
    e("s_nop 0")
    L = e.label("nl")
    e(f"s_cmp_lg_u32 s{sT0}, s{sLAST}")
    e(f"s_cbranch_scc1 {L}")
    e(f"s_cmp_lg_u32 s{sQT}, 7")
    e(f"s_cbranch_scc1 {L}")
    e(f"s_call_b64 {sr(sRET,2)}, L_pub")
    e(f"{L}:")
    e("s_waitcnt lgkmcnt(0)")
    e(f"s_add_u32 s{sQT}, s{sQT}, 1")

def make_identity(e, d, t0, t1):
    e(f"v_and_b32 v{t0}, 1, v{vL}")
    e(f"v_lshlrev_b32 v{t0}, 4, v{t0}")
    e(f"v_mov_b32 v{t1}, 0x3f80")
    e(f"v_lshlrev_b32 v{t1}, v{t0}, v{t1}")
    e(f"v_lshrrev_b32 v{t0}, 3, v{vL}")
    e(f"v_and_b32 v{t0}, 4, v{t0}")
    e(f"v_xor_b32 v{t0}, v{t0}, v{vL}")
    e(f"v_and_b32 v{t0}, 0x1e, v{t0}")
    for i, key in enumerate((0, 2, 8, 10)):
        e(f"v_cmp_eq_u32 vcc, {key}, v{t0}")
        e("s_nop 1")
        e(f"v_cndmask_b32 v{d+i}, 0, v{t1}, vcc")

def publish_tail(e, D, LP, sq):
    e(f"s_lshl_b32 s{sT0}, s{sRP}, 3")
    e(f"s_and_b32 s{sT1}, s{sq}, 1")
    e(f"s_lshl_b32 s{sT1}, s{sT1}, 2")
    e(f"s_add_u32 s{sT0}, s{sT0}, s{sT1}")
    e(f"s_lshr_b32 s{sT1}, s{sq}, 1")
    e(f"s_add_u32 s{sT0}, s{sT0}, s{sT1}")
    e(f"s_lshl_b32 s{sT0}, s{sT0}, 3")
    e(f"s_add_u32 s{sT0}, s{sT0}, s{sCG}")
    e(f"s_lshl_b32 s{sT1}, s{sT0}, 10")
    e(f"s_add_u32 s{sT1}, s{sT1}, {OF}")
    e(f"v_cvt_f32_f64 v{LP}, {vr(LP,2)}")
    e(f"v_rcp_f32 v{LP}, v{LP}")
    e("s_nop 0")
    for i in range(0, 8, 2):
        e(f"v_pk_mul_f32 {vr(D+i,2)}, {vr(D+i,2)}, {vr(LP,2)} op_sel_hi:[1,0]")
    for i in range(4):
        e(f"v_cvt_pk_bf16_f32 v{D+i}, v{D+2*i}, v{D+2*i+1}")
    for i in range(4):
        e(f"v_min_u32 v{D+i}, -2, v{D+i}")
    L = e.label("nf")
    e(f"s_cmp_lt_u32 s{sq}, 6")
    e(f"s_cbranch_scc1 {L}")
    e(f"s_add_u32 s{sT0}, s{sT1}, {OF2 - OF}")
    e(f"buffer_store_dwordx4 {vr(D,4)}, v{vL16}, {sr(sWS,4)}, s{sT0} offen")
    e(f"{L}:")
    e(f"buffer_store_dwordx4 {vr(D,4)}, v{vL16}, {sr(sWS,4)}, s{sT1} offen sc1")

def flush_init(e):
    e(f"v_lshlrev_b32 v{vLA}, 3, v{vL}")
    e(f"v_add_u32 v{vLA}, {L_L - 2048}, v{vLA}")
    e(f"v_mov_b32 v10, 0")
    e(f"v_mov_b32 v11, 0x3ff00000")
    e(f"s_mov_b32 s{sLAST}, {CNT7}")
    e(f"s_mov_b32 s{sQT}, 0")
    e(f"s_mov_b32 s{sPO}, 0")

def attention_role(e, st):
    Q, KR, VR, S0, S1, O = A_Q, A_KR, A_VR, A_S0, A_S1, A_O
    X, T = 112, 136
    e("; ---- attention waves: setup, centring of 6 rows, K/V gather, main loops ----"); e("L_attn:")
    rows = ROWS
    if common.STAMP:
        e(f"s_mov_b32 s{common.S_ST}, s98")
        e(f"s_mov_b32 s{common.S_ST+1}, s96")
    row_offsets(e, sT2, 6)
    PQW = int(OPT.get("pqw", 6))
    Lnq = e.label("nopq")
    e(f"s_cmp_lt_u32 s{sW}, {PQW}")
    e(f"s_cbranch_scc1 {Lnq}")
    e(f"s_lshr_b32 s{sT1}, s2, 3")
    e(f"s_lshl_b32 s{sT1}, s{sT1}, 1")
    e(f"s_add_u32 s{sT0}, s{sW}, s{sT1}")
    e(f"s_sub_u32 s{sT0}, s{sT0}, 6")
    e(f"s_lshl_b32 s{sT0}, s{sT0}, 13")
    e(f"v_lshl_add_u32 v10, v{vL}, 7, s{sT0}")
    e(f"global_load_dword v10, v10, s[6:7]")
    e(f"{Lnq}:")
    vPO_ = 164
    e(f"v_and_b32 v{vT0}, 15, v{vL}")
    e(f"v_cmp_eq_u32 vcc, 0, v{vT0}")
    e(f"v_mov_b32 v{vT1}, 0x3f803f80")
    e(f"v_and_b32 v{vT0}, 31, v{vL}")
    e(f"v_cndmask_b32 v{VR+4}, 0, v{vT1}, vcc")
    e(f"v_cndmask_b32 v{VR+5}, 0, v{vT1}, vcc")
    for t in range(8):
        for i in (4, 6):
            if (t, i) != (0, 4): e(f"v_mov_b64 {vr(VR+8*t+i,2)}, {vr(VR+4,2)}")
    e(f"v_add_u32 v{vQA}, {L_Q}, v{vL16}")
    e(f"v_lshlrev_b32 v{vPO_}, 7, v{vT0}")
    e(f"s_lshl_b32 s{sT0}, s{sW}, 10")
    e(f"s_add_u32 s{sT0}, s{sT0}, {L_OA}")
    e(f"v_add_u32 v{vWB}, s{sT0}, v{vL16}")
    sK0, sK1, sV0, sV1, sKM, sFLG = 90, 91, 92, 93, 94, 95
    e(f"s_lshr_b32 s{sK1}, s2, 1")
    e(f"s_and_b32 s{sK1}, s{sK1}, {4 if CSWAP else 0}")
    e(f"s_xor_b32 s{sK1}, s{sK1}, s{sW}")
    e(f"s_lshl_b32 s{sFLG}, s{sK1}, 12")
    e(f"s_add_u32 s{sFLG}, s{sFLG}, {KVFL}")
    e(f"s_lshl_b32 s{sK0}, s{sK1}, 13")
    e(f"s_add_u32 s{sK1}, s{sK0}, {KF + 4096}")
    e(f"s_add_u32 s{sV0}, s{sK0}, {VF}")
    e(f"s_add_u32 s{sV1}, s{sK0}, {VF + 4096}")
    assert KF == 0
    make_identity(e, A_ID, vT0, vT1)
    common_setup(e)
    ln_setup(e, 6, T, sT2)
    Lw1, Lw2 = e.label("xw"), e.label("xw2")
    e(f"s_cmp_lt_u32 s{sW}, {PQW}")
    e(f"s_cbranch_scc1 {Lw1}")
    e("s_waitcnt vmcnt(1)")
    e(f"s_branch {Lw2}")
    e(f"{Lw1}:")
    e("s_waitcnt vmcnt(0)")
    e(f"{Lw2}:")
    if OPT.get("tlbs"): e("s_waitcnt lgkmcnt(0)")
    st.mark()
    e("s_setprio 1")
    ln_center(e, 6, X, T, 16, rows, None)
    e("s_setprio 0")
    st.mark()
    ln_scale(e, 6, X, T)
    lds_signal(e, C_RS, vT0)
    lds_wait(e, *((C_WQ, 4) if PWQ else (C_KVF, 1)), vT1)
    if PWQ == 2: lds_wait(e, C_XN, 8, vT1)
    fetch_nonce(e, S0)
    st.mark()
    if PSLEEP: e(f"s_sleep {PSLEEP}")
    Lp, Lpd = e.label("kp"), e.label("kpd")
    e(f"s_mov_b32 s{sSP}, {SPIN_MAX}")
    e(f"{Lp}:")
    e(f"buffer_load_dwordx4 {vr(S0,4)}, v{vPO_}, {sr(sWS,4)}, s{sFLG} offen sc1")
    e("s_waitcnt vmcnt(0)")
    e(f"v_cmp_ne_u64 vcc, {sr(sNON,2)}, {vr(S0,2)}")
    e(f"v_cmp_ne_u32 {sr(sLN,2)}, v{S0}, v{S0+3}")
    e(f"s_or_b64 vcc, vcc, {sr(sLN,2)}")
    e(f"s_cbranch_vccz {Lpd}")
    e(f"s_sub_u32 s{sSP}, s{sSP}, 1")
    e(f"s_sleep {int(OPT.get('kvsleep', 1))}")
    e(f"s_cbranch_scc0 {Lp}")
    e(f"{Lpd}:")
    e(f"v_mov_b32 v{vT2}, v{S0+2}")
    st.mark()
    if YDELAY == 2:
        Ly = e.label("old")
        e(f"s_cmp_lt_u32 s{sW}, 4")
        e(f"s_cbranch_scc1 {Ly}")
        lds_wait(e, C_KVL, 4, vT1, sleep=1)
        e(f"{Ly}:")
    log = []
    def ldk(t):
        log.append(("K", t))
        return [f"buffer_load_dwordx4 {vr(KR+4*t,4)}, v{vL16}, {sr(sWS,4)}, s{sK0 if t < 4 else sK1} offen offset:{(t%4)*1024} sc1"]
    def ldv(t):
        log.append(("V", t))
        return [f"buffer_load_dwordx4 {vr(VR+8*t,4)}, v{vL16}, {sr(sWS,4)}, s{sV0 if t < 4 else sV1} offen offset:{(t%4)*1024} sc1"]
    def wait_for(items):
        last = max(i for i, it in enumerate(log) if it in items)
        return f"s_waitcnt vmcnt({len(log) - 1 - last})"
    order = [("K", 0), ("K", 1), ("V", 0), ("K", 2), ("V", 1), ("K", 3), ("V", 2), ("K", 4), ("V", 3), ("K", 5), ("V", 4), ("K", 6), ("V", 5), ("K", 7), ("V", 6), ("V", 7)]
    ld = lambda it: ldk(it[1]) if it[0] == "K" else ldv(it[1])
    NPRE = 16
    for it in order[:NPRE]:
        for l in ld(it): e(l)
    lds_signal(e, C_KVL, vT0)
    lds_wait(e, C_QW, 2 if QFIRST else 4, vT0)
    e(f"ds_read_b128 {vr(Q,4)}, v{vQA}")
    e(wait_for([("K", 0)]))
    e("s_waitcnt lgkmcnt(0)")
    e(f"{MFMA} {vr(S0,16)}, {vr(KR,4)}, {vr(Q,4)}, 0")
    e("s_nop 11")
    st.mark()
    def qtile(first, base, plain=False):
        for t in range(8):
            a = S0 if (t & 1) == 0 else S1
            b = S1 if (t & 1) == 0 else S0
            tp = (t - 1) % 8
            tn = (t + 1) % 8
            ex = [f"v_exp_f32 v{a+i}, v{a+i}" for i in range(16)]
            pk = [f"v_cvt_pk_bf16_f32 v{a+i}, v{a+2*i}, v{a+2*i+1}" for i in range(8)]
            if OPT.get("perm"): pk = [f"v_perm_b32 v{a+i}, v{a+2*i+1}, v{a+2*i}, s88" for i in range(8)]
            c0 = "0" if t == 1 else vr(O,16)
            pv0 = [f"{MFMA} {vr(O,16)}, {vr(VR+8*tp,4)}, {vr(b,4)}, {c0}"]
            pv1 = [f"{MFMA} {vr(O,16)}, {vr(VR+8*tp+4,4)}, {vr(b+4,4)}, {vr(O,16)}"]
            qk = [f"{MFMA} {vr(b,16)}, {vr(KR+4*tn,4)}, {vr(Q,4)}, 0"]
            wait, extra = [], []
            if first:
                if t == 0: pv0 = pv1 = []
                wait = [wait_for([("K", t+1)])] if t < 7 else []
            if plain:
                if t == 7: qk = []
            else:
                if t == 7: wait += [f"s_waitcnt lgkmcnt(0)"]
                if t == 6: extra += [f"ds_read_b128 {vr(Q,4)}, v{vQA} offset:1024"]
            bs = base if isinstance(base, int) else (0 if str(t) in base else 1)
            hi, lo = ["s_setprio 3"], [f"s_setprio {bs}"]
            if not BOOST:
                hi = []
                prevb = base if isinstance(base, int) else (0 if str((t-1) % 8) in base else 1)
                if prevb == bs and not (first and t == 0): lo = ["s_nop 0"] if t == 0 else []
            if OPT.get("nb") and not isinstance(base, int) and bs == 0 and str((t-1) % 8) in base: hi, lo = [], (["s_nop 0"] if t == 0 else [])
            SP = OPT.get("sp", "33")
            n1, n2 = int(SP[0]), int(SP[0]) + int(SP[1])
            if plain: hi, lo = [], (["s_nop 0"] if t == 0 else [])
            seq = wait + hi + pv0 + ex[0:n1] + pv1 + ex[n1:n2] + qk + lo + extra + ex[n2:6]
            if OPT.get("ord") == "q":
                seq = wait + hi + pv0 + lo + ex[0:3] + hi + pv1 + lo + ex[3:6] + hi + qk + lo + extra
            if t == 0 and not first:
                fpre, fpk, fadr, fc1, fc2, fout, fnxt = flush_parts(e)
                seq += fpre + [pk[0], pk[1]] + ex[6:8] + [pk[2]] + fadr + ex[8:10]
                seq += [fpk[0], pk[3], fpk[1], ex[10], fpk[2], ex[11], fpk[3], pk[4]] + fc1 + ex[12:14] + fc2 + fout + [pk[5]] + ex[14:16] + [pk[6], pk[7]] + fnxt
            else:
                seq += [pk[0], pk[1]] + ex[6:8] + [pk[2]] + ex[8:10] + [pk[3]] + ex[10:12] + [pk[4]] + ex[12:14] + [pk[5]]
                if first:
                    seq += [wait_for([("V", t)])] + [f"v_permlane16_swap_b32 v{VR+8*t+i}, v{VR+8*t+4+i}" for i in range(4)]
                seq += ex[14:16] + [pk[6], pk[7]]
            if OPT.get("noda"): seq = [x for x in seq if not x.startswith("ds_add_f64")]
            for x in seq: e(x)
        if not plain: e(f"v_add_u32 v{vQA}, 1024, v{vQA}")
        if not first: e(f"s_add_u32 s{sQT}, s{sQT}, 1")
    if OPT.get("perm"): e("s_mov_b32 s88, 0x07060302")
    BASE = 1 if NOLD < 8 else 0
    qtile(True, BASE)
    lds_wait(e, C_Z, 4, vT0)
    e(f"ds_read_b32 v{vT1}, v{vCT} offset:{C_QMAX}")
    e("s_waitcnt vmcnt(0) lgkmcnt(0)")
    flush_init(e)
    e(f"v_mul_f32 v{vT2}, v{vT2}, v{vT1}")
    e(f"v_cmp_nge_f32 vcc, {f32bits(BOUND2):#x}, v{vT2}")
    Lok = e.label("bok")
    e(f"s_cbranch_vccz {Lok}")
    lds_signal(e, C_REDO, vT0)
    lds_signal(e, C_VOID, vT0)
    e(f"v_mov_b32 v11, 0x40700000")
    e(f"s_mov_b32 s{sLAST}, -1")
    e(f"{Lok}:")
    lds_signal(e, C_CHK, vT0)
    if LOT != "x":
        LA, LB, LE = e.label("aloopa"), e.label("aloopb"), e.label("aloope")
        e(f"s_cmp_lt_u32 s{sW}, 4")
        e(f"s_cbranch_scc1 {LB}")
        e(".p2align 6")
        e(f"{LA}:")
        NL = 6 if PEEL else 7
        qtile(False, 1)
        e(f"s_cmp_lt_u32 s{sQT}, {NL}")
        e(f"s_cbranch_scc1 {LA}")
        e(f"s_branch {LE}")
        e(".p2align 6")
        e(f"{LB}:")
        qtile(False, LOT)
        e(f"s_cmp_lt_u32 s{sQT}, {NL}")
        e(f"s_cbranch_scc1 {LB}")
        e(f"{LE}:")
        if PEEL:
            e(f"s_setprio {OPT.get('lastp', 0)}")
            qtile(False, 0, plain=True)
    else:
        e(f"s_cmp_lt_u32 s{sW}, 4")
        e(f"s_cselect_b32 s{sCNT}, {NOLD - 1}, 7")
        LA, LB, LE = e.label("aloopa"), e.label("aloopb"), e.label("aloope")
        e(".p2align 6")
        e(f"{LA}:")
        qtile(False, BASE)
        e(f"s_cmp_lt_u32 s{sQT}, s{sCNT}")
        e(f"s_cbranch_scc1 {LA}")
        if NOLD < 8:
            e(f"s_cmp_eq_u32 s{sQT}, 7")
            e(f"s_cbranch_scc1 {LE}")
            e(f"{LB}:")
            qtile(False, 0)
            e(f"s_cmp_lt_u32 s{sQT}, 7")
            e(f"s_cbranch_scc1 {LB}")
            e(f"{LE}:")
    e("s_setprio 3")
    e(f"{MFMA} {vr(O,16)}, {vr(VR+56,4)}, {vr(S1,4)}, {vr(O,16)}")
    e(f"{MFMA} {vr(O,16)}, {vr(VR+60,4)}, {vr(S1+4,4)}, {vr(O,16)}")
    e("s_nop 11")
    a_flush(e)
    st.mark()
    lds_wait(e, C_CHK, 8, vT0)
    e(f"ds_read_b32 v{vT0}, v{vCT} offset:{C_REDO}")
    e("s_waitcnt lgkmcnt(0)")
    e(f"v_cmp_ne_u32 vcc, 0, v{vT0}")
    e(f"s_cbranch_vccnz L_slow")
    e("L_aend:")
    st.mark(); st.mark(True)
    st.flush(sW, sWS, vT0, vT1, 12)
    e("s_endpgm")
    e("; ---- publish the last q-tile (called by the wave that arrived last) ----"); e("L_pub:")
    for w in range(8):
        e(f"s_waitcnt lgkmcnt({7-w})")
        e(f"{MFMA} {vr(O,16)}, {vr(A_ID,4)}, {vr(S0+4*w,4)}, {'0' if w == 0 else vr(O,16)}")
    publish_tail(e, O, Q, sQT)
    e(f"s_setpc_b64 {sr(sRET,2)}")
    e("L_wslot:")
    e(f"s_mov_b32 s{sSP}, {SPIN_MAX*8}")
    e("L_wslot1:")
    e("s_sleep 2")
    e(f"ds_read_b32 v{vT0}, v{vLA} offset:{OMRK}")
    e(f"ds_read_b32 v{vT2}, v{vCT} offset:{C_VOID}")
    e("s_waitcnt lgkmcnt(0)")
    e(f"v_or_b32 v{vT0}, v{vT0}, v{vT2}")
    e("s_nop 0")
    e(f"v_readfirstlane_b32 s{sT0}, v{vT0}")
    e("s_nop 0")
    e(f"s_cmp_lg_u32 s{sT0}, 0")
    e("s_cbranch_scc1 L_wslot2")
    e(f"s_sub_u32 s{sSP}, s{sSP}, 1")
    e("s_cbranch_scc0 L_wslot1")
    e("L_wslot2:")
    e(f"s_setpc_b64 {sr(sRET,2)}")

def attention_slow(e):
    Q, KR, VR, S0, S1, O = A_Q, A_KR, A_VR, A_S0, A_S1, A_O
    vRM = 0
    e("; ---- fallback: softmax with the exact row maximum ----"); e("L_slow:")
    e("s_setprio 0")
    e(f"s_lshl_b32 s{sT0}, s{sW}, 9")
    e(f"s_add_u32 s{sT0}, s{sT0}, {L_L}")
    e(f"v_lshl_add_u32 v{vT2}, v{vL}, 3, s{sT0}")
    e(f"v_mov_b32 v10, 0")
    e(f"v_mov_b32 v11, 0")
    lds_signal(e, C_S0, vT0)
    lds_wait(e, C_S0, 8, vT0)
    e(f"ds_write_b64 v{vT2}, v[10:11]")
    e(f"ds_write_b32 v{vCT}, v10 offset:{C_VOID}")
    e("s_waitcnt lgkmcnt(0)")
    flush_init(e)
    e(f"v_and_b32 v{vRM}, 31, v{vL}")
    e(f"v_lshlrev_b32 v{vRM}, 2, v{vRM}")
    e(f"v_add_u32 v{vRM}, {L_RM}, v{vRM}")
    e(f"s_lshl_b32 s{sT0}, s{sW}, 7")
    e(f"v_add_u32 v{vT1}, s{sT0}, v{vRM}")
    e(f"v_mov_b32 v{vT0}, 0xff800000")
    e(f"ds_write_b32 v{vT1}, v{vT0}")
    lds_signal(e, C_S1, vT0)
    lds_wait(e, C_S1, 8, vT0)
    e(f"v_add_u32 v{vQA}, {L_Q}, v{vL16}")
    e(f"v_mov_b32 v{vT2}, v{vRM}")
    e(f"s_mov_b32 s{sCNT}, 8")
    L1 = e.label("sp1")
    e(f"{L1}:")
    e(f"ds_read_b128 {vr(Q,4)}, v{vQA}")
    e(f"v_mov_b32 v{vT0}, 0xff800000")
    e("s_waitcnt lgkmcnt(0)")
    for t in range(8):
        e(f"{MFMA} {vr(S0,16)}, {vr(KR+4*t,4)}, {vr(Q,4)}, 0")
        e("s_nop 11")
        for i in range(0, 16, 2):
            e(f"v_max3_f32 v{vT0}, v{S0+i}, v{S0+i+1}, v{vT0}")
    e(f"ds_max_f32 v{vT2}, v{vT0}")
    e(f"v_add_u32 v{vQA}, 1024, v{vQA}")
    e(f"v_add_u32 v{vT2}, 128, v{vT2}")
    e(f"s_sub_u32 s{sCNT}, s{sCNT}, 1")
    e(f"s_cmp_lg_u32 s{sCNT}, 0")
    e(f"s_cbranch_scc1 {L1}")
    lds_signal(e, C_S2, vT0)
    lds_wait(e, C_S2, 8, vT0)
    e(f"v_add_u32 v{vQA}, {L_Q}, v{vL16}")
    e(f"s_mov_b32 s{sCNT}, 8")
    L2 = e.label("sp2")
    e(f"{L2}:")
    e(f"ds_read_b128 {vr(Q,4)}, v{vQA}")
    e(f"ds_read_b32 v{vT0}, v{vRM}")
    e("s_waitcnt lgkmcnt(0)")
    for i in range(16):
        e(f"v_sub_f32 v{S1+i}, 0, v{vT0}")
    e("s_nop 1")
    for t in range(8):
        e(f"{MFMA} {vr(S0,16)}, {vr(KR+4*t,4)}, {vr(Q,4)}, {vr(S1,16)}")
        e("s_nop 11")
        for i in range(16):
            e(f"v_exp_f32 v{S0+i}, v{S0+i}")
        for i in range(8):
            e(f"v_cvt_pk_bf16_f32 v{S0+i}, v{S0+2*i}, v{S0+2*i+1}")
        e("s_nop 1")
        e(f"{MFMA} {vr(O,16)}, {vr(VR+8*t,4)}, {vr(S0,4)}, {'0' if t == 0 else vr(O,16)}")
        e(f"{MFMA} {vr(O,16)}, {vr(VR+8*t+4,4)}, {vr(S0+4,4)}, {vr(O,16)}")
    e("s_nop 11")
    a_flush(e)
    e(f"v_add_u32 v{vQA}, 1024, v{vQA}")
    e(f"v_add_u32 v{vRM}, 128, v{vRM}")
    e(f"s_sub_u32 s{sCNT}, s{sCNT}, 1")
    e(f"s_cmp_lg_u32 s{sCNT}, 0")
    e(f"s_cbranch_scc1 {L2}")
    e("s_branch L_aend")

def silu(e, d, t, r):
    e(f"v_mul_f32 v{r+1}, {f32bits(-LOG2E):#x}, v{r}")
    for i in range(0, 16, 2):
        e(f"v_pk_mul_f32 {vr(t+i,2)}, {vr(d+i,2)}, {vr(r,2)} op_sel:[0,1] op_sel_hi:[1,1]")
    for i in range(16):
        e(f"v_exp_f32 v{t+i}, v{t+i}")
    e(f"v_rcp_f32 v{r}, v{r}")
    e("s_nop 0")
    for i in range(0, 16, 2):
        e(f"v_pk_fma_f32 {vr(t+i,2)}, {vr(t+i,2)}, {vr(r,2)}, {vr(r,2)} op_sel_hi:[1,0,0]")
    for i in range(16):
        e(f"v_rcp_f32 v{t+i}, v{t+i}")
    for i in range(0, 16, 2):
        e(f"v_pk_mul_f32 {vr(d+i,2)}, {vr(d+i,2)}, {vr(t+i,2)}")

def ffn_role(e, st, emit_attention):
    vD1A, vD1B = 9, 10
    vTRC, vTA0, vTA1, vXB, vHH = 11, 12, 13, 14, 15
    ACC, AF, BF = 16, 80, 96
    sRING, sSO, sB0, sB1, sGRP = 90, 91, 92, 93, 89
    vPF = BF + 17
    TS = bool(OPT.get("tailst"))
    GS = bool(OPT.get("g1st"))
    st.off = TS or GS
    def tm():
        if TS: st.mark()
    def gm():
        if GS:
            st.off = False; st.mark(); st.off = True
    if DBGT:
        e("s_memrealtime s[98:99]")
    X, T = 96, 112
    rows = ROWS[:4]
    if common.STAMP:
        e(f"s_mov_b32 s{common.S_ST}, s98")
        e(f"s_mov_b32 s{common.S_ST+1}, s96")
    e(f"s_lshl_b32 s{sT3}, s{sF}, 2")
    e(f"s_add_u32 s{sT2}, s{sT2}, s{sT3}")
    row_offsets(e, sT2, 4)
    ln_setup(e, 4, T, sT2)
    e(f"v_lshrrev_b32 v{vT0}, 2, v{vL}")
    e(f"v_and_b32 v{vT0}, 4, v{vT0}")
    e(f"v_and_b32 v{vT1}, 7, v{vL}")
    e(f"v_xor_b32 v{vT1}, v{vT1}, v{vT0}")
    e(f"v_lshlrev_b32 v{vT1}, 4, v{vT1}")
    e(f"v_lshrrev_b32 v{vT0}, 3, v{vL}")
    e(f"v_lshl_add_u32 v{vDA}, v{vT0}, 10, v{vT1}")
    e(f"v_add_u32 v{vDB}, {8192-1024}, v{vDA}")
    common_setup(e)
    e(f"s_lshr_b32 s{sGRP}, s{sCG}, 1")
    e(f"v_mul_u32_u24 v{vD1A}, 3584, v{vT0}")
    e(f"v_add_u32 v{vD1A}, v{vD1A}, v{vT1}")
    e(f"v_add_u32 v{vD1B}, {8*3584-1024}, v{vD1A}")
    e(f"s_mul_i32 s{sRING}, s{sF}, {RINGB}")
    e(f"s_add_u32 s{sRING}, s{sRING}, {L_WQ}")
    tr_common(e, vTRC, vT0, vT1)
    e(f"v_lshrrev_b32 v{vHH}, 5, v{vL}")
    vWA, vXA, vG, vI, vSA = ACC+8, ACC+9, ACC+10, ACC+11, ACC+7
    e(f"v_lshrrev_b32 v{vG}, 4, v{vL}")
    e(f"v_and_b32 v{vI}, 15, v{vL}")
    e(f"v_lshlrev_b32 v{vWA}, 3, v{vI}")
    e(f"v_lshl_add_u32 v{vWA}, v{vG}, 8, v{vWA}")
    e(f"v_add_u32 v{vWA}, {L_R}, v{vWA}")
    e(f"v_mul_u32_u24 v{vXA}, {XS2}, v{vG}")
    e(f"v_lshl_add_u32 v{vXA}, v{vI}, 4, v{vXA}")
    e(f"v_add_u32 v{vXA}, s{rows[0]}, v{vXA}")
    e(f"s_lshr_b32 s{sB0}, s{sGRP}, 1")
    e(f"s_lshl_b32 s{sT1}, s{sRP}, 1")
    e(f"s_add_u32 s{sB0}, s{sB0}, s{sT1}")
    e(f"s_and_b32 s{sB1}, s{sGRP}, 1")
    e(f"s_and_b32 s{sT3}, s{sCG}, 1")
    e(f"v_and_b32 v{vT0}, 1, v{vG}")
    e(f"v_lshlrev_b32 v{vT0}, 9, v{vT0}")
    e(f"v_lshrrev_b32 v{vT1}, 1, v{vG}")
    e(f"v_lshl_add_u32 v{vT0}, v{vT1}, 3, v{vT0}")
    e(f"v_lshl_add_u32 v{vSA}, v{vI}, 4, v{vT0}")
    e(f"s_lshl_b32 s{sSO}, s{sB1}, 8")
    e(f"s_lshl_b32 s{sT0}, s{sB0}, 10")
    e(f"s_add_u32 s{sSO}, s{sSO}, s{sT0}")
    e(f"s_lshl_b32 s{sT0}, s{sT3}, 16")
    assert VF == 0x10000
    e(f"s_add_u32 s{sSO}, s{sSO}, s{sT0}")
    vRA = ACC + 6
    e(f"s_lshl_b32 s{sT0}, s{sGRP}, 6")
    e(f"s_add_u32 s{sT0}, s{sT0}, {L_RT}")
    e(f"v_lshlrev_b32 v{vT0}, 2, v{vI}")
    e(f"v_lshlrev_b32 v{vT1}, 4, v{vG}")
    e(f"s_cmp_eq_u32 s{sT3}, 0")
    e(f"s_cselect_b64 vcc, -1, 0")
    e(f"v_cndmask_b32 v{vRA}, v{vT1}, v{vT0}, vcc")
    e(f"v_add_u32 v{vRA}, s{sT0}, v{vRA}")
    ln_both4(e, X, T, 136, rows, 5)
    e("s_waitcnt vmcnt(1)")
    lds_signal(e, C_KVX, vT0)
    st.mark()
    Lnokv = e.label("nokv")
    e(f"s_cmp_lg_u32 s{sF}, 0")
    e(f"s_cbranch_scc1 {Lnokv}")
    lds_wait(e, C_KVX, 4, vT0, sleep=0)
    FRG = 96
    def kvreads(kk):
        b = FRG + 8*(kk % 4)
        e(f"ds_read_b64_tr_b16 {vr(b,2)}, v{vWA} offset:{kk*1024}")
        e(f"ds_read_b64_tr_b16 {vr(b+2,2)}, v{vWA} offset:{kk*1024+128}")
        e(f"ds_read_b128 {vr(b+4,4)}, v{vXA} offset:{kk*4*XS2}")
    def kvchain(isv):
        for kk in range(16):
            e(f"s_waitcnt lgkmcnt({3*min(3, 15-kk)})")
            b = FRG + 8*(kk % 4)
            c = "0" if kk == 0 else vr(ACC,4)
            if isv: e(f"{M16} {vr(ACC,4)}, {vr(b+4,4)}, {vr(b,4)}, {c}")
            else:   e(f"{M16} {vr(ACC,4)}, {vr(b,4)}, {vr(b+4,4)}, {c}")
            if kk + 4 < 16: kvreads(kk + 4)
    Lv, Lkvs = e.label("kvv"), e.label("kvs")
    RR = ACC + 16
    e(f"ds_read2_b32 {vr(RR,2)}, v{vRA} offset0:0 offset1:1")
    e(f"ds_read2_b32 {vr(RR+2,2)}, v{vRA} offset0:2 offset1:3")
    for kk in range(4): kvreads(kk)
    e(f"s_bitcmp1_b32 s{sCG}, 0")
    e(f"s_cbranch_scc1 {Lv}")
    kvchain(False)
    e("s_nop 7")
    e(f"v_pk_mul_f32 {vr(ACC,2)}, {vr(ACC,2)}, {vr(RR,2)} op_sel_hi:[1,0]")
    e(f"v_pk_mul_f32 {vr(ACC+2,2)}, {vr(ACC+2,2)}, {vr(RR,2)} op_sel_hi:[1,0]")
    e(f"s_branch {Lkvs}")
    e(f"{Lv}:")
    kvchain(True)
    e("s_nop 7")
    e(f"v_pk_mul_f32 {vr(ACC,2)}, {vr(ACC,2)}, {vr(RR,2)}")
    e(f"v_pk_mul_f32 {vr(ACC+2,2)}, {vr(ACC+2,2)}, {vr(RR+2,2)}")
    e(f"{Lkvs}:")
    e(f"v_cvt_pk_bf16_f32 v{ACC}, v{ACC}, v{ACC+1}")
    e(f"v_cvt_pk_bf16_f32 v{ACC+1}, v{ACC+2}, v{ACC+3}")
    e(f"buffer_store_dwordx2 {vr(ACC,2)}, v{vSA}, {sr(sWS,4)}, s{sSO} offen sc1")
    if WQAT == "s" or len(WQAT) == 3: lds_signal(e, C_KVS, vT0)
    st.mark()
    assert ACC + 12 == 28
    e(f"v_dot2_f32_bf16 v30, v{ACC}, v{ACC}, 0")
    e(f"v_dot2_f32_bf16 v30, v{ACC+1}, v{ACC+1}, v30")
    e(f"s_lshl_b32 s{sT0}, s{sB0}, 2")
    e(f"s_lshl_b32 s{sT1}, s{sB1}, 1")
    e(f"s_add_u32 s{sT0}, s{sT0}, s{sT1}")
    e(f"s_add_u32 s{sT0}, s{sT0}, s{sT3}")
    e(f"s_lshl_b32 s{sT0}, s{sT0}, 7")
    e(f"s_add_u32 s{sT0}, s{sT0}, {KVFL}")
    swap_op(e, "v_add_f32", 16, 30, ACC+3)
    swap_op(e, "v_add_f32", 32, 30, ACC+3)
    dpp_max16(e, 30)
    e(f"s_sub_u32 s{sT1}, s{sT3}, 1")
    e(f"v_and_b32 v30, s{sT1}, v30")
    e(f"v_mov_b32 v{vT1}, 0")
    e("s_waitcnt vmcnt(1)")
    e(f"v_add_co_u32 v28, vcc, 1, v28")
    e("s_nop 1")
    e(f"v_addc_co_u32 v29, vcc, 0, v29, vcc")
    e(f"v_mov_b32 v31, v28")
    e("s_mov_b64 exec, 1")
    e("s_waitcnt vmcnt(0)")
    e(f"buffer_store_dwordx4 v[28:31], v{vT1}, {sr(sWS,4)}, s{sT0} offen sc1")
    e("s_mov_b64 exec, -1")
    e(f"ds_write_b64 v{vCT}, v[28:29] offset:{C_NON}")
    lds_signal(e, C_KVF, vT0)
    st.mark()
    Lkvj = e.label("kvj")
    e(f"s_branch {Lkvj}")
    e(f"{Lnokv}:")
    if not st.off: st.n -= 2
    st.mark(); st.mark()
    e(f"{Lkvj}:")
    st.mark()
    def filler():
        e(f"s_lshl_b32 s{sT0}, s{sRP}, 3")
        e(f"s_add_u32 s{sT0}, s{sT0}, s{sF}")
        e(f"s_lshl_b32 s{sT0}, s{sT0}, 3")
        e(f"s_add_u32 s{sT0}, s{sT0}, s{sCG}")
        e(f"s_lshl_b32 s{sT0}, s{sT0}, 10")
        e(f"s_add_u32 s{sT0}, s{sT0}, {OF}")
        e(f"s_add_u32 s{sT1}, s{sT0}, 32768")
        e(f"v_mov_b64 {vr(BF+60,2)}, -1")
        e(f"v_mov_b64 {vr(BF+62,2)}, -1")
        e(f"buffer_store_dwordx4 {vr(BF+60,4)}, v{vL16}, {sr(sWS,4)}, s{sT0} offen sc1")
        e(f"buffer_store_dwordx4 {vr(BF+60,4)}, v{vL16}, {sr(sWS,4)}, s{sT1} offen sc1")
        if FAST:
            Lf = e.label("nf2")
            e(f"s_cmp_lg_u32 s{sF}, 3")
            e(f"s_cbranch_scc1 {Lf}")
            e(f"s_add_u32 s{sT0}, s{sT0}, {OF2 - OF}")
            e(f"s_add_u32 s{sT1}, s{sT1}, {OF2 - OF}")
            e(f"buffer_store_dwordx4 {vr(BF+60,4)}, v{vL16}, {sr(sWS,4)}, s{sT0} offen sc1")
            e(f"buffer_store_dwordx4 {vr(BF+60,4)}, v{vL16}, {sr(sWS,4)}, s{sT1} offen sc1")
            e(f"{Lf}:")
    if not FILLATE: filler()
    e(f"s_and_b32 s{sT0}, s{sF}, 1")
    e(f"s_mul_i32 s{sT0}, s{sT0}, {XRT}")
    e(f"v_and_b32 v{vXB}, 31, v{vL}")
    e(f"v_lshlrev_b32 v{vXB}, 4, v{vXB}")
    e(f"v_mul_u32_u24 v{vT0}, {XS2}, v{vHH}")
    e(f"v_add_u32 v{vXB}, v{vXB}, v{vT0}")
    e(f"v_add_u32 v{vT2}, s{sT0}, v{vXB}")
    e(f"s_lshr_b32 s{sT1}, s{sF}, 1")
    e(f"s_lshl_b32 s{sT1}, s{sT1}, 6")
    e(f"v_lshl_add_u32 v{vTA0}, v{vHH}, 10, v{vTRC}")
    e(f"v_xor_b32 v{vTA0}, s{sT1}, v{vTA0}")
    e(f"v_add_u32 v{vTA0}, {L_WQ}, v{vTA0}")
    NS = 5
    if len(WQAT) == 3:
        Lgo = e.label("wqgo")
        for f in range(1, 4):
            if WQAT[f-1] == "l":
                e(f"s_cmp_eq_u32 s{sF}, {f}")
                e(f"s_cbranch_scc1 {Lgo}")
        lds_wait(e, C_KVS, 1, vT0, sleep=1)
        for f in range(1, 4):
            if WQAT[f-1] == "s":
                e(f"s_cmp_eq_u32 s{sF}, {f}")
                e(f"s_cbranch_scc1 {Lgo}")
        lds_wait(e, C_KVF, 1, vT0, sleep=1)
        e(f"{Lgo}:")
    elif WQAT != "l": lds_wait(e, *((C_KVS, 1) if WQAT == "s" else (C_KVF, 1)), vT0, sleep=1)
    stage_w512(e, 6, L_WQ, sF, 4, sT1)
    e("s_waitcnt vmcnt(0)")
    lds_signal(e, C_WQ, vT0)
    lds_wait(e, C_WQ, 4, vT0, sleep=1)
    lds_wait(e, C_RS, 8, vT0, sleep=1)
    def row_scale(dst):
        e(f"s_and_b32 s{sT0}, s{sF}, 1")
        e(f"s_lshl_b32 s{sT0}, s{sT0}, 7")
        e(f"s_add_u32 s{sT0}, s{sT0}, {L_RT}")
        e(f"v_and_b32 v{dst}, 31, v{vL}")
        e(f"v_lshl_add_u32 v{dst}, v{dst}, 2, s{sT0}")
        e(f"ds_read_b32 v{dst}, v{dst}")
    row_scale(AF)
    if QFIRST:
        Lq = e.label("qa")
        e(f"s_cmp_lt_u32 s{sF}, 2")
        e(f"s_cbranch_scc1 {Lq}")
        lds_wait(e, C_QW, 2, vT0, sleep=2)
        e(f"{Lq}:")
    st.mark()
    def qreads(ks):
        b = BF + 8*(ks % NS)
        e(f"ds_read_b64_tr_b16 {vr(b,2)}, v{vTA0} offset:{ks*2048}")
        e(f"ds_read_b64_tr_b16 {vr(b+2,2)}, v{vTA0} offset:{ks*2048+512}")
        e(f"ds_read_b128 {vr(b+4,4)}, v{vT2} offset:{ks*XS1}")
    for ks in range(NS): qreads(ks)
    for ks in range(32):
        e(f"s_waitcnt lgkmcnt({3*min(NS-1, 31-ks)})")
        b = BF + 8*(ks % NS)
        e(f"{MFMA} {vr(ACC,16)}, {vr(b,4)}, {vr(b+4,4)}, {'0' if ks == 0 else vr(ACC,16)}")
        if ks + NS < 32: qreads(ks + NS)
    e(f"s_and_b32 s{sT0}, s{sF}, 1")
    e(f"s_lshl_b32 s{sT0}, s{sT0}, 10")
    e(f"s_lshr_b32 s{sT1}, s{sF}, 1")
    e(f"s_lshl_b32 s{sT1}, s{sT1}, 12")
    e(f"s_add_u32 s{sT0}, s{sT0}, s{sT1}")
    e(f"s_add_u32 s{sT0}, s{sT0}, {L_Q}")
    e(f"v_add_u32 v{vT0}, s{sT0}, v{vL16}")
    e(f"v_mul_f32 v{AF}, {f32bits(QSCALE):#x}, v{AF}")
    e("s_nop 3")
    for i in range(0, 16, 2):
        e(f"v_pk_mul_f32 {vr(ACC+i,2)}, {vr(ACC+i,2)}, {vr(AF,2)} op_sel_hi:[1,0]")
    for i in range(8):
        e(f"v_cvt_pk_bf16_f32 v{ACC+i}, v{ACC+2*i}, v{ACC+2*i+1}")
    e(f"ds_write_b128 v{vT0}, {vr(ACC,4)}")
    e(f"ds_write_b128 v{vT0}, {vr(ACC+4,4)} offset:2048")
    lds_signal(e, C_QW, vT0)
    if OPT.get("qst2"): st.mark()
    if FILLATE: filler()
    e(f"s_setprio {FPRIO}")
    for h in range(2):
        e(f"v_dot2_f32_bf16 v{ACC+8+h}, v{ACC+4*h}, v{ACC+4*h}, 0")
    for i in range(1, 4):
        for h in range(2):
            e(f"v_dot2_f32_bf16 v{ACC+8+h}, v{ACC+4*h+i}, v{ACC+4*h+i}, v{ACC+8+h}")
    for i in range(4):
        e(f"v_mov_b32 v{ACC+12+i}, 0")
    e(f"v_permlane32_swap_b32 v{ACC+8}, v{ACC+9}")
    e(f"s_lshl_b32 s{sT0}, s{sF}, 10")
    e(f"v_add_f32 v{ACC+8}, v{ACC+8}, v{ACC+9}")
    e(f"s_add_u32 s{sT0}, s{sT0}, {L_L}")
    dpp_max16(e, ACC+8)
    e(f"v_add_u32 v{vT1}, s{sT0}, v{vL16}")
    e(f"s_mov_b32 exec_lo, 0x00010001")
    e(f"s_mov_b32 exec_hi, 0x00010001")
    e(f"ds_max_u32 v{vCT}, v{ACC+8} offset:{C_QMAX}")
    e("s_mov_b64 exec, -1")
    lds_wait(e, C_QW, 4, vT0)
    e(f"ds_write_b128 v{vT1}, {vr(ACC+12,4)}")
    e("s_waitcnt vmcnt(0)")
    lds_signal(e, C_Z, vT0)
    if not OPT.get("qst2"): st.mark()
    e(f"s_setprio {FPRIO}")
    e("s_branch L_g1")
    emit_attention()
    e("; ---- FFN waves: GEMM1 (h), GEMM2 (f), reduction, silu, o @ wo, output ----"); e("L_g1:")
    if OPT.get("pure"):
        for i in range(8): st.mark()
        st.mark(True)
        st.flush(sW, sWS, vT0, vT1, 12)
        e("s_endpgm")
    abl_start = len(e.lines)
    set_srd(e, sWA, 16, 512*1792*2)
    F_ID, F_D = 144, 148
    sPQ, sRT2, sP1 = 88, 94, 55
    e(f"s_mov_b32 s{sPQ}, s{sF}")
    make_identity(e, F_ID, vT0, vT1)
    lds_wait(e, C_KVL, max(1, int(OPT.get("gate", 8))), vT0, sleep=4)
    fetch_nonce(e, AF)
    st.mark()
    if PF1:
        e(f"s_lshr_b32 s{sT0}, s2, 3")
        e(f"s_mul_i32 s{sT0}, s{sT0}, {448*128}")
        e(f"s_lshl_b32 s{sT1}, s{sF}, 14")
        e(f"s_add_u32 s{sT0}, s{sT0}, s{sT1}")
        e(f"s_add_u32 s{sT1}, s{sT0}, 8192")
        e(f"buffer_load_dword v{vPF}, v{vTA1}, {sr(sWA,4)}, s{sT0} offen sc1")
        e(f"buffer_load_dword v{vPF}, v{vTA1}, {sr(sWA,4)}, s{sT1} offen sc1")
    vPO, sP2, sPO_ = BF + 16, 54, 89
    sW2, sWO = 44, 8
    set_srd(e, sW2, 18, 512*1792*2)
    set_srd(e, sWO, 12, 512*512*2)
    def prefetch(i):
        if i < 2:
            e(f"buffer_load_dword v{vPF}, v{vPO}, {sr(sW2,4)}, s{sP2} offen sc1")
            e(f"s_add_u32 s{sP2}, s{sP2}, 8192")
        else:
            e("s_mov_b32 exec_hi, 0")
            e(f"buffer_load_dword v{vPF}, v{vPO}, {sr(sWO,4)}, s{sPO_} offen sc1")
            e("s_mov_b64 exec, -1")
    PFL = [0, 1, 2] if PF2 else [2]
    e(f"v_lshlrev_b32 v{vPO}, 7, v{vL}")
    e(f"s_lshr_b32 s{sT0}, s2, 3")
    e(f"s_mul_i32 s{sP2}, s{sT0}, {448*128}")
    e(f"s_lshl_b32 s{sT1}, s{sF}, 14")
    e(f"s_add_u32 s{sP2}, s{sP2}, s{sT1}")
    e(f"s_lshl_b32 s{sPO_}, s{sT0}, 14")
    e(f"s_lshl_b32 s{sT1}, s{sF}, 12")
    e(f"s_add_u32 s{sPO_}, s{sPO_}, s{sT1}")
    D, DB = 6, 6
    sJ, sR, sSB, sSG = 84, 85, 86, 87
    GP = OPT.get("gp", "11")
    e(f"s_lshr_b32 s{sR}, s2, 6" if ROT else f"s_mov_b32 s{sR}, 0")
    e(f"s_lshl_b32 s{sJ}, s{sCG}, 2")
    e(f"s_add_u32 s{sJ}, s{sJ}, s{sF}")
    e(f"s_mul_i32 s{sSB}, s{sF}, {448*1024}")
    e(f"s_lshl_b32 s{sT0}, s{sCG}, 7")
    e(f"s_add_u32 s{sSB}, s{sSB}, s{sT0}")
    def seg_off(dst, sidx, per_seg, base):
        return [f"s_add_u32 s{sSG}, s{sR}, {sidx}", f"s_and_b32 s{sSG}, s{sSG}, 3", f"s_mul_i32 s{sSG}, s{sSG}, {per_seg}", f"s_add_u32 s{dst}, s{sSG}, s{base}"]
    def dma_l(u):
        if u < 32:
            adv = [f"s_add_u32 s{sSO}, s{sSO}, {16*3584}"] if u else [f"s_lshl_b32 s{sSO}, s{sJ}, 7"]
            va, vb, srd_ = vD1A, vD1B, sWA
        else:
            g = u - 32
            adv = seg_off(sSO, g // 7, 7*16384, sSB) if g % 7 == 0 else [f"s_add_u32 s{sSO}, s{sSO}, 16384"]
            va, vb, srd_ = vDA, vDB, sW2
        return [[f"s_add_u32 m0, s{sRING}, {2048*(u % D)}"] + adv + [f"buffer_load_dwordx4 v{va}, {sr(srd_,4)}, s{sSO} offen lds"],
                [f"buffer_load_dwordx4 v{vb}, {sr(srd_,4)}, s{sSO} offen offset:1024 lds"]]
    def dma(u):
        for grp in dma_l(u):
            for l in grp: e(l)
    def areads_l(u):
        b = AF + 8*(u & 1)
        o = 2048*(u % D)
        second = 512 if u < 32 else 1024
        return [f"ds_read_b64_tr_b16 {vr(b,2)}, v{vTA0} offset:{o}", f"ds_read_b64_tr_b16 {vr(b+2,2)}, v{vTA0} offset:{o+second}",
                f"ds_read_b64_tr_b16 {vr(b+4,2)}, v{vTA1} offset:{o}", f"ds_read_b64_tr_b16 {vr(b+6,2)}, v{vTA1} offset:{o+second}"]
    def mfma_l(u, bb0):
        a = AF + 8*(u & 1)
        out = []
        for (i, j) in ((0, 0), (0, 1), (1, 1), (1, 0)):
            d = ACC + 16*(2*i+j)
            out.append(f"{MFMA} {vr(d,16)}, {vr(a+4*i,4)}, {vr(bb0+4*j,4)}, {'0' if u in (0, 32) else vr(d,16)}")
        return out
    def weave(ms, fill):
        for i in range(4):
            e(ms[i])
            for l in fill[i]: e(l)
    def try_pub(p, lim=6):
        L = e.label("nt")
        e(f"s_cmp_gt_u32 s{sPQ}, {lim}")
        e(f"s_cbranch_scc1 {L}")
        e(f"s_setprio {FPRIO}")
        e(f"s_call_b64 {sr(sRT2,2)}, L_ftry")
        e(f"{L}:")
        e(f"s_setprio {p}")
    log = []
    def wait_for(items):
        last = max(i for i, it in enumerate(log) if it in items) if any(it in items for it in log) else -1
        return f"s_waitcnt vmcnt({len(log) - 1 - last})"
    Lskip1, Lg1d = e.label("g1skip"), e.label("g1d")
    e(f"s_cmp_eq_u32 s{sCG}, 7")
    e(f"s_cbranch_scc1 {Lskip1}")
    for u in range(D):
        dma(u); log += [("A", u)]*2
    e(f"v_lshl_add_u32 v{vTA0}, v{vHH}, 10, v{vTRC}")
    e(f"v_add_u32 v{vTA0}, s{sRING}, v{vTA0}")
    e(f"v_xor_b32 v{vTA1}, 64, v{vTA0}")
    e(f"v_add_u32 v0, {XRT}, v{vXB}")
    def xreads_l(k):
        b = BF + 8*(k & 1)
        return [f"ds_read_b128 {vr(b,4)}, v{vXB} offset:{k*XS1}", f"ds_read_b128 {vr(b+4,4)}, v0 offset:{k*XS1}"]
    TRY1 = [int(x) for x in OPT.get("try1", "99").split("+")]
    e(f"s_setprio {GP[0]}")
    gm()
    e(wait_for([("A", 0)]))
    for l in areads_l(0) + xreads_l(0): e(l)
    for k in range(32):
        if k % 4 == 0: gm()
        if k in TRY1: try_pub(GP[0])
        e("s_waitcnt lgkmcnt(0)")
        fill = [[], [], [], []]
        if k + 1 < 32:
            r = areads_l(k + 1)
            fill[0] = xreads_l(k + 1) + [wait_for([("A", k + 1)])] + r[0:2]
            fill[1] = r[2:4]
        if CONT or k + D < 32:
            fill[2], fill[3] = dma_l(k + D); log += [("A", k + D)]*2
        weave(mfma_l(k, BF + 8*(k & 1)), fill)
        PFK = [int(x) for x in OPT.get("pfk", "4+11+18").split("+")]
        for i in PFL:
            if PFK[i] == k:
                prefetch(i); log.append(("P", k))
    e(f"s_setprio {FPRIO}")
    e(f"s_mul_i32 s{sT0}, s{sRP}, {2*112*1024}")
    e(f"s_lshl_b32 s{sT1}, s{sJ}, 12")
    e(f"s_add_u32 s{sT0}, s{sT0}, s{sT1}")
    e(f"s_add_u32 s{sT0}, s{sT0}, {HF}")
    e(f"s_add_u32 s{sT1}, s{sT0}, {112*1024}")
    gm()
    e("s_nop 6")
    for (a, bb) in ((0, 0), (0, 1), (1, 1), (1, 0)):
        d = ACC + 16*(2*a+bb)
        for i in range(8):
            e(f"v_cvt_pk_bf16_f32 v{d+i}, v{d+2*i}, v{d+2*i+1}")
        for i in range(8):
            e(f"v_pk_max_i16 v{d+i}, v{d+i}, 0")
        for half in range(2):
            e(f"buffer_store_dwordx4 {vr(d+4*half,4)}, v{vL16}, {sr(sWS,4)}, s{sT1 if bb else sT0} offen offset:{(2*a+half)*1024} sc1")
    gm()
    e(f"s_branch {Lg1d}")
    e(f"{Lskip1}:")
    for i in PFL: prefetch(i)
    if CONT:
        for u in range(32, 32 + D): dma(u)
    e(f"{Lg1d}:")
    e(f"s_lshl_b32 s{sT0}, s{sRP}, 5")
    e(f"s_add_u32 s{sT0}, s{sT0}, s{sJ}")
    e(f"s_lshl_b32 s{sT0}, s{sT0}, 7")
    e(f"s_add_u32 s{sT0}, s{sT0}, {HFL}")
    flag_set(e, AF, sT0)
    lds_signal(e, C_G1, vT0)
    gm()
    st.mark()
    if OPT.get("tb", "1") == "1": e(f"s_call_b64 {sr(sRT2,2)}, L_ftry")
    if not CONT:
        for u in range(32, 32 + D): dma(u)
    lds_wait(e, C_G1, 4, vT0, sleep=2)
    WOL = int(OPT.get("wol", 0))
    if not WOL: stage_w512(e, None, L_XN, sF, 4, sB0, srd_=sWO)
    Lc7 = e.label("c7")
    e(f"s_cmp_lg_u32 s{sCG}, 7")
    e(f"s_cbranch_scc1 {Lc7}")
    e(f"s_cmp_ge_u32 s{sPQ}, 4")
    e(f"s_cbranch_scc1 {Lc7}")
    e(f"s_call_b64 {sr(sRT2,2)}, L_fpub")
    e(f"{Lc7}:")
    if OPT.get("tb", "1") == "2": e(f"s_call_b64 {sr(sRT2,2)}, L_ftry")
    e(f"s_lshr_b32 s{sT1}, s{sF}, 1")
    e(f"s_lshl_b32 s{sT1}, s{sT1}, 6")
    e(f"v_lshl_add_u32 v{vTA0}, v{vHH}, 9, v{vTRC}")
    e(f"v_xor_b32 v{vXB}, s{sT1}, v{vTA0}")
    e(f"v_add_u32 v{vTA0}, s{sRING}, v{vXB}")
    e(f"v_xor_b32 v{vTA1}, 64, v{vTA0}")
    sHB, sHD = 89, 84
    e(f"s_mul_i32 s{sHB}, s{sRP}, {2*112*1024}")
    e(f"s_mul_i32 s{sT1}, s{sF}, {28*1024}")
    e(f"s_add_u32 s{sHB}, s{sHB}, s{sT1}")
    e(f"s_add_u32 s{sHB}, s{sHB}, {HF}")
    e(f"s_bitcmp1_b32 s{sF}, 0")
    e(f"s_cselect_b32 s{sT0}, {112*1024}, 0")
    e(f"s_add_u32 s{sHB}, s{sHB}, s{sT0}")
    e(f"s_lshl_b32 s{sT0}, s{sT0}, 1")
    e(f"s_sub_u32 s{sHD}, {112*1024}, s{sT0}")
    e(f"s_mul_i32 s{sT1}, s{sF}, 7")
    e(f"s_add_u32 s{sT0}, s{sF}, 28")
    e(f"v_add_u32 v{vT0}, s{sT1}, v{vL}")
    e(f"v_mov_b32 v{vT1}, s{sT0}")
    e(f"v_cmp_gt_u32 vcc, 7, v{vL}")
    e(f"s_lshl_b32 s{sT0}, s{sRP}, 12")
    e(f"s_add_u32 s{sT0}, s{sT0}, {HFL}")
    e(f"v_cndmask_b32 v{vT0}, v{vT1}, v{vT0}, vcc")
    e(f"v_lshlrev_b32 v{vT0}, 7, v{vT0}")
    flag_poll(e, AF + 8, vT0, sT0, sleep=int(OPT.get("hsleep", 8)))
    st.mark()
    def bload_l(g):
        out = []
        j = g % 7
        if j == 0:
            out += seg_off(sB0, g // 7, 7*1024, sHB) + [f"s_add_u32 s{sB1}, s{sB0}, s{sHD}"]
        elif j == 4:
            out += [f"s_add_u32 s{sB0}, s{sB0}, 4096", f"s_add_u32 s{sB1}, s{sB1}, 4096"]
        b = BF + 8*(g % DB)
        return out + [f"buffer_load_dwordx4 {vr(b,4)}, v{vL16}, {sr(sWS,4)}, s{sB0} offen offset:{(j%4)*1024} sc1",
                      f"buffer_load_dwordx4 {vr(b+4,4)}, v{vL16}, {sr(sWS,4)}, s{sB1} offen offset:{(j%4)*1024} sc1"]
    sOB = 54
    e(f"s_and_b32 s{sT0}, s{sF}, 1")
    e(f"s_lshl_b32 s{sT1}, s{sRP}, 1")
    e(f"s_add_u32 s{sOB}, s{sT0}, s{sT1}")
    e(f"s_lshl_b32 s{sOB}, s{sOB}, 15")
    e(f"s_add_u32 s{sOB}, s{sOB}, {OF}")
    EO = int(OPT.get("eo", 1))
    log.clear()
    for g in range(DB):
        for l in bload_l(g): e(l)
        log += [("B", g)]*2
    lds_signal(e, C_HP, vT0)
    TRY = [int(x) for x in OPT.get("try", "0+6+12+18+24").split("+")]
    for l in areads_l(32): e(l)
    for g in range(28):
        u = 32 + g
        if g in TRY: try_pub(GP[1], int(OPT.get("lim", "33445")[TRY.index(g)]))
        e(wait_for([("B", g)]) + " lgkmcnt(0)")
        fill = [[], [], [], []]
        if g + 1 < 28:
            fill[0] = [wait_for([("A", u + 1)])] + areads_l(u + 1)
        if g + D < 28:
            fill[1], fill[2] = dma_l(u + D); log += [("A", u + D)]*2
        if g + DB < 28:
            fill[3] = bload_l(g + DB); log += [("B", g + DB)]*2
        if EO and g == 20:
            e(f"s_setprio {FPRIO}")
            lds_wait(e, C_HP, 4, vT2, sleep=2)
            e(f"s_setprio {GP[1]}")
        if EO and g >= 22:
            sl = g % DB
            fill[3] = [f"s_add_u32 s{sSG}, s{sOB}, {2048*sl}"] + \
                      [f"buffer_load_dwordx4 {vr(BF+8*sl+4*i,4)}, v{vL16}, {sr(sWS,4)}, s{sSG} offen offset:{1024*i} sc1" for i in range(2)]
            log += [("O", g)]*2
        if WOL and g >= 22:
            def wopair(i):
                pre = [f"s_lshl_b32 s{sSO}, s{sF}, 17", f"s_lshl_b32 s{sSG}, s{sCG}, 7", f"s_add_u32 s{sSO}, s{sSO}, s{sSG}", f"s_lshl_b32 s{sSG}, s{sF}, 14"] if i == 0 else []
                return pre + [f"s_add_u32 m0, s{sSG}, {L_XN + 2048*i}", (f"s_add_u32 s{sSO}, s{sSO}, 16384" if i else "s_nop 0"),
                              f"buffer_load_dwordx4 v{vDA}, {sr(sWO,4)}, s{sSO} offen lds",
                              f"buffer_load_dwordx4 v{vDB}, {sr(sWO,4)}, s{sSO} offen offset:1024 lds"]
            if g < 26:
                fill[1] = wopair(2*(g-22)); fill[3] = wopair(2*(g-22)+1); log += [("W", g)]*4
        weave(mfma_l(u, BF + 8*(g % DB)), fill)
    if GP: e(f"s_setprio {FPRIO}")
    st.off = GS
    st.mark()
    if ABL:
        keep = []
        for l in e.lines[abl_start:]:
            t = l.strip()
            if "m" in ABL and t.startswith("v_mfma"): continue
            if "g" in ABL and t.startswith("buffer_load_dwordx4"): continue
            if "l" in ABL and (t.startswith("ds_read_b64_tr") or t.startswith("ds_read_b128")): continue
            if "v" in ABL and (t.startswith("v_cvt_pk") or t.startswith("v_pk_max") or t.startswith("buffer_store_dwordx4")): continue
            keep.append(l)
        e.lines[abl_start:] = keep
    XR, G = AF, ACC
    vXO = vD1A
    e(f"s_lshr_b32 s{sT0}, s{sF}, 1")
    e(f"s_lshl_b32 s{sT1}, s{sCG}, 1")
    e(f"s_add_u32 s{sT0}, s{sT0}, s{sT1}")
    e(f"s_lshl_b32 s{sSO}, s{sT0}, 6")
    e(f"s_and_b32 s{sT0}, s{sF}, 1")
    e(f"s_lshl_b32 s{sT1}, s{sRP}, 1")
    e(f"s_add_u32 s{sB1}, s{sT0}, s{sT1}")
    e(f"s_lshl_b32 s{sB0}, s{sB1}, 15")
    e(f"s_add_u32 s{sSO}, s{sSO}, s{sB0}")
    e(f"s_add_u32 s{sB0}, s{sB0}, {OF}")
    e(f"v_add_u32 v{vT0}, s{sRING}, v{vL16}")
    for l in (1, 3, 2):
        for i in range(4):
            e(f"ds_write_b128 v{vT0}, {vr(ACC+16*l+4*i,4)} offset:{4096*(l-1)+1024*i}")
    lds_signal(e, C_RED, vT2)
    if WOL:
        e("s_waitcnt vmcnt(0)")
        lds_signal(e, C_WO, vT2)
    tm()
    LOWP = OPT.get("lowp", "0")
    Lp2, Lp3 = e.label("p2"), e.label("p3")
    e(f"{Lp2}:")
    e(f"s_cmp_ge_u32 s{sPQ}, 7")
    e(f"s_cbranch_scc1 {Lp3}")
    e(f"s_call_b64 {sr(sRT2,2)}, L_fpub")
    e(f"s_branch {Lp2}")
    e(f"{Lp3}:")
    R1 = [96 + 4*n for n in range(16)]
    R2 = [64, 68, 72, 76, 88, 92, 160, 164]
    R3 = R1[:8]
    vFO, vCA, vWO = vD1B, vTA0, vXB
    def oloads(R, first):
        e(f"s_add_u32 s{sT0}, s{sB0}, {first*1024}")
        for n, r in enumerate(R):
            if n % 4 == 0 and n: e(f"s_add_u32 s{sT0}, s{sT0}, 4096")
            e(f"buffer_load_dwordx4 {vr(r,4)}, v{vL16}, {sr(sWS,4)}, s{sT0} offen offset:{(n%4)*1024} sc1")
    def peek(n, first, sleep):
        L, D = e.label("pk"), e.label("pkd")
        e(f"v_min_u32 v{vFO}, {n-1}, v{vL}")
        e(f"v_lshlrev_b32 v{vFO}, 10, v{vFO}")
        e(f"s_add_u32 s{sT1}, s{sB0}, {first*1024}")
        e(f"s_mov_b32 s{sSP}, {SPIN_MAX}")
        e(f"{L}:")
        e(f"buffer_load_dword v{vT1}, v{vFO}, {sr(sWS,4)}, s{sT1} offen sc1")
        e(f"s_sub_u32 s{sSP}, s{sSP}, 1")
        e("s_waitcnt vmcnt(0)")
        e(f"v_cmp_eq_u32 vcc, -1, v{vT1}")
        e(f"s_cbranch_vccz {D}")
        e(f"s_sleep {sleep}")
        e(f"s_cbranch_scc0 {L}")
        e(f"{D}:")
    def verify(R, first, younger):
        L, D = e.label("vf"), e.label("vfd")
        e(f"s_mov_b32 s{sSP}, {SPIN_MAX}")
        e(f"s_waitcnt vmcnt({younger})")
        e(f"{L}:")
        regs = [r + i for r in R for i in range(4 if FULLCHK else 1)]
        e(f"v_max_u32 v{vT1}, v{regs[0]}, v{regs[1]}")
        for i in range(2, len(regs), 2):
            e(f"v_max3_u32 v{vT1}, v{regs[i]}, v{regs[i+1]}, v{vT1}")
        e(f"v_cmp_eq_u32 vcc, -1, v{vT1}")
        e(f"s_cbranch_vccz {D}")
        e("s_sleep 4")
        oloads(R, first)
        e("s_waitcnt vmcnt(0)")
        e(f"s_sub_u32 s{sSP}, s{sSP}, 1")
        e(f"s_cbranch_scc0 {L}")
        e(f"{D}:")
    if EO:
        oloads(R1[12:], 12)
    else:
        lds_wait(e, C_HP, 4, vT2, sleep=2)
        oloads(R1, 0)
    e(f"v_and_b32 v{vXO}, 31, v{vL}")
    e(f"v_lshlrev_b32 v{vXO}, 10, v{vXO}")
    e(f"v_lshl_add_u32 v{vXO}, v{vHH}, 3, v{vXO}")
    for q in range(4):
        e(f"buffer_load_dwordx2 {vr(XR+2*q,2)}, v{vXO}, {sr(sX,4)}, s{sSO} offen offset:{16*q}")
    RA = 88
    for l in range(1, 4):
        e(f"s_xor_b32 s{sT0}, s{sF}, {l}")
        e(f"s_mul_i32 s{sT0}, s{sT0}, {RINGB}")
        e(f"s_add_u32 s{sT0}, s{sT0}, {L_WQ + 4096*(l-1)}")
        e(f"v_add_u32 v{RA+l}, s{sT0}, v{vL16}")
    if OPT.get("lowat") == "r": e(f"s_setprio {LOWP}")
    tm()
    lds_wait(e, C_RED, 4, vT2, sleep=2)
    tm()
    for l in range(1, 4):
        for i in range(4):
            e(f"ds_read_b128 {vr(ACC+16*l+4*i,4)}, v{RA+l} offset:{1024*i}")
    row_scale(4)
    e("s_waitcnt lgkmcnt(0)")
    tm()
    for i in range(0, 16, 2):
        e(f"v_pk_add_f32 {vr(ACC+i,2)}, {vr(ACC+i,2)}, {vr(ACC+16+i,2)}")
        e(f"v_pk_add_f32 {vr(ACC+32+i,2)}, {vr(ACC+32+i,2)}, {vr(ACC+48+i,2)}")
    for i in range(0, 16, 2):
        e(f"v_pk_add_f32 {vr(ACC+i,2)}, {vr(ACC+i,2)}, {vr(ACC+32+i,2)}")
    SA, AW = 32, 48
    assert L_XN == 0
    e(f"s_and_b32 s{sT0}, s{sF}, 1")
    e(f"s_lshl_b32 s{sT0}, s{sT0}, 9")
    e(f"s_add_u32 s{sT0}, s{sT0}, {L_L + 6*512}")
    e(f"v_mov_b32 v{vCA}, s{sT0}")
    def woread(dst, head):
        e(f"ds_read_b64_tr_b16 {vr(dst,2)}, v{vWO} offset:{head*2048}")
        e(f"ds_read_b64_tr_b16 {vr(dst+2,2)}, v{vWO} offset:{head*2048+1024}")
    seqA = [(i, c) for i in range(4) for c in range(8)]
    RALL = R1 + R2 + R3
    tm()
    oloads(R2, 16)
    if WOL: lds_wait(e, C_WO, 4, vT2, sleep=2)
    for n in range(4): woread(AW + 4*n, 4*seqA[n][1] + seqA[n][0])
    LOWAT = OPT.get("lowat", "s")
    assert LOWAT in "sq" and FAST
    e(f"s_setprio {LOWP}")
    def mm(n0, n1):
        for n in range(n0, n1):
            e(f"s_waitcnt lgkmcnt({2*min(3, 31-n)})")
            e(f"{MFMA} {vr(SA,16)}, {vr(AW+4*(n%4),4)}, {vr(RALL[n],4)}, {'0' if n == 0 else vr(SA,16)}")
            if n + 4 < 32: woread(AW + 4*(n%4), 4*seqA[n+4][1] + seqA[n+4][0])
    XF = 64
    sM, sA, sB = sP1, sB1, sRING
    e(f"s_mov_b32 s{sM}, 0xff")
    e(f"s_add_u32 s{sA}, s{sB0}, {24*1024 + OF2 - OF}")
    e(f"s_add_u32 s{sB}, s{sA}, 4096")
    def rnd_loads(masked):
        for c in range(8):
            L = e.label("gs")
            if masked:
                e(f"s_bitcmp1_b32 s{sM}, {c}")
                e(f"s_cbranch_scc0 {L}")
            e(f"buffer_load_dwordx4 {vr(R3[c],4)}, v{vL16}, {sr(sWS,4)}, s{sA if c < 4 else sB} offen offset:{(c%4)*1024} sc1")
            if masked: e(f"{L}:")
    if LOWAT == "s":
        silu(e, ACC, SA, 4)
        st.mark()
        verify(R1, 0, 8)
        verify(R2, 16, 0)
        NE = int(OPT.get("ne", 16))
        mm(0, NE)
        rnd_loads(False)
        mm(NE, 24)
    else:
        Lre, Lok2 = e.label("re"), e.label("rok")
        e(f"s_mov_b32 s{sSP}, {SPIN_MAX}")
        e(f"{Lre}:")
        e("s_waitcnt vmcnt(8)")
        mm(0, 16)
        e("s_waitcnt vmcnt(0)")
        mm(16, 24)
        st.mark()
        regs = [r + i for r in R1 + R2 for i in range(4)]
        e(f"v_max_u32 v{vT0}, v{regs[0]}, v{regs[1]}")
        for i in range(2, len(regs), 2):
            e(f"v_max3_u32 v{vT0}, v{regs[i]}, v{regs[i+1]}, v{vT0}")
        e(f"v_cmp_eq_u32 vcc, -1, v{vT0}")
        e(f"s_cbranch_vccz {Lok2}")
        e("s_sleep 4")
        oloads(R1, 0)
        oloads(R2, 16)
        e("s_waitcnt lgkmcnt(0)")
        for n in range(4): woread(AW + 4*n, 4*seqA[n][1] + seqA[n][0])
        e(f"s_sub_u32 s{sSP}, s{sSP}, 1")
        e(f"s_cbranch_scc0 {Lre}")
        e("s_waitcnt vmcnt(0)")
        e(f"{Lok2}:")
        if OPT.get("r3at", "a") == "a": rnd_loads(False)
        silu(e, ACC, 128, 4)
        if OPT.get("r3at", "a") == "b": rnd_loads(False)
    if True:
        st.mark()
        for q in range(8):
            e(f"v_lshlrev_b32 v{XF+2*q}, 16, v{XR+q}")
            e(f"v_and_b32 v{XF+2*q+1}, 0xffff0000, v{XR+q}")
        tm()
        Lp, Lpd = e.label("gm"), e.label("gmd")
        e(f"s_mov_b32 s{sPQ}, {SPIN_MAX}")
        e("s_waitcnt vmcnt(0)")
        e(f"v_max_u32 v{vT1}, v{R3[0]}, v{R3[0]+1}")
        for i in range(2, 32, 2):
            e(f"v_max3_u32 v{vT1}, v{R3[0]+i}, v{R3[0]+i+1}, v{vT1}")
        e(f"v_cmp_eq_u32 vcc, -1, v{vT1}")
        e(f"s_cbranch_vccz {Lpd}")
        if OPT.get("gall", "8") != "x":
            La = e.label("ga")
            lds_wait(e, OCNT, CNT8, vT1, sleep=2, vaddr=vCA)
            e("s_setprio 3")
            e(f"s_mov_b32 s{sT1}, {int(OPT.get('gall', 8))}")
            e(f"{La}:")
            rnd_loads(False)
            e("s_waitcnt vmcnt(0)")
            e(f"v_max_u32 v{vT1}, v{R3[0]}, v{R3[0]+1}")
            for i in range(2, 32, 2):
                e(f"v_max3_u32 v{vT1}, v{R3[0]+i}, v{R3[0]+i+1}, v{vT1}")
            e(f"v_cmp_eq_u32 vcc, -1, v{vT1}")
            e(f"s_cbranch_vccz {Lpd}")
            e(f"s_sub_u32 s{sT1}, s{sT1}, 1")
            e(f"s_cbranch_scc0 {La}")
        e(f"{Lp}:")
        e("s_waitcnt vmcnt(0)")
        for c in range(8):
            L = e.label("gc")
            e(f"s_bitcmp1_b32 s{sM}, {c}")
            e(f"s_cbranch_scc0 {L}")
            e(f"v_max_u32 v{vT1}, v{R3[c]}, v{R3[c]+1}")
            e(f"v_max3_u32 v{vT1}, v{R3[c]+2}, v{R3[c]+3}, v{vT1}")
            e(f"v_cmp_eq_u32 vcc, -1, v{vT1}")
            e(f"s_cbranch_vccnz {L}")
            e(f"s_bitset0_b32 s{sM}, {c}")
            e(f"{L}:")
        e(f"s_cmp_eq_u32 s{sM}, 0")
        e(f"s_cbranch_scc1 {Lpd}")
        lds_wait(e, OCNT, CNT8, vT1, sleep=2, vaddr=vCA)
        e("s_setprio 3")
        e(f"s_and_b32 s{sT0}, s{sPQ}, 7")
        e(f"s_cmp_eq_u32 s{sT0}, 1")
        e(f"s_cselect_b32 s{sT0}, 0, {OF2 - OF}")
        e(f"s_add_u32 s{sA}, s{sB0}, s{sT0}")
        e(f"s_add_u32 s{sA}, s{sA}, {24*1024}")
        e(f"s_add_u32 s{sB}, s{sA}, 4096")
        rnd_loads(True)
        e(f"s_sub_u32 s{sPQ}, s{sPQ}, 1")
        e(f"s_cbranch_scc0 {Lp}")
        e("s_waitcnt vmcnt(0)")
        e(f"{Lpd}:")
        e("s_setprio 3")
        tm(); tm(); tm()
    mm(24, 32)
    e("s_nop 11")
    for i in range(0, 16, 2):
        e(f"v_pk_fma_f32 {vr(SA+i,2)}, {vr(SA+i,2)}, {vr(G+i,2)}, {vr(XF+i,2)}")
    OST = OPT.get("ost", "").replace("+", " ")
    if OPT.get("o4", "1") == "1":
        for i in range(8):
            e(f"v_cvt_pk_bf16_f32 v{SA+i}, v{SA+2*i}, v{SA+2*i+1}")
        e(f"v_lshl_add_u32 v{vXO}, v{vHH}, 3, v{vXO}")
        e("s_nop 0")
        for p in range(2):
            e(f"v_permlane32_swap_b32 v{SA+4*p}, v{SA+4*p+2}")
            e(f"v_permlane32_swap_b32 v{SA+4*p+1}, v{SA+4*p+3}")
            e(f"buffer_store_dwordx4 {vr(SA+4*p,4)}, v{vXO}, {sr(sOUT,4)}, s{sSO} offen offset:{32*p} {OST}")
    else:
        for q in range(4):
            a = SA + 4*q
            e(f"v_cvt_pk_bf16_f32 v{a}, v{a}, v{a+1}")
            e(f"v_cvt_pk_bf16_f32 v{a+1}, v{a+2}, v{a+3}")
            e(f"buffer_store_dwordx2 {vr(a,2)}, v{vXO}, {sr(sOUT,4)}, s{sSO} offen offset:{16*q} {OST}")
    OB = 96
    Lne = e.label("ne")
    e(f"s_xor_b32 s{sT0}, s{sF}, 3")
    e(f"s_or_b32 s{sT0}, s{sT0}, s2")
    e(f"s_cmp_lg_u32 s{sT0}, 0")
    e(f"s_cbranch_scc1 {Lne}")
    e(f"s_mov_b32 s{sT0}, {EPOCH}")
    flag_set(e, OB, sT0)
    e(f"{Lne}:")
    if DBGT:
        e("s_waitcnt vmcnt(0)")
        dbg_time(e, 2, False, vT0, vT1)
        e(f"v_mov_b32 v{vT0}, s98")
        e(f"v_not_b32 v{vT2}, s98")
        e(f"v_mov_b32 v{vT1}, 0")
        e("s_mov_b64 exec, 1")
        e(f"global_atomic_umax v{vT1}, v{vT2}, s[22:23]")
        e(f"global_atomic_umax v{vT1}, v{vT0}, s[22:23] offset:4")
        e("s_mov_b64 exec, -1")
    if common.STAMP: e("s_waitcnt vmcnt(0)")
    st.off = False
    st.mark(); st.mark(True)
    st.flush(sW, sWS, vT0, vT1, 12)
    e("s_endpgm")
    BUF = [88, 92, 164]
    e("; ---- publish a finished q-tile: sum the 8 partial fragments, normalise, store ----"); e("L_ftry:")
    e(f"s_cmp_ge_u32 s{sPQ}, 7")
    e(f"s_cbranch_scc1 L_fret")
    e(f"s_lshl_b32 s{sT0}, s{sPQ}, 9")
    e(f"s_add_u32 s{sT0}, s{sT0}, {L_L}")
    e(f"v_mov_b32 v{vT2}, s{sT0}")
    e(f"ds_read_b32 v{vT1}, v{vT2} offset:{OCNT}")
    e("s_waitcnt lgkmcnt(0)")
    e(f"v_cmp_ne_u32 vcc, {CNT8}, v{vT1}")
    e(f"s_cbranch_vccz L_fgo")
    e("L_fret:")
    e(f"s_setpc_b64 {sr(sRT2,2)}")
    e("L_fpub:")
    e(f"s_lshl_b32 s{sT0}, s{sPQ}, 9")
    e(f"s_add_u32 s{sT0}, s{sT0}, {L_L}")
    e(f"v_mov_b32 v{vT2}, s{sT0}")
    lds_wait(e, OCNT, CNT8, vT1, sleep=4, vaddr=vT2, exact=True)
    e("L_fgo:")
    e(f"s_and_b32 s{sT1}, s{sPQ}, 3")
    e(f"s_lshl_b32 s{sT1}, s{sT1}, 13")
    e(f"s_add_u32 s{sT1}, s{sT1}, {L_OA}")
    e(f"v_add_u32 v{vT0}, s{sT1}, v{vL16}")
    for w in range(3):
        e(f"ds_read_b128 {vr(BUF[w],4)}, v{vT0} offset:{1024*w}")
    e(f"v_and_b32 v{vT1}, 31, v{vL}")
    e(f"v_lshl_add_u32 v{vT1}, v{vT1}, 3, v{vT2}")
    for w in range(8):
        e(f"s_waitcnt lgkmcnt({min(2, 7-w)})")
        e(f"{MFMA} {vr(F_D,16)}, {vr(F_ID,4)}, {vr(BUF[w%3],4)}, {'0' if w == 0 else vr(F_D,16)}")
        if w + 3 < 8: e(f"ds_read_b128 {vr(BUF[w%3],4)}, v{vT0} offset:{1024*(w+3)}")
    e(f"ds_write_b32 v{vT2}, v{vCT} offset:{OMRK}")
    e(f"ds_read_b64 v[4:5], v{vT1}")
    e("s_waitcnt lgkmcnt(0)")
    publish_tail(e, F_D, 4, sPQ)
    e(f"s_add_u32 s{sPQ}, s{sPQ}, 4")
    e(f"s_setpc_b64 {sr(sRT2,2)}")
    attention_slow(e)

def common_setup(e):
    decode_ids(e)
    e(f"v_mov_b32 v{vCT}, {L_C}")
    e(f"s_mov_b32 s{sONES}, 0x3f803f80")
    for d, b, n in ((sX, 4, 2048*512*2), (sWS, 26, WS_BYTES), (sOUT, 22, 2048*512*2)):
        e(f"s_mov_b64 s[{d}:{d+1}], s[{b}:{b+1}]")
        e(f"s_mov_b32 s{d+2}, {n:#x}")
        e(f"s_mov_b32 s{d+3}, 0x20000")

def row_offsets(e, sbase, n):
    for j in range(n):
        r = ROWS[j]
        e(f"s_add_u32 s{r}, s{sbase}, {j}")
        e(f"s_and_b32 s{r}, s{r}, 63")
        e(f"s_lshr_b32 s{sT0}, s{r}, 5")
        e(f"s_mul_i32 s{sT0}, s{sT0}, {XRT - 512}")
        e(f"s_lshl_b32 s{r}, s{r}, 4")
        e(f"s_add_u32 s{r}, s{r}, s{sT0}")

def gen(e, name):
    kernel_begin(e, name)
    stA, stF = Stamps(e, 0), Stamps(e, 0)
    e("s_load_dwordx16 s[4:19], s[0:1], 0")
    e("s_load_dwordx8 s[20:27], s[0:1], 56")
    PFTOP = int(OPT.get("pftop", 0))
    if PFTOP:
        e("L_pf:")
        e("s_getpc_b64 s[44:45]")
        e(f"s_and_b32 s{sT0}, s2, 0xf8")
        e(f"v_add_lshl_u32 v{vT1}, v0, s{sT0}, 7")
        e(f"v_cmp_gt_u32 vcc, 8, v0")
        e(f"v_min_u32 v{vT1}, CODE_BYTES, v{vT1}")
        e(f"s_and_saveexec_b64 s[46:47], vcc")
        e("s_cbranch_execz L_pfd")
        e(f"global_load_dword v11, v{vT1}, s[44:45]")
        e("L_pfd:")
        e("s_mov_b64 exec, -1")
    e(f"v_lshrrev_b32 v{vT0}, 6, v0")
    e(f"s_cmpk_ge_u32 s2, 256")
    e(f"v_readfirstlane_b32 s{sW}, v{vT0}")
    e(f"s_cbranch_scc1 L_end")
    if common.STAMP:
        e("s_memrealtime s[98:99]")
        e("s_memtime s[96:97]")
        stA.n = stF.n = 2
    e(f"s_and_b32 s{sT1}, s2, 7")
    e(f"s_lshl_b32 s{sT1}, s{sT1}, 8")
    e(f"s_and_b32 s{sT2}, s2, 0xf0")
    e(f"v_and_b32 v{vL}, 63, v0")
    e(f"s_cmp_lt_u32 s{sW}, 8")
    e(f"v_lshlrev_b32 v{vL16}, 4, v{vL}")
    e(f"s_cbranch_scc1 L_a0")
    e("s_setprio 3")
    e(f"s_sub_u32 s{sF}, s{sW}, 8")
    e(f"s_add_u32 s{sT1}, s{sT1}, s{sT2}")
    e(f"s_lshl_b32 s{sT1}, s{sT1}, 10")
    e(f"s_lshl_b32 s{sT3}, s{sF}, 12")
    e(f"s_add_u32 s{sT1}, s{sT1}, s{sT3}")
    e(f"v_add_u32 v{vT1}, s{sT1}, v{vL16}")
    e(f"v_add_u32 v{vT2}, s{sT3}, v{vL16}")
    e(f"s_add_u32 m0, s{sT3}, {L_R}")
    e(f"s_bitcmp1_b32 s2, 3")
    e("s_waitcnt lgkmcnt(0)")
    for j in range(4):
        e(f"global_load_dwordx4 {vr(96+4*j,4)}, v{vT1}, s[4:5] offset:{1024*j}")
    e(f"s_cselect_b64 s[8:9], s[10:11], s[8:9]")
    for j in range(4):
        e(f"global_load_lds_dwordx4 v{vT2}, s[8:9] offset:{1024*j}")
    e(f"v_mov_b32 v{vT1}, {EPOCH}")
    e(f"global_load_dwordx2 v[28:29], v{vT1}, s[26:27]")
    e("s_barrier")
    e("s_branch L_ffn")
    e("; ---- attention waves: first loads ----"); e("L_a0:")
    e(f"s_cmp_lg_u32 s{sW}, 0")
    e(f"s_cbranch_scc1 L_nopf")
    if not PFTOP:
        e("s_getpc_b64 s[44:45]")
        e(f"s_lshr_b32 s{sT0}, s2, 3")
        e(f"s_lshl_b32 s{sT0}, s{sT0}, 10")
        e(f"v_lshl_add_u32 v{vT1}, v0, 7, s{sT0}")
        e(f"v_min_u32 v{vT1}, CODE_BYTES, v{vT1}")
        e(f"s_mov_b64 exec, 0xff")
        e(f"global_load_dword v{vT2}, v{vT1}, s[44:45]")
        e("s_mov_b64 exec, -1")
    e(f"v_lshlrev_b32 v{vT0}, 2, v{vL}")
    e(f"v_add_u32 v{vT0}, {L_C}, v{vT0}")
    e(f"v_mov_b32 v{vT1}, 0")
    e(f"ds_write_b32 v{vT0}, v{vT1}")
    e("L_nopf:")
    e(f"s_and_b32 s{sT3}, s2, 0xc0")
    e(f"s_add_u32 s{sT1}, s{sT1}, s{sT3}")
    e(f"s_mul_i32 s{sT3}, s{sW}, 6")
    e(f"s_add_u32 s{sT2}, s{sT2}, s{sT3}")
    e(f"s_add_u32 s{sT2}, s{sT2}, 16")
    for p in range(3):
        e(f"s_add_u32 s{sT3}, s{sT2}, {2*p}")
        e(f"s_and_b32 s{sT3}, s{sT3}, 63")
        e(f"s_add_u32 s{sT3}, s{sT3}, s{sT1}")
        e(f"s_lshl_b32 s{sT3}, s{sT3}, 10")
        e(f"v_add_u32 v{12+p}, s{sT3}, v{vL16}")
    e("s_waitcnt lgkmcnt(0)")
    TL = int(OPT.get("tlbs", 0))
    if TL == 1:
        e("s_load_dword s62, s[6:7], 0x0")
        e("s_load_dword s63, s[26:27], 0x22000")
    e("s_barrier")
    for j in range(6):
        e(f"global_load_dwordx4 {vr(112+4*j,4)}, v{12+j//2}, s[4:5] offset:{1024*(j&1)}")
    if TL == 2:
        e("s_load_dword s62, s[6:7], 0x0")
        e("s_load_dword s63, s[26:27], 0x22000")
    if TL:
        e("s_load_dword s64, s[16:17], 0x0")
        e("s_load_dword s65, s[18:19], 0x0")
        e("s_load_dword s66, s[12:13], 0x0")
        e("s_load_dword s60, s[22:23], 0x0")
    e("s_branch L_attn")
    if OPT.get("alf"): e(f".p2align {OPT.get('alf')}")
    e("L_ffn:")
    ffn_role(e, stF, lambda: attention_role(e, stA))
    e("L_end:")
    e("s_endpgm")
    e("L_code_end:")
    return 168

DOC = '; ---------------------------------------------------------------------------------------------------------\n; workgroup redoes attention with the exact row maximum (L_slow, two passes).\n; Hand-offs between workgroups: write-through stores + drained flag carrying a tag (= word found in ws on entry + 1),\n; ---------------------------------------------------------------------------------------------------------\n'

if __name__ == "__main__":
    if "--stamp" in sys.argv:
        sys.argv.remove("--stamp"); common.STAMP = True
    out = sys.argv[1] if len(sys.argv) > 1 else "cdna_kernels/" + NAME + ".s"
    HDR = open("cdna_kernels/" + NAME + ".s.ref").read().split("; Override")[0]
    e = Asm()
    e('.amdgcn_target "amdgcn-amd-amdhsa--gfx950"')
    e(".text")
    name = NAME + "_kernel"
    nv = gen(e, name)
    hdr = HDR + f"; @launch grid=(256,1,1) block=(768,1,1) lds={LDS_BYTES}\n" + DOC
    txt = hdr + e.text() + '.section .rodata,"a"\n' + descriptor(name, nv)
    import subprocess, re as _re
    open("_p1.s", "w").write(txt.replace("CODE_BYTES", "0x12345"))
    subprocess.run(["clang", "-x", "assembler", "-target", "amdgcn-amd-amdhsa", "-mcpu=gfx950", "-c", "_p1.s", "-o", "_p1.o"], check=True)
    sym = subprocess.run(["llvm-readelf", "-s", "_p1.o"], capture_output=True, text=True).stdout
    addr = {l.split()[-1]: int(l.split()[1], 16) for l in sym.splitlines() if l.split() and l.split()[-1].startswith("L_")}
    nbytes = addr["L_code_end"] - addr["L_a0"] - 128
    assert nbytes < 32768 + 2600, nbytes
    open(out, "w").write(txt.replace("CODE_BYTES", hex(nbytes)))
```
